```python
import torch

def _softmax(x, axis=-1):
    return torch.softmax(x, dim=axis)
def _gelu(x):
    return torch.nn.functional.gelu(x, approximate="tanh")
def _silu(x):
    return torch.nn.functional.silu(x)
def _sigmoid(x):
    return torch.sigmoid(x)
def _layernorm(x, axis=-1, eps=1e-5):
    m = x.mean(dim=axis, keepdim=True)
    v = x.var(dim=axis, keepdim=True, unbiased=False)
    return (x - m) / torch.sqrt(v + eps)
def _scatter_add(tgt, idx, src, axis=0):
    return tgt.clone().index_add_(axis, idx, src)
def _segment_sum(src, seg, n):
    out = torch.zeros((n,) + src.shape[1:], dtype=src.dtype)
    return out.index_add_(0, seg, src)
def _pad(x, pw):
    flat = tuple(v for pair in reversed(pw) for v in pair)
    return torch.nn.functional.pad(x, flat)

kernel_name = 'interleave_layers__spectral_fnet__spectral_fnet__prompt'

def setup_inputs():

    _w = (lambda a: (lambda t: t.to(torch.bfloat16) if t.is_floating_point() else t)(torch.as_tensor(a)))
    def _A_setup():
        B, S, D = 1, 2048, 1024
        ns = torch.arange(S)[:, None] * torch.arange(S)[None, :]
        nd = torch.arange(D)[:, None] * torch.arange(D)[None, :]
        Ws_re = torch.cos(-2.0 * torch.pi * ns / S).to(float)
        Ws_im = torch.sin(-2.0 * torch.pi * ns / S).to(float)
        Wd_re = torch.cos(-2.0 * torch.pi * nd / D).to(float)
        Wd_im = torch.sin(-2.0 * torch.pi * nd / D).to(float)
        return {
            "x": _w((lambda *s: torch.randn(*s, dtype=torch.bfloat16) * 0.05)(B, S, D)),
            "dft_seq_re": _w(Ws_re),
            "dft_seq_im": _w(Ws_im),
            "dft_hid_re": _w(Wd_re),
            "dft_hid_im": _w(Wd_im),
        }
    _A_in = _A_setup()

    def _B_setup():
        B, S, D = 1, 2048, 1024
        ns = torch.arange(S)[:, None] * torch.arange(S)[None, :]
        nd = torch.arange(D)[:, None] * torch.arange(D)[None, :]
        Ws_re = torch.cos(-2.0 * torch.pi * ns / S).to(float)
        Ws_im = torch.sin(-2.0 * torch.pi * ns / S).to(float)
        Wd_re = torch.cos(-2.0 * torch.pi * nd / D).to(float)
        Wd_im = torch.sin(-2.0 * torch.pi * nd / D).to(float)
        return {
            "x": _w((lambda *s: torch.randn(*s, dtype=torch.bfloat16) * 0.05)(B, S, D)),
            "dft_seq_re": _w(Ws_re),
            "dft_seq_im": _w(Ws_im),
            "dft_hid_re": _w(Wd_re),
            "dft_hid_im": _w(Wd_im),
        }
    _B_in = _B_setup()

    return {
        "A_x": _A_in["x"],
        "A_dft_seq_re": _A_in["dft_seq_re"],
        "A_dft_seq_im": _A_in["dft_seq_im"],
        "A_dft_hid_re": _A_in["dft_hid_re"],
        "A_dft_hid_im": _A_in["dft_hid_im"],
        "B_x": _B_in["x"],
        "B_dft_seq_re": _B_in["dft_seq_re"],
        "B_dft_seq_im": _B_in["dft_seq_im"],
        "B_dft_hid_re": _B_in["dft_hid_re"],
        "B_dft_hid_im": _B_in["dft_hid_im"],
    }

def reference(A_x, A_dft_seq_re, A_dft_seq_im, A_dft_hid_re, A_dft_hid_im, B_x, B_dft_seq_re, B_dft_seq_im, B_dft_hid_re, B_dft_hid_im):
    def _A_ref(x, dft_seq_re, dft_seq_im, dft_hid_re, dft_hid_im):
        a = torch.einsum("bsd,ed->bse", x, dft_hid_re)
        b = torch.einsum("bsd,ed->bse", x, dft_hid_im)
        y = torch.einsum("ts,bse->bte", dft_seq_re, a) - torch.einsum("ts,bse->bte", dft_seq_im, b)
        return y

    def _B_ref(x, dft_seq_re, dft_seq_im, dft_hid_re, dft_hid_im):
        a = torch.einsum("bsd,ed->bse", x, dft_hid_re)
        b = torch.einsum("bsd,ed->bse", x, dft_hid_im)
        y = torch.einsum("ts,bse->bte", dft_seq_re, a) - torch.einsum("ts,bse->bte", dft_seq_im, b)
        return y

    x = A_x
    x = x + _A_ref(_layernorm(x, axis=-1), A_dft_seq_re, A_dft_seq_im, A_dft_hid_re, A_dft_hid_im)
    x = x + _B_ref(_layernorm(x, axis=-1), B_dft_seq_re, B_dft_seq_im, B_dft_hid_re, B_dft_hid_im)
    x = x + _A_ref(_layernorm(x, axis=-1), A_dft_seq_re, A_dft_seq_im, A_dft_hid_re, A_dft_hid_im)
    x = x + _B_ref(_layernorm(x, axis=-1), B_dft_seq_re, B_dft_seq_im, B_dft_hid_re, B_dft_hid_im)
    return x
```

```python
import re

REG_RE = re.compile(r'\b([vsa])\[(\d+):(\d+)\]|\b([vsa])(\d+)\b|\b(vcc|exec|vcc_lo|vcc_hi|exec_lo|exec_hi|m0)\b')
TRANS = ('v_exp_', 'v_log_', 'v_rcp_', 'v_rsq_', 'v_sqrt_', 'v_sin_', 'v_cos_')

def regs_of(op):
    out = []
    for m in REG_RE.finditer(op):
        if m.group(1):
            out += [(m.group(1), r) for r in range(int(m.group(2)), int(m.group(3)) + 1)]
        elif m.group(4):
            out.append((m.group(4), int(m.group(5))))
        else:
            n = m.group(6)
            if n.startswith('vcc'): out.append(('s', 'vcc'))
            elif n.startswith('exec'): out.append(('s', 'exec'))
            else: out.append(('s', n))
    return out

def split_ops(s):
    ops = []; depth = 0; cur = ''
    for ch in s:
        if ch in '[(': depth += 1
        if ch in '])': depth -= 1
        if ch == ',' and depth == 0:
            ops.append(cur.strip()); cur = ''
        else: cur += ch
    if cur.strip(): ops.append(cur.strip())
    return ops

class Ins:
    def __init__(self, text):
        self.text = text
        t = text.split(';')[0].strip()
        parts = t.split(None, 1)
        self.mn = mn = parts[0]
        rest = parts[1] if len(parts) > 1 else ''
        ops = split_ops(rest)
        self.mods = ''
        if ops:
            last = ops[-1].split(None, 1)
            if len(last) > 1:
                ops[-1] = last[0]; self.mods = last[1]
        self.ops = ops
        self.mfma = mn.startswith('v_mfma')
        self.valu = mn.startswith('v_') and not self.mfma
        self.vmem = mn.startswith('buffer_') or mn.startswith('global_')
        self.ds = mn.startswith('ds_')
        self.salu = mn.startswith('s_')
        self.trans = mn.startswith(TRANS)
        self.dpp = '_dpp' in mn or 'row_' in self.mods or 'quad_perm' in self.mods
        self.perm = mn.startswith('v_permlane')
        self.rl = mn.startswith('v_readlane') or mn.startswith('v_readfirstlane')
        self.branch = mn.startswith('s_cbranch') or mn == 's_branch'
        self.uncond = mn in ('s_branch', 's_endpgm')
        self.target = ops[0] if self.branch else None
        self.ws = 1
        if mn == 's_nop': self.ws = int(ops[0], 0) + 1
        R = [regs_of(o) for o in ops]
        self.wr = set(); self.rd = set(); self.srcC = set(); self.srcAB = set(); self.sdata = set()
        if self.mfma:
            self.wr = set(R[0]); self.srcAB = set(R[1]) | set(R[2]); self.srcC = set(R[3]); self.rd = self.srcAB | self.srcC
            self.dC = ops[3]; self.dD = ops[0]
        elif self.valu:
            if self.perm or mn.startswith('v_swap'):
                self.wr = set(R[0]) | set(R[1]); self.rd = set(self.wr)
            else:
                self.wr = set(R[0])
                for r in R[1:]: self.rd |= set(r)
                if mn.startswith(('v_fmac', 'v_pk_fmac', 'v_mac', 'v_writelane')) or self.dpp: self.rd |= set(R[0])
                if mn.startswith('v_cndmask') and len(ops) == 3: self.rd.add(('s', 'vcc'))
                if mn.startswith(('v_add_co', 'v_sub_co', 'v_addc_co', 'v_subb_co')):
                    self.wr |= set(R[1])
        elif self.vmem:
            if 'load' in mn:
                self.wr = set(R[0])
                for r in R[1:]: self.rd |= set(r)
                if 'd16' in mn: self.rd |= set(R[0])
            else:
                for r in R: self.rd |= set(r)
                if mn.endswith(('x3', 'x4')): self.sdata = set(R[0])
        elif self.ds:
            if mn.startswith('ds_read'):
                self.wr = set(R[0])
                for r in R[1:]: self.rd |= set(r)
            else:
                for r in R: self.rd |= set(r)
        else:
            pass

def need(p, c):
    n = 0
    pv = {r for r in p.wr if r[0] in 'va'}
    ps = {r for r in p.wr if r[0] == 's'}
    if p.valu:
        if c.mfma and pv & c.rd: n = max(n, 2)
        if c.rl and pv & c.rd: n = max(n, 1)
        if (c.dpp or c.perm) and pv & c.rd: n = max(n, 2)
        if p.trans and c.valu and not c.trans and pv & c.rd: n = max(n, 1)
        if p.trans and c.valu and c.trans and pv & c.rd: n = max(n, 1)
        if ps:
            if c.vmem and ps & c.rd: n = max(n, 5)
            if (c.valu or c.mfma) and ps & c.rd: n = max(n, 4 if c.rl else 2)
            assert ('s', 'exec') not in ps
    if p.mfma:
        if c.mfma:
            if p.wr & c.srcAB: n = max(n, 8)
            if p.wr & c.srcC and c.dC != p.dD: n = max(n, 6)
        elif c.valu:
            if p.wr & (c.rd | c.wr): n = max(n, 8)
            if p.srcC & c.wr: n = max(n, 3)
        elif c.vmem or c.ds:
            if p.wr & (c.rd | c.wr): n = max(n, 8)
    if p.sdata and p.sdata & c.wr:
        n = max(n, 2 if (c.valu or c.mfma) else 1)
    return n

class Asm:
    def __init__(self):
        self.items = []
        self.uid = 0
    def __call__(self, text):
        for line in text.strip().split('\n'):
            line = line.strip()
            if not line: continue
            if line.startswith(';'): self.items.append(('raw', '    ' + line)); continue
            if line.endswith(':'): self.items.append(('label', line[:-1])); continue
            self.items.append(Ins(line))
    def label(self, name): self.items.append(('label', name))
    def raw(self, text): self.items.append(('raw', text))
    def newlabel(self, base='L'):
        self.uid += 1
        return f'{base}_{self.uid}'
    def pad(self):
        changed = True
        total = 0
        while changed:
            changed = False
            items = self.items
            srcs = {}
            for idx, it in enumerate(items):
                if isinstance(it, Ins) and it.branch: srcs.setdefault(it.target, []).append(idx)
            def walk(idx, dist, c, seen):
                worst = 0
                while idx >= 0 and dist < 8:
                    it = items[idx]
                    if isinstance(it, Ins):
                        if it.uncond and not seen[0]:
                            return worst
                        seen = (False,)
                        worst = max(worst, need(it, c) - dist)
                        dist += it.ws
                    elif it[0] == 'label':
                        for s in srcs.get(it[1], []):
                            worst = max(worst, walk(s, dist, c, (True,)))
                    elif it[0] == 'raw' and it[1].startswith('.KERNEL'):
                        return worst
                    idx -= 1
                return worst
            out = []
            for idx, it in enumerate(items):
                if isinstance(it, Ins) and (it.rd or it.wr):
                    n = walk(idx - 1, 0, it, (False,))
                    if n > 0:
                        out.append(Ins(f's_nop {n-1}')); changed = True; total += n
                        out.append(it)
                        out += items[idx + 1:]
                        break
                out.append(it)
            self.items = out
        return total
    def text(self):
        lines = []
        for it in self.items:
            if isinstance(it, Ins): lines.append('    ' + it.text)
            elif it[0] == 'label': lines.append(it[1] + ':')
            elif it[1].startswith('.KERNEL'): pass
            else: lines.append(it[1])
        return '\n'.join(lines) + '\n'

class Regs:
    def __init__(self, kind, start, limit):
        self.kind = kind; self.next = start; self.limit = limit; self.hi = start
    def alloc(self, n=1, align=1):
        self.next = (self.next + align - 1) // align * align
        r = self.next; self.next += n
        assert self.next <= self.limit, f'out of {self.kind} regs'
        self.hi = max(self.hi, self.next)
        return r

def v(r, n=1): return f'v{r}' if n == 1 else f'v[{r}:{r+n-1}]'
def s(r, n=1): return f's{r}' if n == 1 else f's[{r}:{r+n-1}]'
import struct
def f32(x): return '0x%08x' % struct.unpack('<I', struct.pack('<f', x))[0]
```

```python
import sys, math
sys.path.insert(0, 'work')
from asmlib import *

NAME = 'interleave_layers__spectral_fnet__spectral_fnet__prompt'
MAIN = NAME + '_kernel'
PRE = 'fnet_pre_kernel'
WS_SIZE = 0x4000000
S0B, SB, H0B, XB, FB, DUMPB = 0x10000, 0x100000, 0x400000, 0x800000, 0x1000000, 0x2000000
SSTR, XSTR = 0x40000, 0x200000
LDS_W, LDS_Q, LDS_R = 0, 8192, 16384
ROWB = 2176
LDS_MAIN = LDS_R + 4 * 2 * ROWB
BOUND = 20000
OPT = dict(debug=0, stamps=0)
for a in sys.argv[2:]:
    k, val = a.split('='); OPT[k] = int(val)

if OPT['debug']: WS_SIZE = 0x10000000
A = Asm()

def wg_indices(sK, sL, sN, sT):
    A(f'''
    s_and_b32 {s(sK)}, s2, 7
    s_lshl_b32 {s(sK)}, {s(sK)}, 1
    s_bfe_u32 {s(sT)}, s2, 0x10003
    s_or_b32 {s(sK)}, {s(sK)}, {s(sT)}
    s_lshr_b32 {s(sL)}, s2, 4
    s_lshl_b32 {s(sN)}, {s(sK)}, 4
    s_or_b32 {s(sN)}, {s(sN)}, {s(sL)}
    ''')

def rows_scalar(sK, sTau, sR, sM, t0, t1):
    A(f'''
    s_lshr_b32 {s(t0)}, {s(sTau)}, 5
    s_and_b32 {s(t1)}, {s(sTau)}, 31
    s_lshl_b32 {s(sR)}, {s(t1)}, 6
    s_lshl_b32 {s(sM)}, {s(t0)}, 5
    s_add_u32 {s(sM)}, {s(sM)}, {s(sK)}
    s_cmp_ge_u32 {s(t1)}, 16
    s_cselect_b32 {s(t1)}, -992, 0
    s_cmp_eq_u32 {s(t0)}, 1
    s_cselect_b32 {s(t1)}, 16, {s(t1)}
    s_cmp_eq_u32 {s(sK)}, 0
    s_cselect_b32 {s(sM)}, {s(t1)}, {s(sM)}
    s_add_u32 {s(sR)}, {s(sR)}, {s(sM)}
    s_sub_u32 {s(sM)}, 2048, {s(sR)}
    s_cmp_eq_u32 {s(sR)}, 0
    s_cselect_b32 {s(sM)}, 1024, {s(sM)}
    s_lshl_b32 {s(sR)}, {s(sR)}, 11
    s_lshl_b32 {s(sM)}, {s(sM)}, 11
    ''')

def relayout_addrs(vL, sBase, vLin, vRep, vMir, vA0, vC0, vD0, t0, t1, sm):
    def pos(dst, col, tmp):
        A(f'''
        v_lshrrev_b32 {v(tmp)}, 8, {v(col)}
        v_lshlrev_b32 {v(tmp)}, 5, {v(tmp)}
        v_lshl_add_u32 {v(dst)}, {v(col)}, 1, {v(tmp)}
        v_add_u32 {v(dst)}, {s(sBase)}, {v(dst)}
        ''')
    A(f'''
    v_lshrrev_b32 {v(t0)}, 5, {v(vL)}
    v_lshlrev_b32 {v(t0)}, 5, {v(t0)}
    v_lshl_add_u32 {v(vLin)}, {v(vL)}, 4, {v(t0)}
    v_add_u32 {v(vLin)}, {s(sBase)}, {v(vLin)}
    v_and_b32 {v(t0)}, 3, {v(vL)}
    v_lshlrev_b32 {v(t0)}, 8, {v(t0)}
    v_lshrrev_b32 {v(t1)}, 2, {v(vL)}
    v_add_u32 {v(vA0)}, {v(t0)}, {v(t1)}
    v_and_b32 {v(t0)}, 1, {v(vL)}
    v_lshlrev_b32 {v(t0)}, 8, {v(t0)}
    v_and_b32 {v(t1)}, 2, {v(vL)}
    v_lshl_add_u32 {v(t0)}, {v(t1)}, 3, {v(t0)}
    v_cmp_gt_u32 {s(sm,2)}, 4, {v(vL)}
    v_cndmask_b32 {v(vA0)}, {v(vA0)}, {v(t0)}, {s(sm,2)}
    ''')
    pos(vRep, vA0, t0)
    A(f'v_sub_u32 {v(t1)}, {1024-224}, {v(vA0)}')
    pos(vMir, t1, t0)
    A(f'''
    v_sub_u32 {v(t1)}, 1024, {v(vA0)}
    v_and_b32 {v(t1)}, 1023, {v(t1)}
    ''')
    pos(vC0, t1, t0)
    A(f'''
    v_cmp_eq_u32 {s(sm,2)}, 0, {v(vL)}
    v_mov_b32 {v(t0)}, {2*512+64}
    v_cndmask_b32 {v(t0)}, 0, {v(t0)}, {s(sm,2)}
    v_add_u32 {v(vA0)}, {v(vRep)}, {v(t0)}
    v_add_u32 {v(vD0)}, {v(vC0)}, {v(t0)}
    ''')

def slot_addr(k, c, vRep, vMir, vA0, vC0, vD0):
    row = ROWB if k in (1, 3) else 0
    if c == 0:
        return [(vA0, 0), (vRep, ROWB), (vC0, 0), (vD0, ROWB)][k]
    if k < 2: return (vRep, row + 64 * c)
    return (vMir, row + 64 * (7 - c))

def red64x2(a, b, u):
    A(f'''
    v_permlane32_swap_b32 {v(a)}, {v(b)}
    v_add_f32 {v(a)}, {v(a)}, {v(b)}
    v_add_f32_dpp {v(a)}, {v(a)}, {v(a)} row_ror:8 row_mask:0xf bank_mask:0xf
    v_add_f32_dpp {v(a)}, {v(a)}, {v(a)} row_ror:4 row_mask:0xf bank_mask:0xf
    v_add_f32_dpp {v(a)}, {v(a)}, {v(a)} row_ror:2 row_mask:0xf bank_mask:0xf
    v_add_f32_dpp {v(a)}, {v(a)}, {v(a)} row_ror:1 row_mask:0xf bank_mask:0xf
    v_mov_b32 {v(u)}, {v(a)}
    v_permlane16_swap_b32 {v(a)}, {v(u)}
    v_add_f32 {v(a)}, {v(a)}, {v(u)}
    ''')

def kernel_head(name):
    A.raw(f'.globl {name}\n.p2align 8\n.type {name},@function\n{name}:')
    A.raw('.KERNEL')

def gen_pre():
    kernel_head(PRE)
    V = Regs('v', 1, 128);
    sX, sW = 4, 8
    sK, sL, sN, sWv, sTau, sR, sM, t0, t1, sBase, sH, sSw = range(12, 24)
    sm = 24
    sA = [26, 27, 28, 29]
    vL = V.alloc(); vL16 = V.alloc(); vLin = V.alloc(); vRep = V.alloc(); vMir = V.alloc()
    vA0 = V.alloc(); vC0 = V.alloc(); vD0 = V.alloc(); vt0 = V.alloc(); vt1 = V.alloc(); vSt = V.alloc()
    vRow = V.alloc(16, 4); vOne = V.alloc(4, 4); vD = V.alloc(16, 4); vD2 = V.alloc(16, 4); vF = V.alloc(32, 4)
    vs = V.alloc(8, 2)
    A(f'''
    s_cmp_ge_u32 s2, 256
    s_cbranch_scc1 PRE_END
    s_load_dwordx2 {s(sX,2)}, s[0:1], 0
    s_load_dwordx2 {s(sW,2)}, s[0:1], 96
    v_lshrrev_b32 {v(vt0)}, 6, v0
    v_and_b32 {v(vL)}, 63, v0
    v_readfirstlane_b32 {s(sWv)}, {v(vt0)}
    s_mov_b32 {s(sX+2)}, 0x400000
    s_mov_b32 {s(sX+3)}, 0x00020000
    s_mov_b32 {s(sW+2)}, {WS_SIZE}
    s_mov_b32 {s(sW+3)}, 0x00020000
    v_lshlrev_b32 {v(vL16)}, 4, {v(vL)}
    ''')
    wg_indices(sK, sL, sN, t0)
    A(f'''
    s_lshl_b32 {s(sTau)}, {s(sL)}, 2
    s_add_u32 {s(sTau)}, {s(sTau)}, {s(sWv)}
    ''')
    rows_scalar(sK, sTau, sR, sM, t0, t1)
    A(f'''
    s_waitcnt lgkmcnt(0)
    buffer_load_dwordx4 {v(vRow,4)}, {v(vL16)}, {s(sX,4)}, {s(sR)} offen
    buffer_load_dwordx4 {v(vRow+4,4)}, {v(vL16)}, {s(sX,4)}, {s(sR)} offen offset:1024
    buffer_load_dwordx4 {v(vRow+8,4)}, {v(vL16)}, {s(sX,4)}, {s(sM)} offen
    buffer_load_dwordx4 {v(vRow+12,4)}, {v(vL16)}, {s(sX,4)}, {s(sM)} offen offset:1024
    v_mov_b32 {v(vOne)}, -1
    v_mov_b32 {v(vOne+1)}, -1
    v_mov_b32 {v(vOne+2)}, -1
    v_mov_b32 {v(vOne+3)}, -1
    s_lshl_b32 {s(t0)}, {s(sN)}, 13
    s_lshl_b32 {s(t1)}, {s(sWv)}, 11
    s_add_u32 {s(t0)}, {s(t0)}, {s(t1)}
    s_add_u32 {s(t0)}, {s(t0)}, {XB}
    buffer_store_dwordx4 {v(vOne,4)}, {v(vL16)}, {s(sW,4)}, {s(t0)} offen
    buffer_store_dwordx4 {v(vOne,4)}, {v(vL16)}, {s(sW,4)}, {s(t0)} offen offset:1024
    s_lshl_b32 {s(t0)}, {s(sN)}, 10
    s_min_u32 {s(t1)}, {s(sWv)}, 2
    s_mul_i32 {s(t1)}, {s(t1)}, {SSTR}
    s_add_u32 {s(t0)}, {s(t0)}, {s(t1)}
    s_add_u32 {s(t0)}, {s(t0)}, {SB}
    buffer_store_dwordx4 {v(vOne,4)}, {v(vL16)}, {s(sW,4)}, {s(t0)} offen
    s_mul_i32 {s(sBase)}, {s(sWv)}, {2*ROWB}
    ''')
    relayout_addrs(vL, sBase, vLin, vRep, vMir, vA0, vC0, vD0, vt0, vt1, sm)
    A(f'''
    v_lshrrev_b32 {v(vt0)}, 2, {v(vL)}
    v_lshlrev_b32 {v(vt0)}, 14, {v(vt0)}
    v_and_b32 {v(vt1)}, 3, {v(vL)}
    v_lshl_add_u32 {v(vSt)}, {v(vt1)}, 4, {v(vt0)}
    s_lshl_b32 {s(sH)}, {s(sK)}, 18
    s_lshl_b32 {s(t0)}, {s(sTau)}, 6
    s_add_u32 {s(sH)}, {s(sH)}, {s(t0)}
    s_add_u32 {s(sA[0])}, {s(sH)}, {H0B}
    s_add_u32 {s(sA[1])}, {s(sH)}, {H0B+4096}
    s_cmp_eq_u32 {s(sR)}, 0
    s_cselect_b32 {s(t0)}, 4096, 0
    s_add_u32 {s(sA[2])}, {s(sH)}, {H0B+2*4096}
    s_add_u32 {s(sA[3])}, {s(sH)}, {H0B+3*4096}
    s_add_u32 {s(sA[2])}, {s(sA[2])}, {s(t0)}
    s_sub_u32 {s(sA[3])}, {s(sA[3])}, {s(t0)}
    s_waitcnt vmcnt(3)
    ds_write_b128 {v(vLin)}, {v(vRow,4)}
    ds_write_b128 {v(vLin)}, {v(vRow+4,4)} offset:1088
    ds_write_b128 {v(vLin)}, {v(vRow+8,4)} offset:{ROWB}
    ds_write_b128 {v(vLin)}, {v(vRow+12,4)} offset:{ROWB+1088}
    ''')
    for r in range(16):
        A(f'''
        v_lshlrev_b32 {v(vF+2*r)}, 16, {v(vRow+r)}
        v_and_b32 {v(vF+2*r+1)}, 0xffff0000, {v(vRow+r)}
        ''')
    A('s_waitcnt lgkmcnt(0)')
    for k in range(4):
        for c in range(8):
            ad, off = slot_addr(k, c, vRep, vMir, vA0, vC0, vD0)
            A(f'ds_read_u16 {v((vD2 if c & 1 else vD)+4*k+c//2)}, {v(ad)} offset:{off}')
    a, b, u, m = vs, vs + 2, vs + 4, vs + 6
    for (acc, base) in ((a, vF), (b, vF + 16)):
        A(f'v_pk_add_f32 {v(acc,2)}, {v(base,2)}, {v(base+2,2)}')
    for p in range(2, 8):
        for (acc, base) in ((a, vF), (b, vF + 16)):
            A(f'v_pk_add_f32 {v(acc,2)}, {v(acc,2)}, {v(base+2*p,2)}')
    A(f'''
    v_add_f32 {v(a)}, {v(a)}, {v(a+1)}
    v_add_f32 {v(b)}, {v(b)}, {v(b+1)}
    ''')
    red64x2(a, b, u)
    A(f'''
    v_mul_f32 {v(m)}, {f32(1/1024)}, {v(a)}
    v_mov_b32 {v(u)}, {v(m)}
    v_mov_b32 {v(u+1)}, {v(m)}
    v_permlane32_swap_b32 {v(u)}, {v(u+1)}
    ''')
    for p in range(8):
        A(f'v_pk_add_f32 {v(vF+2*p,2)}, {v(vF+2*p,2)}, {v(u,2)} op_sel_hi:[1,0] neg_lo:[0,1] neg_hi:[0,1]')
        A(f'v_pk_add_f32 {v(vF+16+2*p,2)}, {v(vF+16+2*p,2)}, {v(u,2)} op_sel:[0,1] op_sel_hi:[1,1] neg_lo:[0,1] neg_hi:[0,1]')
    for (acc, base) in ((a, vF), (b, vF + 16)):
        A(f'v_pk_mul_f32 {v(acc,2)}, {v(base,2)}, {v(base,2)}')
    for p in range(1, 8):
        for (acc, base) in ((a, vF), (b, vF + 16)):
            A(f'v_pk_fma_f32 {v(acc,2)}, {v(base+2*p,2)}, {v(base+2*p,2)}, {v(acc,2)}')
    A(f'''
    v_add_f32 {v(a)}, {v(a)}, {v(a+1)}
    v_add_f32 {v(b)}, {v(b)}, {v(b+1)}
    ''')
    red64x2(a, b, u)
    A(f'''
    v_mov_b32 {v(u)}, {f32(1e-5)}
    v_fmac_f32 {v(u)}, {f32(1/1024)}, {v(a)}
    v_rsq_f32 {v(a)}, {v(u)}
    v_lshrrev_b32 {v(vt0)}, 5, {v(vL)}
    v_lshlrev_b32 {v(vt0)}, 3, {v(vt0)}
    v_mul_f32 {v(a+1)}, {v(m)}, {v(a)}
    s_lshl_b32 {s(t0)}, {s(sK)}, 10
    s_lshl_b32 {s(t1)}, {s(sTau)}, 4
    s_add_u32 {s(t0)}, {s(t0)}, {s(t1)}
    s_add_u32 {s(t0)}, {s(t0)}, {S0B}
    s_waitcnt lgkmcnt(0)
    ''')
    for k in range(4):
        for r in range(4):
            A(f'v_lshl_or_b32 {v(vD+4*k+r)}, {v(vD2+4*k+r)}, 16, {v(vD+4*k+r)}')
        A(f'buffer_store_dwordx4 {v(vD+4*k,4)}, {v(vSt)}, {s(sW,4)}, {s(sA[k])} offen')
    A(f'''
    s_mov_b32 exec_lo, 1
    s_mov_b32 exec_hi, 1
    buffer_store_dwordx2 {v(a,2)}, {v(vt0)}, {s(sW,4)}, {s(t0)} offen
    PRE_END:
    s_endpgm
    ''')
    return V.hi

def gen_main():
    kernel_head(MAIN)
    V = Regs('v', 1, 256)
    sW, sO, sD = 4, 8, 12
    (sK, sL, sN, sWv, sLay, sXb, sXb2, sSb, sCnt, sErr, t0, t1, t2, t3, sSpec, sEA, sEB, sEC, sEnB, sTau, sR, sM,
     sBase, sFo2, sFo3) = range(16, 41)
    sRho = 42
    sm = 44; sm2 = 46; sG0 = 48
    sTs = 50
    vL = V.alloc(); vI = V.alloc(); vG = V.alloc()
    vXin = V.alloc(); vXout = V.alloc(); vSout = V.alloc(); vSin = V.alloc(); vFout = V.alloc(); vFin = V.alloc()
    vWa1 = V.alloc(); vWa2 = V.alloc(); vWr = V.alloc(); vQw = V.alloc(); vQr = V.alloc()
    vDump = V.alloc()
    vOne = V.alloc(4, 4)
    X = [V.alloc(8, 4) for _ in range(4)]
    Ga = V.alloc(8, 4); Ga2 = V.alloc(8, 4); Gb = V.alloc(8, 4); Gb2 = V.alloc(8, 4)
    GR = [V.alloc(4, 4) for _ in range(3)]
    Ec = V.alloc(16, 4); Es = V.alloc(16, 4); Hc = V.alloc(8, 4); Hs = V.alloc(8, 4)
    M2 = V.alloc(2, 2); M3 = V.alloc(2, 2); M4 = V.alloc(2, 2)
    St = V.alloc(4, 4)
    Ps = V.alloc(2, 2); Pc = V.alloc(2, 2)
    T = V.alloc(80, 4)

    def poll_tail(lab, code, vt):
        done = A.newlabel('DONE')
        A(f'''
        v_cmp_eq_u32 vcc, -1, {v(vt)}
        s_sub_u32 {s(sCnt)}, {s(sCnt)}, 1
        s_cbranch_vccz {done}
        s_cbranch_scc0 {lab}
        s_or_b32 {s(sErr)}, {s(sErr)}, {code}
        {done}:
        ''')
    def maxall(regs, vt, vt2):
        regs = list(regs)
        accs = [vt, vt2]; first = [True, True]; k = 0
        while regs:
            a = accs[k]
            if first[k]:
                if len(regs) >= 3: A(f'v_max3_u32 {v(a)}, {v(regs[0])}, {v(regs[1])}, {v(regs[2])}'); regs = regs[3:]
                else: raise Exception
                first[k] = False
            elif len(regs) >= 2: A(f'v_max3_u32 {v(a)}, {v(a)}, {v(regs[0])}, {v(regs[1])}'); regs = regs[2:]
            else: A(f'v_max_u32 {v(a)}, {v(a)}, {v(regs[0])}'); regs = regs[1:]
            k ^= 1
        A(f'v_max_u32 {v(vt)}, {v(vt)}, {v(vt2)}')
    sDbg = 52
    def dump(slot, reg, n, lay=0):
        if not OPT['debug']: return
        A(f's_mul_i32 {s(sDbg)}, {s(sLay)}, {lay * 0x400000}')
        A(f's_add_u32 {s(sDbg)}, {s(sDbg)}, {DUMPB + slot * 0x400000}')
        for r in range(0, n, 4):
            A(f'buffer_store_dwordx4 {v(reg+r,4)}, {v(vDump)}, {s(sW,4)}, {s(sDbg)} offen offset:{4*r}')
        A('s_waitcnt vmcnt(0)')
    def stamp(idx):
        if not OPT['stamps']: return
        A(f'''
        s_memtime {s(sTs,2)}
        s_waitcnt lgkmcnt(0)
        v_writelane_b32 {v(vStamp)}, {s(sTs)}, {idx}
        ''')
    vStamp = V.alloc()

    A(f'''
    s_cmp_ge_u32 s2, 256
    s_cbranch_scc1 MAIN_END
    s_load_dwordx2 {s(sW,2)}, s[0:1], 96
    s_load_dwordx2 {s(sO,2)}, s[0:1], 80
    s_load_dwordx2 {s(sD,2)}, s[0:1], 88
    v_lshrrev_b32 {v(T)}, 6, v0
    v_and_b32 {v(vL)}, 63, v0
    v_readfirstlane_b32 {s(sWv)}, {v(T)}
    s_mov_b32 {s(sW+2)}, {WS_SIZE}
    s_mov_b32 {s(sW+3)}, 0x00020000
    s_mov_b32 {s(sO+2)}, 0x400000
    s_mov_b32 {s(sO+3)}, 0x00020000
    s_mov_b32 {s(sD+2)}, 256
    s_mov_b32 {s(sD+3)}, 0x00020000
    v_and_b32 {v(vI)}, 15, v0
    v_lshrrev_b32 {v(vG)}, 4, {v(vL)}
    s_mov_b32 {s(sErr)}, 0
    s_mov_b32 {s(sLay)}, 0
    s_mov_b32 {s(sXb)}, {XB}
    s_mov_b32 {s(sXb2)}, {XB+131072}
    s_mov_b32 {s(sSb)}, {SB}
    ''')
    wg_indices(sK, sL, sN, t0)
    tau = T + 1; a0 = T + 2; a1 = T + 3
    RAW = T + 16
    A(f'''
    ; tau = 16 w + i
    s_lshl_b32 {s(t0)}, {s(sWv)}, 4
    v_add_u32 {v(tau)}, {s(t0)}, {v(vI)}
    v_lshlrev_b32 {v(a0)}, 6, {v(tau)}
    v_lshl_add_u32 {v(a0)}, {v(vG)}, 4, {v(a0)}
    v_lshlrev_b32 {v(a1)}, 4, {v(tau)}
    s_lshl_b32 {s(t0)}, {s(sN)}, 14
    s_add_u32 {s(t0)}, {s(t0)}, {H0B}
    s_add_u32 {s(t1)}, {s(t0)}, 4096
    s_add_u32 {s(t2)}, {s(t0)}, 8192
    s_add_u32 {s(t3)}, {s(t0)}, 12288
    s_lshl_b32 {s(sCnt)}, {s(sK)}, 10
    s_add_u32 {s(sCnt)}, {s(sCnt)}, {S0B}
    s_waitcnt lgkmcnt(0)
    buffer_load_dwordx4 {v(RAW,4)}, {v(a0)}, {s(sW,4)}, {s(t0)} offen
    buffer_load_dwordx4 {v(RAW+4,4)}, {v(a0)}, {s(sW,4)}, {s(t1)} offen
    buffer_load_dwordx4 {v(RAW+8,4)}, {v(a0)}, {s(sW,4)}, {s(t2)} offen
    buffer_load_dwordx4 {v(RAW+12,4)}, {v(a0)}, {s(sW,4)}, {s(t3)} offen
    buffer_load_dwordx4 {v(St,4)}, {v(a1)}, {s(sW,4)}, {s(sCnt)} offen
    v_mov_b32 {v(vOne)}, -1
    v_mov_b32 {v(vOne+1)}, -1
    v_mov_b32 {v(vOne+2)}, -1
    v_mov_b32 {v(vOne+3)}, -1
    ; Xin = n*8192 + w*2048 + l*16
    s_lshl_b32 {s(t0)}, {s(sN)}, 13
    s_lshl_b32 {s(t1)}, {s(sWv)}, 11
    s_add_u32 {s(t0)}, {s(t0)}, {s(t1)}
    v_lshlrev_b32 {v(vQw)}, 4, {v(vL)}
    v_add_u32 {v(vXin)}, {s(t0)}, {v(vQw)}
    s_mov_b32 {s(t2)}, {XB+XSTR}
    buffer_store_dwordx4 {v(vOne,4)}, {v(vXin)}, {s(sW,4)}, {s(t2)} offen sc1
    buffer_store_dwordx4 {v(vOne,4)}, {v(vXin)}, {s(sW,4)}, {s(t2)} offen offset:1024 sc1
    s_lshl_b32 {s(sTau)}, {s(sL)}, 2
    s_add_u32 {s(sTau)}, {s(sTau)}, {s(sWv)}
    s_lshl_b32 {s(t0)}, {s(sK)}, 18
    s_lshl_b32 {s(t2)}, {s(sTau)}, 12
    s_add_u32 {s(t2)}, {s(t2)}, {s(t0)}
    v_add_u32 {v(vFin)}, {s(t2)}, {v(vQw)}
    s_add_u32 {s(t1)}, {s(t1)}, {LDS_Q}
    v_add_u32 {v(vQw)}, {s(t1)}, {v(vQw)}
    s_lshl_b32 {s(t2)}, {s(sL)}, 6
    s_add_u32 {s(t0)}, {s(t0)}, {s(t2)}
    v_lshlrev_b32 {v(vFout)}, 12, {v(tau)}
    v_lshl_add_u32 {v(vFout)}, {v(vG)}, 4, {v(vFout)}
    v_add_u32 {v(vFout)}, {s(t0)}, {v(vFout)}
    s_lshl_b32 {s(t0)}, {s(sN)}, 10
    v_lshl_add_u32 {v(vSout)}, {v(vG)}, 2, {v(a1)}
    v_add_u32 {v(vSout)}, {s(t0)}, {v(vSout)}
    s_lshl_b32 {s(t0)}, {s(sK)}, 14
    v_lshl_add_u32 {v(vSin)}, {v(vG)}, 12, {v(a1)}
    v_add_u32 {v(vSin)}, {s(t0)}, {v(vSin)}
    s_lshr_b32 {s(t0)}, {s(sWv)}, 1
    s_lshl_b32 {s(t0)}, {s(t0)}, 20
    s_and_b32 {s(t1)}, {s(sWv)}, 1
    s_lshl_b32 {s(t2)}, {s(t1)}, 16
    s_add_u32 {s(t0)}, {s(t0)}, {s(t2)}
    s_lshl_b32 {s(t2)}, {s(sN)}, 5
    s_add_u32 {s(t0)}, {s(t0)}, {s(t2)}
    v_lshrrev_b32 {v(a0)}, 1, {v(vI)}
    v_lshlrev_b32 {v(a0)}, 13, {v(a0)}
    v_lshl_add_u32 {v(a0)}, {v(vG)}, 18, {v(a0)}
    v_and_b32 {v(a1)}, 1, {v(vI)}
    v_lshl_add_u32 {v(a0)}, {v(a1)}, 4, {v(a0)}
    v_add_u32 {v(vXout)}, {s(t0)}, {v(a0)}
    v_lshlrev_b32 {v(a0)}, 4, {v(vI)}
    v_lshl_add_u32 {v(vWr)}, {v(vG)}, 8, {v(a0)}
    v_lshl_add_u32 {v(vQr)}, {v(vG)}, 9, {v(a0)}
    s_lshl_b32 {s(t2)}, {s(t1)}, 10
    v_add_u32 {v(vWr)}, {s(t2)}, {v(vWr)}
    v_add_u32 {v(vQr)}, {LDS_Q}, {v(vQr)}
    v_lshrrev_b32 {v(a1)}, 1, {v(vG)}
    v_lshl_add_u32 {v(a0)}, {v(a1)}, 8, {v(a0)}
    v_and_b32 {v(a1)}, 1, {v(vG)}
    v_lshl_add_u32 {v(a0)}, {v(a1)}, 3, {v(a0)}
    s_lshr_b32 {s(t0)}, {s(sWv)}, 1
    s_lshl_b32 {s(t0)}, {s(t0)}, 11
    s_lshl_b32 {s(t2)}, {s(t1)}, 9
    s_add_u32 {s(t0)}, {s(t0)}, {s(t2)}
    s_lshl_b32 {s(t2)}, {s(sWv)}, 12
    s_lshl_b32 {s(t3)}, {s(sK)}, 2
    s_or_b32 {s(sSpec)}, {s(t3)}, {s(sWv)}
    s_cmp_lt_u32 {s(sSpec)}, 2
    s_cselect_b32 {s(t0)}, {s(t2)}, {s(t0)}
    s_cselect_b32 {s(t2)}, 1, 8
    s_lshl_b32 {s(t2)}, {s(t2)}, 9
    s_add_u32 {s(t2)}, {s(t2)}, {s(t0)}
    v_add_u32 {v(vWa1)}, {s(t0)}, {v(a0)}
    v_add_u32 {v(vWa2)}, {s(t2)}, {v(a0)}
    s_cmp_eq_u32 {s(sSpec)}, 0
    s_cselect_b32 {s(sRho)}, 0x00010001, 0
    s_mov_b32 {s(sRho+1)}, {s(sRho)}
    v_mov_b32 {v(M2)}, 1.0
    v_mov_b32 {v(M2+1)}, 1.0
    v_mov_b32 {v(M3)}, 1.0
    v_mov_b32 {v(M3+1)}, 1.0
    v_mov_b32 {v(M4)}, 1.0
    v_mov_b32 {v(M4+1)}, 1.0
    s_cmp_eq_u32 {s(sL)}, 0
    s_cselect_b32 exec_lo, 0xffff, 0
    s_mov_b32 exec_hi, 0
    v_mov_b32 {v(M2)}, 0
    v_mov_b32 {v(M3)}, 0
    s_and_b32 exec_lo, exec_lo, {s(sRho)}
    v_mov_b32 {v(M3)}, 1.0
    v_mov_b32 {v(M4)}, 0
    s_mov_b64 exec, -1
    v_mov_b32 {v(vStamp)}, 0
    ''')
    if OPT['debug']:
        A(f'''
        s_lshl_b32 {s(t0)}, {s(sN)}, 8
        v_add_u32 {v(vDump)}, {s(t0)}, v0
        v_lshlrev_b32 {v(vDump)}, 6, {v(vDump)}
        ''')

    fr = T + 4; ph = T + 5; arg = T + 6; c0 = T + 8; stp = T + 7; gf = T + 10; amp = T + 11; voff = T + 12; Z = T + 13; arg2 = T + 14
    def f_ph(x_sgpr_or_imm):
        A(f'''
        v_lshrrev_b32 {v(a0)}, 1, {v(vI)}
        v_cvt_f32_u32 {v(fr)}, {v(a0)}
        v_and_b32 {v(a1)}, 1, {v(vI)}
        v_cvt_f32_u32 {v(ph)}, {v(a1)}
        v_mul_f32 {v(fr)}, {f32(1/32)}, {v(fr)}
        v_mul_f32 {v(ph)}, {f32(0.25)}, {v(ph)}
        v_add_f32 {v(fr)}, {x_sgpr_or_imm}, {v(fr)}
        v_cmp_eq_f32 vcc, 0, {v(fr)}
        v_cndmask_b32 {v(a0)}, 0, {v(ph)}, vcc
        v_fmac_f32 {v(fr)}, 2.0, {v(a0)}
        v_sub_f32 {v(ph)}, {v(ph)}, {v(a0)}
        ''')
    def cos_row(dst, step, scaled=False, first=None):
        for c in range(8):
            src = first if (c == 0 and first is not None) else arg
            A(f'v_cos_f32 {v(c0 + (c & 1))}, {v(src)}')
            if c < 7: A(f'v_add_f32 {v(arg)}, {v(arg)}, {v(step)}')
            if scaled: A(f'v_fma_f32 {v(c0 + (c & 1))}, {v(c0 + (c & 1))}, {v(amp)}, {v(voff)}')
            if c & 1: A(f'v_cvt_pk_f16_f32 {v(dst + c // 2)}, {v(c0)}, {v(c0+1)}')
    A(f'''
    v_cvt_f32_u32 {v(gf)}, {v(vG)}
    v_mul_f32 {v(gf)}, {f32(8.0)}, {v(gf)}
    s_cmp_eq_u32 {s(sL)}, 0
    s_cbranch_scc1 GCOL0
    ''')
    for cb in range(2):
        f_ph('0' if cb == 0 else f32(0.25))
        A(f'v_fma_f32 {v(arg)}, {v(fr)}, {v(gf)}, -{v(ph)}')
        cos_row(Ga + 4 * cb, fr)
    for r in range(0, 8, 2): A(f'v_mov_b64 {v(Ga2+r,2)}, {v(Ga+r,2)}')
    A('GCOL_DONE:')
    A(f'''
    s_lshr_b32 {s(t0)}, {s(sWv)}, 1
    s_mul_i32 {s(t0)}, {s(t0)}, {f32(0.25)}
    ''')
    f_ph(s(t0))
    A(f'v_fma_f32 {v(arg)}, {v(fr)}, {v(gf)}, -{v(ph)}')
    cos_row(GR[1], fr)
    A(f'''
    s_cmp_eq_u32 {s(sK)}, 0
    s_cbranch_scc1 GROW0
    ''')
    for r in range(0, 4, 2):
        A(f'v_mov_b64 {v(GR[0]+r,2)}, {v(GR[1]+r,2)}')
        A(f'v_mov_b64 {v(GR[2]+r,2)}, {v(GR[1]+r,2)}')
    A('GROW_DONE:')
    A('s_waitcnt vmcnt(0)')
    for k in range(4):
        for r in range(4):
            A(f'''
            v_lshlrev_b32 {v(X[k]+2*r)}, 16, {v(RAW+4*k+r)}
            v_and_b32 {v(X[k]+2*r+1)}, 0xffff0000, {v(RAW+4*k+r)}
            ''')
    dump(0, X[0], 16); dump(1, X[2], 16)

    rR, cR, rM, cM = St, St + 1, St + 2, St + 3
    pA = T; pB = T + 8; PA = T + 16; PB = T + 20; PC = T + 24; PD = T + 28
    W = T + 32
    Wh = T + 48
    Wb = T + 0
    Dacc = T + 16
    Fr = T + 56
    A('LOOP:')
    stamp_base = 0
    A(f'''
    v_cndmask_b32 {v(Ps)}, {v(rM)}, {v(rR)}, {s(sRho,2)}
    v_cndmask_b32 {v(Ps+1)}, {v(rR)}, {v(rM)}, {s(sRho,2)}
    v_cndmask_b32 {v(Pc)}, {v(cM)}, {v(cR)}, {s(sRho,2)}
    v_cndmask_b32 {v(Pc+1)}, {v(cR)}, {v(cM)}, {s(sRho,2)}
    v_add_f32 {v(Pc)}, {v(Pc)}, {v(cR)}
    v_add_f32 {v(Pc+1)}, {v(Pc+1)}, {v(cM)}
    ''')
    for p in range(4):
        A(f'v_pk_fma_f32 {v(pA+2*p,2)}, {v(X[0]+2*p,2)}, {v(St,2)}, {v(Pc,2)} op_sel_hi:[1,0,0] neg_lo:[0,0,1] neg_hi:[0,0,1]')
        A(f'v_pk_fma_f32 {v(pB+2*p,2)}, {v(X[1]+2*p,2)}, {v(St+2,2)}, {v(Pc,2)} op_sel:[0,0,1] op_sel_hi:[1,0,1] neg_lo:[0,0,1] neg_hi:[0,0,1]')
    for p in range(4):
        A(f'v_pk_fma_f32 {v(pA+2*p,2)}, {v(X[3]+2*p,2)}, {v(Ps,2)}, {v(pA+2*p,2)} op_sel_hi:[1,0,1]')
        A(f'v_pk_fma_f32 {v(pB+2*p,2)}, {v(X[2]+2*p,2)}, {v(Ps,2)}, {v(pB+2*p,2)} op_sel:[0,1,0] op_sel_hi:[1,1,1]')
    for p in range(4):
        A(f'v_cvt_pk_f16_f32 {v(PA+p)}, {v(pA+2*p)}, {v(pA+2*p+1)}')
    for p in range(4):
        A(f'v_cvt_pk_f16_f32 {v(PB+p)}, {v(pB+2*p)}, {v(pB+2*p+1)}')
    A(f'''
    s_cmp_eq_u32 {s(sL)}, 0
    s_cbranch_scc1 COL0
    ''')
    MF = 'v_mfma_f32_16x16x32_f16'
    for cb in range(2): A(f'{MF} {v(W+4*cb,4)}, {v(PA,4)}, {v(Ga+4*cb,4)}, 0')
    for cb in range(2): A(f'{MF} {v(W+8+4*cb,4)}, {v(PB,4)}, {v(Ga2+4*cb,4)}, 0')
    A('COL_DONE:')
    dump(16, St, 8, 1); dump(20, PA, 16, 1); dump(24, W, 16, 1)
    for j in range(4):
        A(f'''
        v_cvt_pk_f16_f32 {v(Wh+2*j)}, {v(W+4*j)}, {v(W+4*j+1)}
        v_cvt_pk_f16_f32 {v(Wh+2*j+1)}, {v(W+4*j+2)}, {v(W+4*j+3)}
        ds_write_b64 {v(vWa1 if j < 2 else vWa2)}, {v(Wh+2*j,2)} offset:{LDS_W + 1024*(j&1)}
        ''')
    A('''
    s_waitcnt lgkmcnt(0)
    s_barrier
    ''')
    for u in range(4): A(f'ds_read_b128 {v(Wb+4*u,4)}, {v(vWr)} offset:{LDS_W + 2048*u}')
    for u in range(4):
        A(f's_waitcnt lgkmcnt({3-u})')
        A(f'{MF} {v(Dacc+4*u,4)}, {v(GR[[0,1,2,1][u]],4)}, {v(Wb+4*u,4)}, 0')
    dump(28, Dacc, 16, 1)
    for j in range(2):
        for u in range(4):
            A(f'v_cvt_pk_f16_f32 {v(Fr+4*j+u)}, {v(Dacc+4*u+2*j)}, {v(Dacc+4*u+2*j+1)}')
        A(f'buffer_store_dwordx4 {v(Fr+4*j,4)}, {v(vXout)}, {s(sW,4)}, {s(sXb if j == 0 else sXb2)} offen sc1')
    A(f'''
    s_cmp_eq_u32 {s(sLay)}, 0
    s_cbranch_scc1 EHGEN
    EH_DONE:
    ''')
    Qp = T; Q = T + 8; Vc = T + 40; Vs = T + 48; BVc = T + 56; BVs = T + 60; BVo = T + 64; CC = T + 0; SS = T + 8
    vt = T + 68; vt2 = T + 69
    A(f'''
    s_mov_b32 {s(sCnt)}, {BOUND}
    XPOLL:
    buffer_load_dwordx4 {v(Qp,4)}, {v(vXin)}, {s(sW,4)}, {s(sXb)} offen sc1
    buffer_load_dwordx4 {v(Qp+4,4)}, {v(vXin)}, {s(sW,4)}, {s(sXb)} offen offset:1024 sc1
    s_waitcnt vmcnt(0)
    ''')
    maxall(range(Qp, Qp + 8), vt, vt2)
    poll_tail('XPOLL', 1, vt)
    A(f'''
    ds_write_b128 {v(vQw)}, {v(Qp,4)}
    ds_write_b128 {v(vQw)}, {v(Qp+4,4)} offset:1024
    s_cmp_ge_u32 {s(sLay)}, 2
    s_cbranch_scc1 CLRF
    s_add_u32 {s(t0)}, {s(sXb)}, {2*XSTR}
    buffer_store_dwordx4 {v(vOne,4)}, {v(vXin)}, {s(sW,4)}, {s(t0)} offen sc1
    buffer_store_dwordx4 {v(vOne,4)}, {v(vXin)}, {s(sW,4)}, {s(t0)} offen offset:1024 sc1
    CLR_DONE:
    s_waitcnt lgkmcnt(0)
    s_barrier
    ''')
    for q in range(4):
        for blk in range(2):
            A(f'ds_read_b128 {v(Q+8*q+4*blk,4)}, {v(vQr)} offset:{2048*q+256*blk}')
    for q in range(4):
        for blk in range(2):
            A(f's_waitcnt lgkmcnt({7-2*q-blk})')
            for (acc, E) in ((Vc, Ec), (Vs, Es)):
                cin = '0' if q == 0 else v(acc+4*blk,4)
                A(f'{MF} {v(acc+4*blk,4)}, {v(Q+8*q+4*blk,4)}, {v(E+4*q,4)}, {cin}')
    dump(32, Vc, 16, 1)
    for (acc, B) in ((Vc, BVc), (Vs, BVs)):
        for r in range(4):
            A(f'v_cvt_pk_f16_f32 {v(B+r)}, {v(acc+2*r)}, {v(acc+2*r+1)}')
    A(f'''
    s_cmp_eq_u32 {s(sSpec)}, 0
    s_cbranch_scc1 HSPEC
    ''')
    for mb in range(2): A(f'{MF} {v(CC+4*mb,4)}, {v(Hc+4*mb,4)}, {v(BVc,4)}, 0')
    for mb in range(2): A(f'{MF} {v(SS+4*mb,4)}, {v(Hs+4*mb,4)}, {v(BVs,4)}, 0')
    A('H_DONE:')
    dump(36, CC, 16, 1)
    U1 = T + 16; U2 = T + 24
    for p in range(4):
        A(f'v_pk_add_f32 {v(U1+2*p,2)}, {v(CC+2*p,2)}, {v(SS+2*p,2)} neg_lo:[0,1] neg_hi:[0,1]')
        A(f'v_pk_add_f32 {v(U2+2*p,2)}, {v(CC+2*p,2)}, {v(SS+2*p,2)}')
    for p in range(4):
        for k, U, M in ((0, U1, None), (1, U2, M2), (2, U2, M3), (3, U1, M4)):
            if p == 0 and M is not None:
                A(f'v_pk_fma_f32 {v(X[k],2)}, {v(U,2)}, {v(M,2)}, {v(X[k],2)}')
            else:
                A(f'v_pk_add_f32 {v(X[k]+2*p,2)}, {v(X[k]+2*p,2)}, {v(U+2*p,2)}')
    dump(2, X[0], 16, 2); dump(3, X[2], 16, 2)
    A(f'''
    s_cmp_eq_u32 {s(sLay)}, 3
    s_cbranch_scc1 FINAL
    ''')
    Sa = [T + 2 * k for k in range(4)]; Qa = [T + 8 + 2 * k for k in range(4)]
    for k in range(4):
        A(f'v_pk_add_f32 {v(Sa[k],2)}, {v(X[k],2)}, {v(X[k]+2,2)}')
        A(f'v_pk_mul_f32 {v(Qa[k],2)}, {v(X[k],2)}, {v(X[k],2)}')
    for p in range(1, 4):
        for k in range(4):
            if p > 1: A(f'v_pk_add_f32 {v(Sa[k],2)}, {v(Sa[k],2)}, {v(X[k]+2*p,2)}')
            A(f'v_pk_fma_f32 {v(Qa[k],2)}, {v(X[k]+2*p,2)}, {v(X[k]+2*p,2)}, {v(Qa[k],2)}')
    A(f'''
    s_cmp_lg_u32 {s(sSpec)}, 0
    s_cbranch_scc1 NOSWAP
    s_mov_b64 exec, {s(sRho,2)}
    v_swap_b32 {v(Sa[2])}, {v(Sa[3])}
    v_swap_b32 {v(Sa[2]+1)}, {v(Sa[3]+1)}
    v_swap_b32 {v(Qa[2])}, {v(Qa[3])}
    v_swap_b32 {v(Qa[2]+1)}, {v(Qa[3]+1)}
    s_mov_b64 exec, -1
    NOSWAP:
    v_pk_add_f32 {v(Sa[0],2)}, {v(Sa[0],2)}, {v(Sa[2],2)}
    v_pk_add_f32 {v(Sa[1],2)}, {v(Sa[1],2)}, {v(Sa[3],2)}
    v_pk_add_f32 {v(Qa[0],2)}, {v(Qa[0],2)}, {v(Qa[2],2)}
    v_pk_add_f32 {v(Qa[1],2)}, {v(Qa[1],2)}, {v(Qa[3],2)}
    v_add_f32 {v(Sa[0])}, {v(Sa[0])}, {v(Sa[0]+1)}
    v_add_f32 {v(Sa[1])}, {v(Sa[1])}, {v(Sa[1]+1)}
    v_add_f32 {v(Qa[0])}, {v(Qa[0])}, {v(Qa[0]+1)}
    v_add_f32 {v(Qa[1])}, {v(Qa[1])}, {v(Qa[1]+1)}
    v_permlane32_swap_b32 {v(Sa[0])}, {v(Sa[1])}
    v_permlane32_swap_b32 {v(Qa[0])}, {v(Qa[1])}
    v_add_f32 {v(Sa[0])}, {v(Sa[0])}, {v(Sa[1])}
    v_add_f32 {v(Qa[0])}, {v(Qa[0])}, {v(Qa[1])}
    v_permlane16_swap_b32 {v(Sa[0])}, {v(Qa[0])}
    v_add_f32 {v(Sa[0])}, {v(Sa[0])}, {v(Qa[0])}
    buffer_store_dword {v(Sa[0])}, {v(vSout)}, {s(sW,4)}, {s(sSb)} offen sc1
    s_mov_b32 {s(sCnt)}, {BOUND}
    SPOLL:
    ''')
    G4 = T + 16
    for j in range(4):
        A(f'buffer_load_dwordx4 {v(G4+4*j,4)}, {v(vSin)}, {s(sW,4)}, {s(sSb)} offen offset:{1024*j} sc1')
    A('s_waitcnt vmcnt(0)')
    maxall(range(G4, G4 + 16), vt, vt2)
    poll_tail('SPOLL', 2, vt)
    e, f_, u1, u2 = G4, G4 + 1, G4 + 4, G4 + 5
    A(f'''
    v_pk_add_f32 {v(G4,2)}, {v(G4,2)}, {v(G4+4,2)}
    v_pk_add_f32 {v(G4+2,2)}, {v(G4+2,2)}, {v(G4+6,2)}
    v_pk_add_f32 {v(G4+8,2)}, {v(G4+8,2)}, {v(G4+12,2)}
    v_pk_add_f32 {v(G4+10,2)}, {v(G4+10,2)}, {v(G4+14,2)}
    v_pk_add_f32 {v(G4,2)}, {v(G4,2)}, {v(G4+8,2)}
    v_pk_add_f32 {v(G4+2,2)}, {v(G4+2,2)}, {v(G4+10,2)}
    v_permlane32_swap_b32 {v(G4)}, {v(G4+2)}
    v_permlane32_swap_b32 {v(G4+1)}, {v(G4+3)}
    v_pk_add_f32 {v(G4,2)}, {v(G4,2)}, {v(G4+2,2)}
    v_mov_b64 {v(u1,2)}, {v(G4,2)}
    v_permlane16_swap_b32 {v(e)}, {v(u1)}
    v_permlane16_swap_b32 {v(f_)}, {v(u2)}
    v_pk_add_f32 {v(G4,2)}, {v(G4,2)}, {v(u1,2)}
    v_mul_f32 {v(e)}, {f32(1/1024)}, {v(e)}
    v_mul_f32 {v(f_)}, {f32(1/1024)}, {v(f_)}
    v_fma_f32 {v(f_)}, -{v(e)}, {v(e)}, {v(f_)}
    v_max_f32 {v(f_)}, 0, {v(f_)}
    v_add_f32 {v(f_)}, {f32(1e-5)}, {v(f_)}
    v_rsq_f32 {v(rR)}, {v(f_)}
    v_mul_f32 {v(cR)}, {v(e)}, {v(rR)}
    v_mov_b32 {v(rM)}, {v(rR)}
    v_mov_b32 {v(cM)}, {v(cR)}
    v_permlane32_swap_b32 {v(rR)}, {v(rM)}
    v_permlane32_swap_b32 {v(cR)}, {v(cM)}
    s_add_u32 {s(sLay)}, {s(sLay)}, 1
    s_add_u32 {s(sXb)}, {s(sXb)}, {XSTR}
    s_add_u32 {s(sXb2)}, {s(sXb2)}, {XSTR}
    s_add_u32 {s(sSb)}, {s(sSb)}, {SSTR}
    s_branch LOOP
    ''')

    A('FINAL:')
    Pk = T
    A(f's_mov_b32 {s(t3)}, {FB}')
    for k in range(4):
        for r in range(4):
            A(f'v_cvt_pk_bf16_f32 {v(Pk+4*k+r)}, {v(X[k]+2*r)}, {v(X[k]+2*r+1)}')
        A(f'buffer_store_dwordx4 {v(Pk+4*k,4)}, {v(vFout)}, {s(sW,4)}, {s(t3)} offen offset:{1024*k} sc1')
    vLin, vRep, vMir, vA0, vC0, vD0 = [T + 32 + j for j in range(6)]
    A(f'''
    s_mul_i32 {s(sBase)}, {s(sWv)}, {2*ROWB}
    s_add_u32 {s(sBase)}, {s(sBase)}, {LDS_R}
    ''')
    relayout_addrs(vL, sBase, vLin, vRep, vMir, vA0, vC0, vD0, vt, vt2, sm)
    rows_scalar(sK, sTau, sR, sM, t0, t1)
    Fd = T + 16
    A(f'''
    s_cmp_eq_u32 {s(sR)}, 0
    s_cselect_b32 {s(t0)}, 1024, 0
    s_add_u32 {s(sFo2)}, {s(t0)}, {FB+2048}
    s_sub_u32 {s(sFo3)}, {FB+3072}, {s(t0)}
    v_lshlrev_b32 {v(vXin)}, 4, {v(vL)}
    s_mov_b32 {s(sCnt)}, {BOUND}
    FPOLL:
    buffer_load_dwordx4 {v(Fd,4)}, {v(vFin)}, {s(sW,4)}, {s(t3)} offen sc1
    buffer_load_dwordx4 {v(Fd+4,4)}, {v(vFin)}, {s(sW,4)}, {s(t3)} offen offset:1024 sc1
    buffer_load_dwordx4 {v(Fd+8,4)}, {v(vFin)}, {s(sW,4)}, {s(sFo2)} offen sc1
    buffer_load_dwordx4 {v(Fd+12,4)}, {v(vFin)}, {s(sW,4)}, {s(sFo3)} offen sc1
    s_waitcnt vmcnt(0)
    ''')
    maxall(range(Fd, Fd + 16), vt, vt2)
    poll_tail('FPOLL', 4, vt)
    for k in range(4):
        for c in range(8):
            ad, off = slot_addr(k, c, vRep, vMir, vA0, vC0, vD0)
            A(f'ds_write_b16{"_d16_hi" if c & 1 else ""} {v(ad)}, {v(Fd+4*k+c//2)} offset:{off}')
    A('s_waitcnt lgkmcnt(0)')
    for j, off in enumerate((0, 1088, ROWB, ROWB + 1088)):
        A(f'ds_read_b128 {v(Pk+4*j,4)}, {v(vLin)} offset:{off}')
    for j in range(4):
        A(f's_waitcnt lgkmcnt({3-j})')
        A(f'buffer_store_dwordx4 {v(Pk+4*j,4)}, {v(vXin)}, {s(sO,4)}, {s(sR if j < 2 else sM)} offen offset:{1024*(j&1)}')
    A(f'''
    s_cmp_eq_u32 {s(sErr)}, 0
    s_cbranch_scc1 MAIN_END
    v_mov_b32 {v(vt)}, {s(sErr)}
    v_mov_b32 {v(vt2)}, 0
    s_mov_b64 exec, 1
    buffer_atomic_or {v(vt)}, {v(vt2)}, {s(sD,4)}, 0 offen
    MAIN_END:
    s_endpgm
    ''')

    A('GCOL0:')
    cls = T + 15
    B0 = T + 32
    for cb in range(2):
        A(f'''
        v_lshrrev_b32 {v(a0)}, 1, {v(vI)}
        v_cvt_f32_u32 {v(fr)}, {v(a0)}
        v_mul_f32 {v(fr)}, {f32(1/32)}, {v(fr)}
        v_add_f32 {v(fr)}, {'0' if cb == 0 else f32(0.25)}, {v(fr)}
        v_and_b32 {v(a1)}, 1, {v(vI)}
        v_lshrrev_b32 {v(cls)}, 1, {v(vG)}
        v_cmp_eq_u32 vcc, {v(a1)}, {v(cls)}
        v_mov_b32 {v(a0)}, {f32(math.sqrt(0.5))}
        v_cndmask_b32 {v(amp)}, 0, {v(a0)}, vcc
        v_mov_b32 {v(ph)}, {f32(0.125)}
        v_mov_b32 {v(voff)}, 0
        ''')
        if cb == 0:
            A(f'''
            s_mov_b32 exec_lo, 0x00030003
            s_mov_b32 exec_hi, 0x00030003
            v_mov_b32 {v(fr)}, 0.5
            v_cndmask_b32 {v(amp)}, 0.5, 0, vcc
            v_cvt_f32_u32 {v(ph)}, {v(cls)}
            v_mul_f32 {v(voff)}, {v(ph)}, {v(amp)}
            v_mul_f32 {v(ph)}, {f32(0.25)}, {v(ph)}
            s_mov_b64 exec, -1
            ''')
        A(f'''
        ; d0/32 = 8 (g&1) + 0.5 (g>>1)
        v_and_b32 {v(a0)}, 1, {v(vG)}
        v_lshl_add_u32 {v(a0)}, {v(a0)}, 4, {v(cls)}
        v_cvt_f32_u32 {v(a0)}, {v(a0)}
        v_mul_f32 {v(a0)}, 0.5, {v(a0)}
        v_mul_f32 {v(a0)}, {v(a0)}, {v(fr)}
        v_cmp_eq_u32 {s(sG0,2)}, 0, {v(vG)}
        v_mul_f32 {v(Z)}, {f32(16.0)}, {v(fr)}
        v_cndmask_b32 {v(Z)}, 0, {v(Z)}, {s(sG0,2)}
        v_sub_f32 {v(arg)}, {v(a0)}, {v(ph)}
        v_add_f32 {v(arg2)}, {v(arg)}, {v(Z)}
        v_cos_f32 {v(B0)}, {v(arg)}
        ''')
        cos_row(Ga + 4 * cb, fr, scaled=True, first=arg2)
        A(f'''
        v_fma_f32 {v(B0)}, {v(B0)}, {v(amp)}, {v(voff)}
        v_cvt_pk_f16_f32 {v(B0)}, {v(B0)}, {v(B0)}
        s_mov_b32 {s(t0)}, 0xffff
        v_bfi_b32 {v(Ga2+4*cb)}, {s(t0)}, {v(B0)}, {v(Ga+4*cb)}
        v_mov_b32 {v(Ga2+4*cb+1)}, {v(Ga+4*cb+1)}
        v_mov_b64 {v(Ga2+4*cb+2,2)}, {v(Ga+4*cb+2,2)}
        v_sub_f32 {v(arg)}, 0, {v(a0)}
        v_sub_f32 {v(arg)}, {v(arg)}, {v(ph)}
        v_sub_f32 {v(stp)}, 0, {v(fr)}
        v_add_f32 {v(arg2)}, {v(arg)}, {v(Z)}
        v_cos_f32 {v(B0)}, {v(arg2)}
        ''')
        cos_row(Gb + 4 * cb, stp, scaled=True)
        A(f'''
        v_fma_f32 {v(B0)}, {v(B0)}, {v(amp)}, {v(voff)}
        v_cvt_pk_f16_f32 {v(B0)}, {v(B0)}, {v(B0)}
        v_bfi_b32 {v(Gb2+4*cb)}, {s(t0)}, {v(B0)}, {v(Gb+4*cb)}
        v_mov_b32 {v(Gb2+4*cb+1)}, {v(Gb+4*cb+1)}
        v_mov_b64 {v(Gb2+4*cb+2,2)}, {v(Gb+4*cb+2,2)}
        ''')
    A('s_branch GCOL_DONE')
    A(f'''
    GROW0:
    v_cmp_le_u32 vcc, 2, {v(vG)}
    v_sub_f32 {v(stp)}, 0, {v(fr)}
    v_cndmask_b32 {v(stp)}, {v(fr)}, {v(stp)}, vcc
    v_sub_f32 {v(a0)}, {f32(48.0)}, {v(gf)}
    v_cndmask_b32 {v(a0)}, {v(gf)}, {v(a0)}, vcc
    v_fma_f32 {v(arg)}, {v(fr)}, {v(a0)}, -{v(ph)}
    v_cmp_eq_u32 {s(sG0,2)}, 2, {v(vG)}
    v_mul_f32 {v(Z)}, {f32(16.0)}, {v(fr)}
    v_cndmask_b32 {v(Z)}, 0, {v(Z)}, {s(sG0,2)}
    v_sub_f32 {v(arg2)}, {v(arg)}, {v(Z)}
    ''')
    cos_row(GR[0], stp, first=arg2)
    A(f'''
    v_sub_f32 {v(a0)}, {f32(47.0)}, {v(gf)}
    v_cndmask_b32 {v(a0)}, {v(gf)}, {v(a0)}, vcc
    v_fma_f32 {v(arg)}, {v(fr)}, {v(a0)}, -{v(ph)}
    ''')
    cos_row(GR[2], stp)
    A('s_branch GROW_DONE')
    A('COL0:')
    for r in range(4):
        A(f'v_cndmask_b32 {v(PC+r)}, {v(PB+r)}, {v(PA+r)}, {s(sRho,2)}')
        A(f'v_cndmask_b32 {v(PD+r)}, {v(PA+r)}, {v(PB+r)}, {s(sRho,2)}')
    z = T + 64
    A(f'''
    s_cmp_lg_u32 {s(sSpec)}, 0
    s_cbranch_scc1 COL0B
    s_mov_b64 exec, 1
    v_fma_f32 {v(z)}, {v(X[0])}, {v(rR)}, -{v(cR)}
    v_fma_f32 {v(z+1)}, {v(X[3])}, {v(rR)}, -{v(cR)}
    v_fma_f32 {v(z+2)}, {v(X[1])}, {v(rM)}, -{v(cM)}
    v_fma_f32 {v(z+3)}, {v(X[2])}, {v(rM)}, -{v(cM)}
    v_add_f32 {v(z)}, {v(z)}, {v(z)}
    v_add_f32 {v(z+1)}, {v(z+1)}, {v(z+1)}
    v_add_f32 {v(z+2)}, {v(z+2)}, {v(z+2)}
    v_add_f32 {v(z+3)}, {v(z+3)}, {v(z+3)}
    v_cvt_pk_f16_f32 {v(PA)}, {v(z)}, {v(pA+1)}
    v_cvt_pk_f16_f32 {v(PC)}, {v(z+1)}, {v(pA+1)}
    v_cvt_pk_f16_f32 {v(PB)}, {v(z+2)}, {v(pB+1)}
    v_cvt_pk_f16_f32 {v(PD)}, {v(z+3)}, {v(pB+1)}
    s_mov_b64 exec, -1
    COL0B:
    ''')
    for cb in range(2): A(f'{MF} {v(W+4*cb,4)}, {v(PA,4)}, {v(Ga+4*cb,4)}, 0')
    for cb in range(2): A(f'{MF} {v(W+8+4*cb,4)}, {v(PB,4)}, {v(Ga2+4*cb,4)}, 0')
    for cb in range(2): A(f'{MF} {v(W+4*cb,4)}, {v(PC,4)}, {v(Gb+4*cb,4)}, {v(W+4*cb,4)}')
    for cb in range(2): A(f'{MF} {v(W+8+4*cb,4)}, {v(PD,4)}, {v(Gb2+4*cb,4)}, {v(W+8+4*cb,4)}')
    A('s_branch COL_DONE')
    A(f'''
    CLRF:
    s_cmp_eq_u32 {s(sLay)}, 3
    s_cbranch_scc1 CLR_DONE
    s_mov_b32 {s(t0)}, {FB}
    ''')
    for k in range(4):
        A(f'buffer_store_dwordx4 {v(vOne,4)}, {v(vFin)}, {s(sW,4)}, {s(t0)} offen offset:{1024*k} sc1')
    A('s_branch CLR_DONE')
    A('HSPEC:')
    for r in range(4):
        A(f'v_cndmask_b32 {v(BVo+r)}, 0, {v(BVs+r)}, {s(sRho,2)}')
        A(f'v_cndmask_b32 {v(BVs+r)}, {v(BVs+r)}, 0, {s(sRho,2)}')
    for mb in range(2): A(f'{MF} {v(CC+4*mb,4)}, {v(Hc+4*mb,4)}, {v(BVc,4)}, 0')
    for mb in range(2): A(f'{MF} {v(SS+4*mb,4)}, {v(Hs+4*mb,4)}, {v(BVs,4)}, 0')
    for mb in range(2): A(f'{MF} {v(SS+4*mb,4)}, {v(Hc+4*mb,4)}, {v(BVo,4)}, {v(SS+4*mb,4)}')
    A('s_branch H_DONE')
    A('EHGEN:')
    tf = T + 0; t32 = T + 1; an = T + 2; cs = T + 4; sn = T + 5; e0 = T + 6; e1 = T + 7; gfl = T + 8; an1 = T + 9; an2 = T + 10
    sgn = T + 11
    A(f'''
    s_lshr_b32 {s(t0)}, {s(sWv)}, 1
    s_and_b32 {s(t1)}, {s(sWv)}, 1
    s_lshl_b32 {s(t2)}, {s(t0)}, 5
    s_add_u32 {s(t2)}, {s(t2)}, {s(sK)}
    s_lshl_b32 {s(t3)}, {s(t1)}, 10
    s_add_u32 {s(t2)}, {s(t2)}, {s(t3)}
    s_add_u32 {s(t3)}, {s(t3)}, 16
    s_lshl_b32 {s(t1)}, {s(t1)}, 5
    s_cmp_eq_u32 {s(t0)}, 1
    s_cselect_b32 {s(t1)}, {s(t3)}, {s(t1)}
    s_cselect_b32 {s(sEA)}, 0, {f32(1/16)}
    s_cselect_b32 {s(sEC)}, {f32(1/16)}, 0
    s_cmp_eq_u32 {s(sK)}, 0
    s_cselect_b32 {s(t2)}, {s(t1)}, {s(t2)}
    s_cselect_b32 {s(sEA)}, {s(sEA)}, {f32(1/16)}
    s_cselect_b32 {s(sEC)}, {s(sEC)}, 0
    s_cselect_b32 {s(sEB)}, 0, {f32(-1/16)}
    s_cselect_b32 {s(sEnB)}, 0, {f32(1/16)}
    v_lshlrev_b32 {v(tf)}, 6, {v(vI)}
    v_add_u32 {v(tf)}, {s(t2)}, {v(tf)}
    v_cvt_f32_u32 {v(tf)}, {v(tf)}
    v_cvt_f32_u32 {v(gfl)}, {v(vG)}
    v_mul_f32 {v(tf)}, {f32(1/2048)}, {v(tf)}
    v_mul_f32 {v(t32)}, {f32(32.0)}, {v(tf)}
    v_cmp_eq_u32 {s(sG0,2)}, 0, {v(vG)}
    s_mov_b32 {s(t0)}, 0x80008000
    ''')
    def e_pair(ang, dc, ds_):
        A(f'''
        v_cos_f32 {v(cs)}, {v(ang)}
        v_sin_f32 {v(sn)}, {v(ang)}
        v_mul_f32 {v(e0)}, {s(sEA)}, {v(cs)}
        v_mul_f32 {v(e1)}, {s(sEC)}, {v(cs)}
        v_fmac_f32 {v(e1)}, {s(sEB)}, {v(sn)}
        v_cvt_pk_f16_f32 {v(dc)}, {v(e0)}, {v(e1)}
        v_mul_f32 {v(e0)}, {s(sEA)}, {v(sn)}
        v_mul_f32 {v(e1)}, {s(sEC)}, {v(sn)}
        v_fmac_f32 {v(e1)}, {s(sEnB)}, {v(cs)}
        v_cvt_pk_f16_f32 {v(ds_)}, {v(e0)}, {v(e1)}
        ''')
    for q in range(4):
        if q == 0:
            A(f'''
            v_mul_f32 {v(an)}, {v(tf)}, {v(gfl)}
            v_mul_f32 {v(an1)}, 0.5, {v(t32)}
            v_cndmask_b32 {v(an1)}, {v(t32)}, {v(an1)}, {s(sG0,2)}
            v_add_f32 {v(an1)}, {v(an1)}, {v(an)}
            v_cndmask_b32 {v(an2)}, {v(an)}, {v(t32)}, {s(sG0,2)}
            v_mov_b32 {v(sgn)}, {s(t0)}
            v_cndmask_b32 {v(sgn)}, {v(sgn)}, 0, {s(sG0,2)}
            ''')
            e_pair(an, Ec, Es); e_pair(an1, Ec + 1, Es + 1); e_pair(an2, Ec + 2, Es + 2)
            A(f'''
            v_xor_b32 {v(Es+2)}, {v(sgn)}, {v(Es+2)}
            v_mov_b32 {v(Ec+3)}, {v(Ec+1)}
            v_xor_b32 {v(Es+3)}, {s(t0)}, {v(Es+1)}
            ''')
        else:
            A(f'''
            v_fmac_f32 {v(an)}, 4.0, {v(tf)}
            v_add_f32 {v(an1)}, {v(an)}, {v(t32)}
            ''')
            e_pair(an, Ec + 4 * q, Es + 4 * q); e_pair(an1, Ec + 4 * q + 1, Es + 4 * q + 1)
            A(f'''
            v_mov_b64 {v(Ec+4*q+2,2)}, {v(Ec+4*q,2)}
            v_xor_b32 {v(Es+4*q+2)}, {s(t0)}, {v(Es+4*q)}
            v_xor_b32 {v(Es+4*q+3)}, {s(t0)}, {v(Es+4*q+1)}
            ''')
    A(f'''
    s_and_b32 exec_lo, {s(sRho)}, 0x00010000
    s_mov_b32 exec_hi, exec_lo
    ''')
    for r in range(16):
        A(f'v_mov_b32 {v(Ec+r)}, 0')
        A(f'v_mov_b32 {v(Es+r)}, 0xac00')
    A('s_mov_b64 exec, -1')
    hA = T + 12; hB = T + 13; hC = T + 14; hO = T + 15; ef = T + 16; ls = T + 18; mu = T + 22; sg = T + 23; hnB = T + 24
    A(f'''
    v_lshrrev_b32 {v(mu)}, 2, {v(vI)}
    v_lshlrev_b32 {v(mu)}, 3, {v(mu)}
    v_and_b32 {v(e0)}, 3, {v(vI)}
    v_add_u32 {v(mu)}, {v(mu)}, {v(e0)}
    v_lshlrev_b32 {v(ef)}, 5, {v(mu)}
    v_add_u32 {v(ef)}, {s(sL)}, {v(ef)}
    v_add_u32 {v(ef+1)}, 128, {v(ef)}
    v_mov_b32 {v(hA)}, {f32(16.0)}
    v_mov_b32 {v(hB)}, {f32(-16.0)}
    v_mov_b32 {v(hC)}, 0
    v_mov_b32 {v(hO)}, 0
    s_cmp_eq_u32 {s(sL)}, 0
    s_cselect_b32 exec_lo, 0xff00ff00, 0
    s_mov_b32 exec_hi, exec_lo
    v_subrev_u32 {v(ef)}, {512-16}, {v(ef)}
    v_subrev_u32 {v(ef+1)}, {512-16}, {v(ef+1)}
    v_mov_b32 {v(hA)}, 0
    v_mov_b32 {v(hB)}, 0
    v_mov_b32 {v(hC)}, {f32(16.0)}
    s_cselect_b32 exec_lo, 0x00ff00ff, 0
    s_mov_b32 exec_hi, exec_lo
    v_mov_b32 {v(hB)}, 0
    v_mov_b32 {v(hO)}, {f32(-16.0)}
    s_cselect_b32 exec_lo, 0x00010001, 0
    s_mov_b32 exec_hi, exec_lo
    v_mov_b32 {v(ef)}, 512
    s_mov_b64 exec, -1
    v_cvt_f32_u32 {v(ef)}, {v(ef)}
    v_cvt_f32_u32 {v(ef+1)}, {v(ef+1)}
    v_sub_f32 {v(hnB)}, 0, {v(hB)}
    v_mul_f32 {v(ef)}, {f32(1/1024)}, {v(ef)}
    v_mul_f32 {v(ef+1)}, {f32(1/1024)}, {v(ef+1)}
    v_add_f32 {v(ls)}, {v(gfl)}, {v(gfl)}
    v_add_f32 {v(ls+1)}, 1.0, {v(ls)}
    v_add_f32 {v(ls+2)}, {f32(8.0)}, {v(ls)}
    v_add_f32 {v(ls+3)}, {f32(9.0)}, {v(ls)}
    ''')
    for mb in range(2):
        for d in range(4):
            A(f'''
            v_mul_f32 {v(an)}, {v(ef+mb)}, {v(ls+d)}
            v_cos_f32 {v(cs)}, {v(an)}
            v_sin_f32 {v(sn)}, {v(an)}
            v_fma_f32 {v(e0)}, {v(hA)}, {v(cs)}, {v(hO)}
            v_mul_f32 {v(e1)}, {v(hC)}, {v(cs)}
            v_fmac_f32 {v(e1)}, {v(hB)}, {v(sn)}
            v_cvt_pk_f16_f32 {v(Hc+4*mb+d)}, {v(e0)}, {v(e1)}
            v_mul_f32 {v(e0)}, {v(hA)}, {v(sn)}
            v_mul_f32 {v(e1)}, {v(hC)}, {v(sn)}
            v_fmac_f32 {v(e1)}, {v(hnB)}, {v(cs)}
            v_cvt_pk_f16_f32 {v(Hs+4*mb+d)}, {v(e0)}, {v(e1)}
            ''')
    A(f'''
    v_and_b32 {v(sg)}, 1, {v(vI)}
    v_cvt_f32_u32 {v(sg)}, {v(sg)}
    v_fma_f32 {v(sg)}, {v(sg)}, -2.0, 1.0
    v_add_f32 {v(e0)}, {v(hnB)}, {v(hO)}
    v_fma_f32 {v(e0)}, -{v(hO)}, {v(sg)}, {v(e0)}
    v_fma_f32 {v(e1)}, {v(hnB)}, {v(sg)}, {v(hC)}
    v_fma_f32 {v(cs)}, {v(hC)}, {v(sg)}, {v(hnB)}
    v_mul_f32 {v(sn)}, {v(hnB)}, {v(sg)}
    s_mov_b64 exec, 0xffff
    v_cvt_pk_f16_f32 {v(Hc)}, {v(e0)}, {v(e1)}
    v_cvt_pk_f16_f32 {v(Hc+4)}, {v(e0)}, {v(e1)}
    v_cvt_pk_f16_f32 {v(Hs)}, {v(cs)}, {v(sn)}
    v_cvt_pk_f16_f32 {v(Hs+4)}, {v(cs)}, {v(sn)}
    s_mov_b64 exec, -1
    ''')
    if OPT['debug'] >= 2:
        dump(10, Ga, 16); dump(11, Gb, 16); dump(12, GR[0], 12); dump(13, Ec, 16); dump(14, Es, 16); dump(15, Hc, 16)
    A('s_branch EH_DONE')
    return V.hi

def descriptor(name, nv):
    nv = (nv + 7) // 8 * 8
    return f'''.section .rodata,"a"
.p2align 6
.amdhsa_kernel {name}
  .amdhsa_next_free_vgpr {nv}
  .amdhsa_next_free_sgpr 64
  .amdhsa_accum_offset {nv}
  .amdhsa_group_segment_fixed_size 0
  .amdhsa_kernarg_size 104
  .amdhsa_user_sgpr_count 2
  .amdhsa_user_sgpr_kernarg_segment_ptr 1
  .amdhsa_system_sgpr_workgroup_id_x 1
.end_amdhsa_kernel
'''

hdr = open('cdna_kernels/' + NAME + '.s.ref').read().split('; Override launch')[0]
nv1 = gen_pre()
nv2 = gen_main()
npad = A.pad()
out = hdr
out += f'; @launch kernel={PRE} grid=(256,1,1) block=(256,1,1) lds={4*2*ROWB}\n'
out += f'; @launch kernel={MAIN} grid=(256,1,1) block=(256,1,1) lds={LDS_MAIN}\n'
out += '.amdgcn_target "amdgcn-amd-amdhsa--gfx950"\n.text\n'
out += A.text()
out += descriptor(PRE, nv1) + descriptor(MAIN, nv2)
open(sys.argv[1], 'w').write(out)
print('vgprs', nv1, nv2, 'pad states', npad, 'lines', out.count('\n'))
```

```python
import sys, math
sys.path.insert(0, 'work')
from asmlib import *

NAME = 'interleave_layers__spectral_fnet__spectral_fnet__prompt'
MAIN = NAME + '_kernel'
WS_SIZE = 0x2000000
GSH = 21
H0B, FLG, EOFF, SB, XB, FB, DUMPB = 0, 0x60000, 0x68000, 0x70000, 0x80000, 0x100000, 0x2000000
SSTR, XSTR = 0x4000, 0x20000
HWG, HSL = 24576, 384
LDS_W, LDS_Q, LDS_R = 0, 8192, 16384
ROWB = 2176
LDS_MAIN = LDS_R + 4 * 2 * ROWB
BOUND = 20000
OPT = dict(debug=0, stamps=0, xp=0, sl=0, fp=0, hp=0)
for a in sys.argv[2:]:
    k, val = a.split('='); OPT[k] = int(val)

if OPT['debug']: WS_SIZE = 0x10000000
A = Asm()

def wg_indices(sK, sL, sN, sT):
    A(f'''
    s_and_b32 {s(sK)}, s2, 7
    s_lshl_b32 {s(sK)}, {s(sK)}, 1
    s_bfe_u32 {s(sT)}, s2, 0x10003
    s_or_b32 {s(sK)}, {s(sK)}, {s(sT)}
    s_lshr_b32 {s(sL)}, s2, 4
    s_lshl_b32 {s(sN)}, {s(sK)}, 4
    s_or_b32 {s(sN)}, {s(sN)}, {s(sL)}
    ''')

def rows_scalar(sK, sTau, sR, sM, t0, t1):
    A(f'''
    s_lshr_b32 {s(t0)}, {s(sTau)}, 5
    s_and_b32 {s(t1)}, {s(sTau)}, 31
    s_lshl_b32 {s(sR)}, {s(t1)}, 6
    s_lshl_b32 {s(sM)}, {s(t0)}, 5
    s_add_u32 {s(sM)}, {s(sM)}, {s(sK)}
    s_cmp_ge_u32 {s(t1)}, 16
    s_cselect_b32 {s(t1)}, -992, 0
    s_cmp_eq_u32 {s(t0)}, 1
    s_cselect_b32 {s(t1)}, 16, {s(t1)}
    s_cmp_eq_u32 {s(sK)}, 0
    s_cselect_b32 {s(sM)}, {s(t1)}, {s(sM)}
    s_add_u32 {s(sR)}, {s(sR)}, {s(sM)}
    s_sub_u32 {s(sM)}, 2048, {s(sR)}
    s_cmp_eq_u32 {s(sR)}, 0
    s_cselect_b32 {s(sM)}, 1024, {s(sM)}
    s_lshl_b32 {s(sR)}, {s(sR)}, 11
    s_lshl_b32 {s(sM)}, {s(sM)}, 11
    ''')

def relayout_addrs(vL, sBase, vLin, vRep, vMir, vA0, vC0, vD0, t0, t1, sm):
    def pos(dst, col, tmp):
        A(f'''
        v_lshrrev_b32 {v(tmp)}, 8, {v(col)}
        v_lshlrev_b32 {v(tmp)}, 5, {v(tmp)}
        v_lshl_add_u32 {v(dst)}, {v(col)}, 1, {v(tmp)}
        v_add_u32 {v(dst)}, {s(sBase)}, {v(dst)}
        ''')
    A(f'''
    v_lshrrev_b32 {v(t0)}, 5, {v(vL)}
    v_lshlrev_b32 {v(t0)}, 5, {v(t0)}
    v_lshl_add_u32 {v(vLin)}, {v(vL)}, 4, {v(t0)}
    v_add_u32 {v(vLin)}, {s(sBase)}, {v(vLin)}
    v_and_b32 {v(t0)}, 3, {v(vL)}
    v_lshlrev_b32 {v(t0)}, 8, {v(t0)}
    v_lshrrev_b32 {v(t1)}, 2, {v(vL)}
    v_add_u32 {v(vA0)}, {v(t0)}, {v(t1)}
    v_and_b32 {v(t0)}, 1, {v(vL)}
    v_lshlrev_b32 {v(t0)}, 8, {v(t0)}
    v_and_b32 {v(t1)}, 2, {v(vL)}
    v_lshl_add_u32 {v(t0)}, {v(t1)}, 3, {v(t0)}
    v_cmp_gt_u32 {s(sm,2)}, 4, {v(vL)}
    v_cndmask_b32 {v(vA0)}, {v(vA0)}, {v(t0)}, {s(sm,2)}
    ''')
    pos(vRep, vA0, t0)
    A(f'v_sub_u32 {v(t1)}, {1024-224}, {v(vA0)}')
    pos(vMir, t1, t0)
    A(f'''
    v_sub_u32 {v(t1)}, 1024, {v(vA0)}
    v_and_b32 {v(t1)}, 1023, {v(t1)}
    ''')
    pos(vC0, t1, t0)
    A(f'''
    v_cmp_eq_u32 {s(sm,2)}, 0, {v(vL)}
    v_mov_b32 {v(t0)}, {2*512+64}
    v_cndmask_b32 {v(t0)}, 0, {v(t0)}, {s(sm,2)}
    v_add_u32 {v(vA0)}, {v(vRep)}, {v(t0)}
    v_add_u32 {v(vD0)}, {v(vC0)}, {v(t0)}
    ''')

def slot_addr(k, c, vRep, vMir, vA0, vC0, vD0):
    row = ROWB if k in (1, 3) else 0
    if c == 0:
        return [(vA0, 0), (vRep, ROWB), (vC0, 0), (vD0, ROWB)][k]
    if k < 2: return (vRep, row + 64 * c)
    return (vMir, row + 64 * (7 - c))

def red64x2(a, b, u):
    A(f'''
    v_permlane32_swap_b32 {v(a)}, {v(b)}
    v_add_f32 {v(a)}, {v(a)}, {v(b)}
    v_add_f32_dpp {v(a)}, {v(a)}, {v(a)} row_ror:8 row_mask:0xf bank_mask:0xf
    v_add_f32_dpp {v(a)}, {v(a)}, {v(a)} row_ror:4 row_mask:0xf bank_mask:0xf
    v_add_f32_dpp {v(a)}, {v(a)}, {v(a)} row_ror:2 row_mask:0xf bank_mask:0xf
    v_add_f32_dpp {v(a)}, {v(a)}, {v(a)} row_ror:1 row_mask:0xf bank_mask:0xf
    v_mov_b32 {v(u)}, {v(a)}
    v_permlane16_swap_b32 {v(a)}, {v(u)}
    v_add_f32 {v(a)}, {v(a)}, {v(u)}
    ''')

STB = 0x180000
def stamp(idx, base=56):
    if OPT['stamps']: A(f's_memrealtime {s(base+2*idx,2)}')
def stamp_flush(vS, n, lane0, base=56, sLane=None, tmp=None):
    if not OPT['stamps']: return
    A('s_waitcnt lgkmcnt(0)')
    for k in range(n):
        if sLane is None: A(f'v_writelane_b32 {v(vS)}, {s(base+2*k)}, {lane0+k}')
        else:
            A(f's_add_u32 m0, {s(sLane)}, {lane0+k}')
            A(f'v_writelane_b32 {v(vS)}, {s(base+2*k)}, m0')
def stamp_store(vS, vL, sW, which, sWv, t0, t1, vt):
    if not OPT['stamps']: return
    A(f'''
    s_mov_b64 exec, -1
    s_lshl_b32 {s(t0)}, s2, 10
    s_lshl_b32 {s(t1)}, {s(sWv)}, 8
    s_add_u32 {s(t0)}, {s(t0)}, {s(t1)}
    s_add_u32 {s(t0)}, {s(t0)}, {STB}
    v_lshlrev_b32 {v(vt)}, 2, {v(vL)}
    buffer_store_dword {v(vS)}, {v(vt)}, {s(sW,4)}, {s(t0)} offen
    ''')

def kernel_head(name):
    A.raw(f'.globl {name}\n.p2align 8\n.type {name},@function\n{name}:')
    A.raw('.KERNEL')

def gen_main():
    kernel_head(MAIN)
    V = Regs('v', 1, 256)
    sW, sO, sD, sX = 4, 8, 12, 84
    (sK, sL, sN, sWv, sLay, sXb, sXb2, sSb, sCnt, sErr, t0, t1, t2, t3, sSpec, sEA, sEB, sEC, sEnB, sTau, sR, sM,
     sBase, sFo2, sFo3, sT) = range(16, 42)
    sGb, sHa, sHb, sHin = 50, 51, 53, 55
    sRho = 42
    sm = 44; sm2 = 46; sG0 = 48
    vL = V.alloc(); vI = V.alloc(); vG = V.alloc()
    vXin = V.alloc(); vXout = V.alloc(); vSout = V.alloc(); vSin = V.alloc(); vFout = V.alloc(); vFin = V.alloc()
    vWa1 = V.alloc(); vWa2 = V.alloc(); vWr = V.alloc(); vQw = V.alloc(); vQr = V.alloc()
    vDump = V.alloc(); vFlag = V.alloc(); vFlagD = V.alloc()
    vOne = V.alloc(4, 4)
    X = [V.alloc(8, 4) for _ in range(4)]
    Ga = V.alloc(8, 4); Ga2 = V.alloc(8, 4); Gb = V.alloc(8, 4); Gb2 = V.alloc(8, 4)
    GR = [V.alloc(4, 4) for _ in range(3)]
    Ec = V.alloc(16, 4); Es = V.alloc(16, 4); Hc = V.alloc(8, 4); Hs = V.alloc(8, 4)
    M2 = V.alloc(2, 2); M3 = V.alloc(2, 2); M4 = V.alloc(2, 2)
    St = V.alloc(4, 4)
    Ps = V.alloc(2, 2); Pc = V.alloc(2, 2)
    T = V.alloc(80, 4)

    def poll_tail(lab, code, vt):
        done = A.newlabel('DONE')
        A(f'''
        v_cmp_eq_u32 vcc, -1, {v(vt)}
        s_sub_u32 {s(sCnt)}, {s(sCnt)}, 1
        s_cbranch_vccz {done}
        s_cbranch_scc0 {lab}
        s_or_b32 {s(sErr)}, {s(sErr)}, {code}
        {done}:
        ''')
    def maxall(regs, vt, vt2):
        regs = list(regs)
        accs = [vt, vt2]; first = [True, True]; k = 0
        while regs:
            a = accs[k]
            if first[k]:
                if len(regs) >= 3: A(f'v_max3_u32 {v(a)}, {v(regs[0])}, {v(regs[1])}, {v(regs[2])}'); regs = regs[3:]
                else: raise Exception
                first[k] = False
            elif len(regs) >= 2: A(f'v_max3_u32 {v(a)}, {v(a)}, {v(regs[0])}, {v(regs[1])}'); regs = regs[2:]
            else: A(f'v_max_u32 {v(a)}, {v(a)}, {v(regs[0])}'); regs = regs[1:]
            k ^= 1
        A(f'v_max_u32 {v(vt)}, {v(vt)}, {v(vt2)}')
    sDbg = 52
    def dump(slot, reg, n, lay=0):
        if not OPT['debug']: return
        A(f's_mul_i32 {s(sDbg)}, {s(sLay)}, {lay * 0x400000}')
        A(f's_add_u32 {s(sDbg)}, {s(sDbg)}, {DUMPB + slot * 0x400000}')
        for r in range(0, n, 4):
            A(f'buffer_store_dwordx4 {v(reg+r,4)}, {v(vDump)}, {s(sW,4)}, {s(sDbg)} offen offset:{4*r}')
        A('s_waitcnt vmcnt(0)')
    vStamp = V.alloc()

    sLn = 54
    stamp(0)
    tau = T + 1; a0 = T + 2; a1 = T + 3
    vL16 = T + 16; vRow = X[0]
    A(f"""
    s_cmp_ge_u32 s2, 256
    s_cbranch_scc1 MAIN_END
    s_load_dwordx2 {s(sX,2)}, s[0:1], 0
    s_load_dwordx2 {s(sW,2)}, s[0:1], 96
    s_load_dwordx4 {s(sO,4)}, s[0:1], 80
    v_lshrrev_b32 {v(T)}, 6, v0
    v_and_b32 {v(vL)}, 63, v0
    v_readfirstlane_b32 {s(sWv)}, {v(T)}
    s_mov_b32 {s(sX+2)}, 0x400000
    s_mov_b32 {s(sX+3)}, 0x00020000
    s_mov_b32 {s(sW+2)}, {WS_SIZE}
    s_mov_b32 {s(sW+3)}, 0x00020000
    v_lshlrev_b32 {v(vL16)}, 4, {v(vL)}
    """)
    wg_indices(sK, sL, sN, t0)
    A(f"""
    s_lshl_b32 {s(sTau)}, {s(sL)}, 2
    s_add_u32 {s(sTau)}, {s(sTau)}, {s(sWv)}
    """)
    rows_scalar(sK, sTau, sR, sM, t0, t1)
    A(f"""
    v_and_b32 {v(vI)}, 15, v0
    v_lshrrev_b32 {v(vG)}, 4, {v(vL)}
    s_lshl_b32 {s(sGb)}, {s(sK)}, {GSH}
    s_waitcnt lgkmcnt(0)
    buffer_load_dwordx4 {v(vRow,4)}, {v(vL16)}, {s(sX,4)}, {s(sR)} offen
    buffer_load_dwordx4 {v(vRow+4,4)}, {v(vL16)}, {s(sX,4)}, {s(sR)} offen offset:1024
    buffer_load_dwordx4 {v(vRow+8,4)}, {v(vL16)}, {s(sX,4)}, {s(sM)} offen
    buffer_load_dwordx4 {v(vRow+12,4)}, {v(vL16)}, {s(sX,4)}, {s(sM)} offen offset:1024
    s_load_dword {s(sT)}, {s(sW,2)}, {EOFF}
    s_mov_b32 {s(sD)}, {s(sO+2)}
    s_mov_b32 {s(sD+1)}, {s(sO+3)}
    s_mov_b32 {s(sO+2)}, 0x400000
    s_mov_b32 {s(sO+3)}, 0x00020000
    s_mov_b32 {s(sD+2)}, 256
    s_mov_b32 {s(sD+3)}, 0x00020000
    v_mov_b32 {v(vOne)}, -1
    v_mov_b32 {v(vOne+1)}, -1
    v_mov_b32 {v(vOne+2)}, -1
    v_mov_b32 {v(vOne+3)}, -1
    s_lshl_b32 {s(t0)}, {s(sL)}, 13
    s_add_u32 {s(t0)}, {s(t0)}, {s(sGb)}
    s_lshr_b32 {s(t1)}, {s(sWv)}, 1
    s_lshl_b32 {s(t1)}, {s(t1)}, 12
    s_add_u32 {s(t0)}, {s(t0)}, {s(t1)}
    s_and_b32 {s(t1)}, {s(sWv)}, 1
    s_lshl_b32 {s(t2)}, {s(t1)}, 8
    s_add_u32 {s(t0)}, {s(t0)}, {s(t2)}
    v_lshlrev_b32 {v(a0)}, 4, {v(vI)}
    v_lshl_add_u32 {v(vXout)}, {v(vG)}, 10, {v(a0)}
    v_add_u32 {v(vXout)}, {s(t0)}, {v(vXout)}
    s_mov_b32 {s(sXb)}, {XB}
    s_mov_b32 {s(sXb2)}, {XB + (2 << GSH)}
    buffer_store_dwordx4 {v(vOne,4)}, {v(vXout)}, {s(sW,4)}, {s(sXb)} offen sc1
    buffer_store_dwordx4 {v(vOne,4)}, {v(vXout)}, {s(sW,4)}, {s(sXb)} offen offset:512 sc1
    s_lshl_b32 {s(t0)}, {s(sL)}, 10
    s_min_u32 {s(t2)}, {s(sWv)}, 2
    s_mul_i32 {s(t2)}, {s(t2)}, {SSTR}
    s_add_u32 {s(t0)}, {s(t0)}, {s(sGb)}
    s_add_u32 {s(t2)}, {s(t2)}, {s(t0)}
    s_add_u32 {s(t2)}, {s(t2)}, {SB}
    buffer_store_dwordx4 {v(vOne,4)}, {v(vL16)}, {s(sW,4)}, {s(t2)} offen sc1
    s_mov_b32 {s(sErr)}, 0
    s_mov_b32 {s(sLay)}, 0
    s_mov_b32 {s(sSb)}, {SB}
    ; tau = 16 w + i
    s_lshl_b32 {s(t2)}, {s(sWv)}, 4
    v_add_u32 {v(tau)}, {s(t2)}, {v(vI)}
    v_lshlrev_b32 {v(a1)}, 4, {v(tau)}
    v_lshl_add_u32 {v(vSout)}, {v(vG)}, 2, {v(a1)}
    v_add_u32 {v(vSout)}, {s(t0)}, {v(vSout)}
    v_lshl_add_u32 {v(vSin)}, {v(vG)}, 12, {v(a1)}
    v_add_u32 {v(vSin)}, {s(sGb)}, {v(vSin)}
    v_lshrrev_b32 {v(a0)}, 5, {v(vL)}
    v_lshlrev_b32 {v(vXin)}, {GSH}, {v(a0)}
    v_bfe_u32 {v(a0)}, {v(vL)}, 1, 4
    v_lshl_add_u32 {v(vXin)}, {v(a0)}, 13, {v(vXin)}
    v_and_b32 {v(a0)}, 1, {v(vL)}
    v_lshl_add_u32 {v(vXin)}, {v(a0)}, 4, {v(vXin)}
    s_lshl_b32 {s(t2)}, {s(sWv)}, {GSH+2}
    s_lshl_b32 {s(t3)}, {s(sN)}, 5
    s_add_u32 {s(t2)}, {s(t2)}, {s(t3)}
    v_add_u32 {v(vXin)}, {s(t2)}, {v(vXin)}
    s_lshl_b32 {s(t2)}, {s(sWv)}, 11
    s_add_u32 {s(t2)}, {s(t2)}, {LDS_Q}
    v_add_u32 {v(vQw)}, {s(t2)}, {v(vL16)}
    v_lshrrev_b32 {v(a0)}, 2, {v(tau)}
    v_lshlrev_b32 {v(vFout)}, 14, {v(a0)}
    v_and_b32 {v(a0)}, 3, {v(vI)}
    v_lshl_add_u32 {v(vFout)}, {v(a0)}, 6, {v(vFout)}
    v_lshl_add_u32 {v(vFout)}, {v(vG)}, 4, {v(vFout)}
    v_add_u32 {v(vFout)}, {s(t0)}, {v(vFout)}
    v_lshrrev_b32 {v(a0)}, 2, {v(vL)}
    v_lshlrev_b32 {v(vFin)}, 10, {v(a0)}
    v_and_b32 {v(a0)}, 3, {v(vL)}
    v_lshl_add_u32 {v(vFin)}, {v(a0)}, 4, {v(vFin)}
    s_lshl_b32 {s(t2)}, {s(sL)}, 14
    s_add_u32 {s(t2)}, {s(t2)}, {s(sGb)}
    s_lshl_b32 {s(t3)}, {s(sWv)}, 6
    s_add_u32 {s(t2)}, {s(t2)}, {s(t3)}
    v_add_u32 {v(vFin)}, {s(t2)}, {v(vFin)}
    """)
    A(f'''
    v_lshlrev_b32 {v(a0)}, 4, {v(vI)}
    v_lshl_add_u32 {v(vWr)}, {v(vG)}, 8, {v(a0)}
    v_lshl_add_u32 {v(vQr)}, {v(vG)}, 9, {v(a0)}
    s_lshl_b32 {s(t2)}, {s(t1)}, 10
    v_add_u32 {v(vWr)}, {s(t2)}, {v(vWr)}
    v_add_u32 {v(vQr)}, {LDS_Q}, {v(vQr)}
    v_lshrrev_b32 {v(a1)}, 1, {v(vG)}
    v_lshl_add_u32 {v(a0)}, {v(a1)}, 8, {v(a0)}
    v_and_b32 {v(a1)}, 1, {v(vG)}
    v_lshl_add_u32 {v(a0)}, {v(a1)}, 3, {v(a0)}
    s_lshr_b32 {s(t0)}, {s(sWv)}, 1
    s_lshl_b32 {s(t0)}, {s(t0)}, 11
    s_lshl_b32 {s(t2)}, {s(t1)}, 9
    s_add_u32 {s(t0)}, {s(t0)}, {s(t2)}
    s_lshl_b32 {s(t2)}, {s(sWv)}, 12
    s_lshl_b32 {s(t3)}, {s(sK)}, 2
    s_or_b32 {s(sSpec)}, {s(t3)}, {s(sWv)}
    s_cmp_lt_u32 {s(sSpec)}, 2
    s_cselect_b32 {s(t0)}, {s(t2)}, {s(t0)}
    s_cselect_b32 {s(t2)}, 1, 8
    s_lshl_b32 {s(t2)}, {s(t2)}, 9
    s_add_u32 {s(t2)}, {s(t2)}, {s(t0)}
    v_add_u32 {v(vWa1)}, {s(t0)}, {v(a0)}
    v_add_u32 {v(vWa2)}, {s(t2)}, {v(a0)}
    s_cmp_eq_u32 {s(sSpec)}, 0
    s_cselect_b32 {s(sRho)}, 0x00010001, 0
    s_mov_b32 {s(sRho+1)}, {s(sRho)}
    v_mov_b32 {v(M2)}, 1.0
    v_mov_b32 {v(M2+1)}, 1.0
    v_mov_b32 {v(M3)}, 1.0
    v_mov_b32 {v(M3+1)}, 1.0
    v_mov_b32 {v(M4)}, 1.0
    v_mov_b32 {v(M4+1)}, 1.0
    s_cmp_eq_u32 {s(sL)}, 0
    s_cselect_b32 exec_lo, 0xffff, 0
    s_mov_b32 exec_hi, 0
    v_mov_b32 {v(M2)}, 0
    v_mov_b32 {v(M3)}, 0
    s_and_b32 exec_lo, exec_lo, {s(sRho)}
    v_mov_b32 {v(M3)}, 1.0
    v_mov_b32 {v(M4)}, 0
    s_mov_b64 exec, -1
    v_mov_b32 {v(vStamp)}, 0
    ''')
    if OPT['debug']:
        A(f'''
        s_lshl_b32 {s(t0)}, {s(sN)}, 8
        v_add_u32 {v(vDump)}, {s(t0)}, v0
        v_lshlrev_b32 {v(vDump)}, 6, {v(vDump)}
        ''')

    stamp(1)
    fr = T + 4; ph = T + 5; arg = T + 6; c0 = T + 8; stp = T + 7; gf = T + 10; amp = T + 11; voff = T + 12; Z = T + 13; arg2 = T + 14
    def f_ph(x_sgpr_or_imm):
        A(f'''
        v_lshrrev_b32 {v(a0)}, 1, {v(vI)}
        v_cvt_f32_u32 {v(fr)}, {v(a0)}
        v_and_b32 {v(a1)}, 1, {v(vI)}
        v_cvt_f32_u32 {v(ph)}, {v(a1)}
        v_mul_f32 {v(fr)}, {f32(1/32)}, {v(fr)}
        v_mul_f32 {v(ph)}, {f32(0.25)}, {v(ph)}
        v_add_f32 {v(fr)}, {x_sgpr_or_imm}, {v(fr)}
        v_cmp_eq_f32 vcc, 0, {v(fr)}
        v_cndmask_b32 {v(a0)}, 0, {v(ph)}, vcc
        v_fmac_f32 {v(fr)}, 2.0, {v(a0)}
        v_sub_f32 {v(ph)}, {v(ph)}, {v(a0)}
        ''')
    def cos_row(dst, step, scaled=False, first=None):
        for c in range(8):
            src = first if (c == 0 and first is not None) else arg
            A(f'v_cos_f32 {v(c0 + (c & 1))}, {v(src)}')
            if c < 7: A(f'v_add_f32 {v(arg)}, {v(arg)}, {v(step)}')
            if scaled: A(f'v_fma_f32 {v(c0 + (c & 1))}, {v(c0 + (c & 1))}, {v(amp)}, {v(voff)}')
            if c & 1: A(f'v_cvt_pk_f16_f32 {v(dst + c // 2)}, {v(c0)}, {v(c0+1)}')
    A(f'''
    v_cvt_f32_u32 {v(gf)}, {v(vG)}
    v_mul_f32 {v(gf)}, {f32(8.0)}, {v(gf)}
    s_cmp_eq_u32 {s(sL)}, 0
    s_cbranch_scc1 GCOL0
    ''')
    for cb in range(2):
        f_ph('0' if cb == 0 else f32(0.25))
        A(f'v_fma_f32 {v(arg)}, {v(fr)}, {v(gf)}, -{v(ph)}')
        cos_row(Ga + 4 * cb, fr)
    for r in range(0, 8, 2): A(f'v_mov_b64 {v(Ga2+r,2)}, {v(Ga+r,2)}')
    A('GCOL_DONE:')
    A(f'''
    s_lshr_b32 {s(t0)}, {s(sWv)}, 1
    s_mul_i32 {s(t0)}, {s(t0)}, {f32(0.25)}
    ''')
    f_ph(s(t0))
    A(f'v_fma_f32 {v(arg)}, {v(fr)}, {v(gf)}, -{v(ph)}')
    cos_row(GR[1], fr)
    A(f'''
    s_cmp_eq_u32 {s(sK)}, 0
    s_cbranch_scc1 GROW0
    ''')
    for r in range(0, 4, 2):
        A(f'v_mov_b64 {v(GR[0]+r,2)}, {v(GR[1]+r,2)}')
        A(f'v_mov_b64 {v(GR[2]+r,2)}, {v(GR[1]+r,2)}')
    A('GROW_DONE:')
    vLin, vRep0, vA0, vMir0, vC0, vRep1, vMir1, vH = range(Hc, Hc + 8)
    vE, vEm, q0, q1 = range(Hs, Hs + 4)
    vHin = T + 38; GRN = T + 40; HI = T + 64; vF = Ec
    def dreg(h, j): return GRN + 12 * h + 4 * (j // 3) + 1 + j % 3
    def pos(dst, col, rowoff):
        A(f"""
        v_lshrrev_b32 {v(q1)}, 8, {v(col)}
        v_lshl_add_u32 {v(q1)}, {v(q1)}, 5, {v(rowoff)}
        v_lshl_add_u32 {v(dst)}, {v(col)}, 1, {v(q1)}
        """)
    A(f"""
    s_mul_i32 {s(sBase)}, {s(sWv)}, {2*ROWB}
    s_add_u32 {s(sBase)}, {s(sBase)}, {LDS_R}
    v_lshrrev_b32 {v(q0)}, 5, {v(vL)}
    v_lshlrev_b32 {v(q0)}, 5, {v(q0)}
    v_lshl_add_u32 {v(vLin)}, {v(vL)}, 4, {v(q0)}
    v_add_u32 {v(vLin)}, {s(sBase)}, {v(vLin)}
    s_mov_b32 {s(sm)}, 0xf0f0f0f0
    s_mov_b32 {s(sm+1)}, 0xf0f0f0f0
    s_add_u32 {s(t0)}, {s(sBase)}, {ROWB}
    v_mov_b32 {v(q0)}, {s(sBase)}
    v_mov_b32 {v(q1)}, {s(t0)}
    v_cndmask_b32 {v(vE)}, {v(q0)}, {v(q1)}, {s(sm,2)}
    s_cmp_eq_u32 {s(sR)}, 0
    s_cselect_b32 {s(t1)}, -1, 0
    s_xor_b32 {s(sm2)}, {s(sm)}, {s(t1)}
    s_mov_b32 {s(sm2+1)}, {s(sm2)}
    v_cndmask_b32 {v(vEm)}, {v(q0)}, {v(q1)}, {s(sm2,2)}
    v_and_b32 {v(q0)}, 3, {v(vL)}
    v_lshrrev_b32 {v(vH)}, 3, {v(vL)}
    v_lshl_add_u32 {v(vA0)}, {v(q0)}, 8, {v(vH)}
    v_add_u32 {v(q0)}, 8, {v(vA0)}
    """)
    pos(vRep1, q0, vE)
    A(f'v_sub_u32 {v(q0)}, {1024-224-8}, {v(vA0)}')
    pos(vMir1, q0, vEm)
    A(f"""
    v_and_b32 {v(q0)}, 1, {v(vL)}
    v_lshlrev_b32 {v(q0)}, 8, {v(q0)}
    v_and_b32 {v(q1)}, 2, {v(vL)}
    s_mov_b64 exec, 0xff
    v_lshl_add_u32 {v(vA0)}, {v(q1)}, 3, {v(q0)}
    s_mov_b64 exec, -1
    """)
    pos(vRep0, vA0, vE)
    A(f'v_sub_u32 {v(q0)}, {1024-224}, {v(vA0)}')
    pos(vMir0, q0, vEm)
    A(f"""
    v_sub_u32 {v(q0)}, 1024, {v(vA0)}
    v_and_b32 {v(q0)}, 1023, {v(q0)}
    """)
    pos(vC0, q0, vEm)
    A(f"""
    v_mov_b32 {v(vA0)}, {v(vRep0)}
    s_mov_b64 exec, 1
    v_add_u32 {v(vA0)}, {2*512+64}, {v(vA0)}
    s_and_b32 exec_lo, {s(sm2)}, 0x11
    v_add_u32 {v(vC0)}, {2*512+64}, {v(vC0)}
    s_mov_b64 exec, -1
    s_mov_b32 {s(t0)}, {HWG}
    v_mul_lo_u32 {v(vH)}, {v(vH)}, {s(t0)}
    v_and_b32 {v(q0)}, 7, {v(vL)}
    v_lshl_add_u32 {v(vH)}, {v(q0)}, 4, {v(vH)}
    s_mul_i32 {s(sHa)}, {s(sTau)}, {HSL}
    s_add_u32 {s(sHa)}, {s(sHa)}, {s(sGb)}
    s_add_u32 {s(sHb)}, {s(sHa)}, {H0B + 8*HWG}
    s_add_u32 {s(sHa)}, {s(sHa)}, {H0B}
    v_mul_u32_u24 {v(vHin)}, {HSL}, {v(tau)}
    v_lshl_add_u32 {v(vHin)}, {v(vG)}, 4, {v(vHin)}
    s_mul_i32 {s(sHin)}, {s(sL)}, {HWG}
    s_add_u32 {s(sHin)}, {s(sHin)}, {s(sGb)}
    s_add_u32 {s(sHin)}, {s(sHin)}, {H0B}
    s_waitcnt lgkmcnt(0)
    s_mul_i32 {s(sT)}, {s(sT)}, 0x19660d
    s_add_u32 {s(sT)}, {s(sT)}, 0x3c6ef35f
    """)
    for h in range(2):
        for t in range(3): A(f'v_mov_b32 {v(GRN+12*h+4*t)}, {s(sT)}')
    stamp(2)
    A('s_waitcnt vmcnt(3)')
    stamp(3)
    A(f"""
    ds_write_b128 {v(vLin)}, {v(vRow,4)}
    ds_write_b128 {v(vLin)}, {v(vRow+4,4)} offset:1088
    ds_write_b128 {v(vLin)}, {v(vRow+8,4)} offset:{ROWB}
    ds_write_b128 {v(vLin)}, {v(vRow+12,4)} offset:{ROWB+1088}
    """)
    for r in range(16):
        A(f"""
        v_lshlrev_b32 {v(vF+2*r)}, 16, {v(vRow+r)}
        v_and_b32 {v(vF+2*r+1)}, 0xffff0000, {v(vRow+r)}
        """)
    A('s_waitcnt lgkmcnt(0)')
    for h in range(2):
        for part in range(2):
            for c in range(8):
                if part == 0: ad, off = ((vA0, 0) if (c == 0 and h == 0) else ((vRep0, vRep1)[h], 64 * c))
                else: ad, off = ((vC0, 0) if (c == 0 and h == 0) else ((vMir0, vMir1)[h], 64 * (7 - c)))
                j = 4 * part + c // 2
                A(f'ds_read_u16 {v(HI+8*h+j if c & 1 else dreg(h, j))}, {v(ad)} offset:{off}')
    a, b, u, m = T + 4, T + 6, T + 8, T + 10
    for (acc, base) in ((a, vF), (b, vF + 16)):
        A(f'v_pk_add_f32 {v(acc,2)}, {v(base,2)}, {v(base+2,2)}')
    for p in range(2, 8):
        for (acc, base) in ((a, vF), (b, vF + 16)):
            A(f'v_pk_add_f32 {v(acc,2)}, {v(acc,2)}, {v(base+2*p,2)}')
    A(f"""
    v_add_f32 {v(a)}, {v(a)}, {v(a+1)}
    v_add_f32 {v(b)}, {v(b)}, {v(b+1)}
    """)
    red64x2(a, b, u)
    A(f"""
    v_mul_f32 {v(m)}, {f32(1/1024)}, {v(a)}
    v_mov_b32 {v(u)}, {v(m)}
    v_mov_b32 {v(u+1)}, {v(m)}
    v_permlane32_swap_b32 {v(u)}, {v(u+1)}
    """)
    for p in range(8):
        A(f'v_pk_add_f32 {v(vF+2*p,2)}, {v(vF+2*p,2)}, {v(u,2)} op_sel_hi:[1,0] neg_lo:[0,1] neg_hi:[0,1]')
        A(f'v_pk_add_f32 {v(vF+16+2*p,2)}, {v(vF+16+2*p,2)}, {v(u,2)} op_sel:[0,1] op_sel_hi:[1,1] neg_lo:[0,1] neg_hi:[0,1]')
    for (acc, base) in ((a, vF), (b, vF + 16)):
        A(f'v_pk_mul_f32 {v(acc,2)}, {v(base,2)}, {v(base,2)}')
    for p in range(1, 8):
        for (acc, base) in ((a, vF), (b, vF + 16)):
            A(f'v_pk_fma_f32 {v(acc,2)}, {v(base+2*p,2)}, {v(base+2*p,2)}, {v(acc,2)}')
    A(f"""
    v_add_f32 {v(a)}, {v(a)}, {v(a+1)}
    v_add_f32 {v(b)}, {v(b)}, {v(b+1)}
    s_waitcnt lgkmcnt(0)
    """)
    def hstore(h, t):
        A(f'buffer_store_dwordx4 {v(GRN+12*h+4*t,4)}, {v(vH)}, {s(sW,4)}, {s((sHa, sHb)[h])} offen offset:{128*t} sc1')
    for h in range(2):
        for j in range(8):
            A(f'v_lshl_or_b32 {v(dreg(h, j))}, {v(HI+8*h+j)}, 16, {v(dreg(h, j))}')
            if j in (2, 5): hstore(h, j // 3)
    red64x2(a, b, u)
    A(f"""
    v_mov_b32 {v(u)}, {f32(1e-5)}
    v_fmac_f32 {v(u)}, {f32(1/1024)}, {v(a)}
    v_rsq_f32 {v(a)}, {v(u)}
    s_mov_b32 {s(sm2)}, 0xaaaaaaaa
    s_mov_b32 {s(sm2+1)}, 0xaaaaaaaa
    v_mul_f32 {v(a+1)}, {v(m)}, {v(a)}
    v_cndmask_b32 {v(a)}, {v(a)}, {v(a+1)}, {s(sm2,2)}
    v_mov_b32 {v(a+1)}, {v(a)}
    v_permlane32_swap_b32 {v(a)}, {v(a+1)}
    v_cndmask_b32 {v(dreg(0, 8))}, {v(a)}, {v(a+1)}, {s(sm,2)}
    v_cndmask_b32 {v(dreg(1, 8))}, {v(a)}, {v(a+1)}, {s(sm,2)}
    """)
    hstore(0, 2); hstore(1, 2)
    A(f"""
    s_mov_b32 {s(t0)}, {XB + XSTR}
    buffer_store_dwordx4 {v(vOne,4)}, {v(vXout)}, {s(sW,4)}, {s(t0)} offen sc1
    buffer_store_dwordx4 {v(vOne,4)}, {v(vXout)}, {s(sW,4)}, {s(t0)} offen offset:512 sc1
    """)
    stamp(4)
    A(f"""
    s_waitcnt vmcnt(8)
    s_barrier
    s_cmp_lg_u32 {s(sWv)}, 0
    s_cbranch_scc1 NOFLAG
    s_lshl_b32 {s(t0)}, {s(sL)}, 4
    s_add_u32 {s(t0)}, {s(t0)}, {s(sGb)}
    v_mov_b32 {v(vFlag)}, {FLG}
    s_mov_b64 exec, 1
    buffer_store_dword {v(GRN)}, {v(vFlag)}, {s(sW,4)}, {s(t0)} offen sc1
    s_mov_b64 exec, -1
    NOFLAG:
    s_branch EHGEN
    EH_DONE:
    """)
    stamp(5)
    vt = T + 68; vt2 = T + 69
    A(f"""
    v_lshlrev_b32 {v(vFlag)}, {GSH}, {v(vG)}
    v_lshl_add_u32 {v(vFlag)}, {v(vI)}, 4, {v(vFlag)}
    s_lshl_b32 {s(sHa)}, {s(sWv)}, {GSH+2}
    s_add_u32 {s(sHa)}, {s(sHa)}, {FLG}
    s_mov_b32 {s(sCnt)}, {BOUND}
    s_waitcnt vmcnt(0)
    """)
    if OPT['hp']: A(f's_sleep {OPT["hp"]}')
    A('HPOLL:')
    for t in range(3):
        for e in range(2):
            A(f'buffer_load_dwordx4 {v(GRN+12*e+4*t,4)}, {v(vHin)}, {s(sW,4)}, {s(sHin)} offen offset:{128*t+64*e} sc1')
    tg = [GRN + 4 * k for k in range(6)]
    A(f"""
    s_waitcnt vmcnt(0)
    v_min3_u32 {v(vt)}, {v(tg[0])}, {v(tg[1])}, {v(tg[2])}
    v_max3_u32 {v(vt2)}, {v(tg[0])}, {v(tg[1])}, {v(tg[2])}
    v_min3_u32 {v(vt)}, {v(vt)}, {v(tg[3])}, {v(tg[4])}
    v_max3_u32 {v(vt2)}, {v(vt2)}, {v(tg[3])}, {v(tg[4])}
    v_min_u32 {v(vt)}, {v(vt)}, {v(tg[5])}
    v_max_u32 {v(vt2)}, {v(vt2)}, {v(tg[5])}
    v_cmp_ne_u32 vcc, {s(sT)}, {v(vt)}
    v_cmp_ne_u32 {s(sm,2)}, {s(sT)}, {v(vt2)}
    s_or_b64 {s(sm,2)}, {s(sm,2)}, vcc
    s_cbranch_scc0 HGOT
    s_sub_u32 {s(sCnt)}, {s(sCnt)}, 1
    s_cbranch_scc0 HPOLL
    s_or_b32 {s(sErr)}, {s(sErr)}, 8
    HGOT:
    buffer_load_dword {v(vFlagD)}, {v(vFlag)}, {s(sW,4)}, {s(sHa)} offen sc1
    """)
    stamp(6)
    if OPT['stamps']: A(f's_sub_u32 {s(56+2*7)}, {BOUND}, {s(sCnt)}')
    stamp_flush(vStamp, 8, 0)
    A(f"""
    v_mov_b32 {v(St)}, {v(dreg(0, 8))}
    v_mov_b32 {v(St+1)}, {v(dreg(0, 8))}
    v_mov_b32 {v(St+2)}, {v(dreg(1, 8))}
    v_mov_b32 {v(St+3)}, {v(dreg(1, 8))}
    """)
    for k in range(4):
        for r in range(4):
            src = dreg(k & 1, 4 * (k >> 1) + r)
            A(f"""
            v_lshlrev_b32 {v(X[k]+2*r)}, 16, {v(src)}
            v_and_b32 {v(X[k]+2*r+1)}, 0xffff0000, {v(src)}
            """)
        if k == 0:
            A(f"""
            v_permlane16_swap_b32 {v(St)}, {v(St+1)}
            v_permlane16_swap_b32 {v(St+2)}, {v(St+3)}
            """)
    dump(0, X[0], 16); dump(1, X[2], 16)

    rR, cR, rM, cM = St, St + 1, St + 2, St + 3
    pA = T; pB = T + 8; PA = T + 16; PB = T + 20; PC = T + 24; PD = T + 28
    W = T + 32
    Wh = T + 48
    Wb = T + 0
    Dacc = T + 16
    Fr = T + 56
    A('LOOP:')
    stamp(0)
    A(f'''
    v_cndmask_b32 {v(Ps)}, {v(rM)}, {v(rR)}, {s(sRho,2)}
    v_cndmask_b32 {v(Ps+1)}, {v(rR)}, {v(rM)}, {s(sRho,2)}
    v_cndmask_b32 {v(Pc)}, {v(cM)}, {v(cR)}, {s(sRho,2)}
    v_cndmask_b32 {v(Pc+1)}, {v(cR)}, {v(cM)}, {s(sRho,2)}
    v_add_f32 {v(Pc)}, {v(Pc)}, {v(cR)}
    v_add_f32 {v(Pc+1)}, {v(Pc+1)}, {v(cM)}
    ''')
    for p in range(4):
        A(f'v_pk_fma_f32 {v(pA+2*p,2)}, {v(X[0]+2*p,2)}, {v(St,2)}, {v(Pc,2)} op_sel_hi:[1,0,0] neg_lo:[0,0,1] neg_hi:[0,0,1]')
        A(f'v_pk_fma_f32 {v(pB+2*p,2)}, {v(X[1]+2*p,2)}, {v(St+2,2)}, {v(Pc,2)} op_sel:[0,0,1] op_sel_hi:[1,0,1] neg_lo:[0,0,1] neg_hi:[0,0,1]')
    for p in range(4):
        A(f'v_pk_fma_f32 {v(pA+2*p,2)}, {v(X[3]+2*p,2)}, {v(Ps,2)}, {v(pA+2*p,2)} op_sel_hi:[1,0,1]')
        A(f'v_pk_fma_f32 {v(pB+2*p,2)}, {v(X[2]+2*p,2)}, {v(Ps,2)}, {v(pB+2*p,2)} op_sel:[0,1,0] op_sel_hi:[1,1,1]')
    for p in range(4):
        A(f'v_cvt_pk_f16_f32 {v(PA+p)}, {v(pA+2*p)}, {v(pA+2*p+1)}')
    for p in range(4):
        A(f'v_cvt_pk_f16_f32 {v(PB+p)}, {v(pB+2*p)}, {v(pB+2*p+1)}')
    A(f'''
    s_cmp_eq_u32 {s(sL)}, 0
    s_cbranch_scc1 COL0
    ''')
    MF = 'v_mfma_f32_16x16x32_f16'
    for cb in range(2): A(f'{MF} {v(W+4*cb,4)}, {v(PA,4)}, {v(Ga+4*cb,4)}, 0')
    for cb in range(2): A(f'{MF} {v(W+8+4*cb,4)}, {v(PB,4)}, {v(Ga2+4*cb,4)}, 0')
    A('COL_DONE:')
    dump(16, St, 8, 1); dump(20, PA, 16, 1); dump(24, W, 16, 1)
    for j in range(4):
        A(f'''
        v_cvt_pk_f16_f32 {v(Wh+2*j)}, {v(W+4*j)}, {v(W+4*j+1)}
        v_cvt_pk_f16_f32 {v(Wh+2*j+1)}, {v(W+4*j+2)}, {v(W+4*j+3)}
        ds_write_b64 {v(vWa1 if j < 2 else vWa2)}, {v(Wh+2*j,2)} offset:{LDS_W + 1024*(j&1)}
        ''')
    stamp(1)
    A('''
    s_waitcnt lgkmcnt(0)
    s_barrier
    ''')
    for u in range(4): A(f'ds_read_b128 {v(Wb+4*u,4)}, {v(vWr)} offset:{LDS_W + 2048*u}')
    for u in range(4):
        A(f's_waitcnt lgkmcnt({3-u})')
        A(f'{MF} {v(Dacc+4*u,4)}, {v(GR[[0,1,2,1][u]],4)}, {v(Wb+4*u,4)}, 0')
    dump(28, Dacc, 16, 1)
    for j in range(2):
        for u in range(4):
            A(f'v_cvt_pk_f16_f32 {v(Fr+4*j+u)}, {v(Dacc+4*u+2*j)}, {v(Dacc+4*u+2*j+1)}')
        A(f'buffer_store_dwordx4 {v(Fr+4*j,4)}, {v(vXout)}, {s(sW,4)}, {s(sXb)} offen offset:{512*j} sc1')
    stamp(2)
    if OPT['xp'] & 1: A('s_waitcnt vmcnt(0)')
    A(f"""
    s_cmp_ge_u32 {s(sLay)}, 2
    s_cbranch_scc1 CLRF
    s_add_u32 {s(t0)}, {s(sXb)}, {2*XSTR}
    buffer_store_dwordx4 {v(vOne,4)}, {v(vXout)}, {s(sW,4)}, {s(t0)} offen sc1
    buffer_store_dwordx4 {v(vOne,4)}, {v(vXout)}, {s(sW,4)}, {s(t0)} offen offset:512 sc1
    s_cmp_eq_u32 {s(sLay)}, 0
    s_cbranch_scc1 FLAGS
    CLR_DONE:
    s_mov_b32 {s(sCnt)}, {BOUND}
    """)
    if OPT['sl']: A(f's_sleep {OPT["sl"]}')
    else: A('s_waitcnt vmcnt(0)')
    if OPT['xp'] & 2: A('s_barrier')
    stamp(3)
    Qp = T; Q = T + 8; Vc = T + 40; Vs = T + 48; BVc = T + 56; BVs = T + 60; BVo = T + 64; CC = T + 0; SS = T + 8
    A(f"""
    XPOLL:
    buffer_load_dwordx4 {v(Qp,4)}, {v(vXin)}, {s(sW,4)}, {s(sXb)} offen sc1
    buffer_load_dwordx4 {v(Qp+4,4)}, {v(vXin)}, {s(sW,4)}, {s(sXb2)} offen sc1
    s_waitcnt vmcnt(0)
    """)
    maxall(range(Qp, Qp + 8), vt, vt2)
    poll_tail('XPOLL', 1, vt)
    stamp(4)
    if OPT['stamps']: A(f's_sub_u32 {s(56+2*9)}, {BOUND}, {s(sCnt)}')
    A(f"""
    ds_write_b128 {v(vQw)}, {v(Qp,4)}
    ds_write_b128 {v(vQw)}, {v(Qp+4,4)} offset:1024
    s_waitcnt lgkmcnt(0)
    s_barrier
    """)
    stamp(5)
    for q in range(4):
        for blk in range(2):
            A(f'ds_read_b128 {v(Q+8*q+4*blk,4)}, {v(vQr)} offset:{2048*q+256*blk}')
    for q in range(4):
        for blk in range(2):
            A(f's_waitcnt lgkmcnt({7-2*q-blk})')
            for (acc, E) in ((Vc, Ec), (Vs, Es)):
                cin = '0' if q == 0 else v(acc+4*blk,4)
                A(f'{MF} {v(acc+4*blk,4)}, {v(Q+8*q+4*blk,4)}, {v(E+4*q,4)}, {cin}')
    dump(32, Vc, 16, 1)
    for (acc, B) in ((Vc, BVc), (Vs, BVs)):
        for r in range(4):
            A(f'v_cvt_pk_f16_f32 {v(B+r)}, {v(acc+2*r)}, {v(acc+2*r+1)}')
    A(f'''
    s_cmp_eq_u32 {s(sSpec)}, 0
    s_cbranch_scc1 HSPEC
    ''')
    for mb in range(2): A(f'{MF} {v(CC+4*mb,4)}, {v(Hc+4*mb,4)}, {v(BVc,4)}, 0')
    for mb in range(2): A(f'{MF} {v(SS+4*mb,4)}, {v(Hs+4*mb,4)}, {v(BVs,4)}, 0')
    A('H_DONE:')
    dump(36, CC, 16, 1)
    U1 = T + 16; U2 = T + 24
    for p in range(4):
        A(f'v_pk_add_f32 {v(U1+2*p,2)}, {v(CC+2*p,2)}, {v(SS+2*p,2)} neg_lo:[0,1] neg_hi:[0,1]')
        A(f'v_pk_add_f32 {v(U2+2*p,2)}, {v(CC+2*p,2)}, {v(SS+2*p,2)}')
    for p in range(4):
        for k, U, M in ((0, U1, None), (1, U2, M2), (2, U2, M3), (3, U1, M4)):
            if p == 0 and M is not None:
                A(f'v_pk_fma_f32 {v(X[k],2)}, {v(U,2)}, {v(M,2)}, {v(X[k],2)}')
            else:
                A(f'v_pk_add_f32 {v(X[k]+2*p,2)}, {v(X[k]+2*p,2)}, {v(U+2*p,2)}')
    dump(2, X[0], 16, 2); dump(3, X[2], 16, 2)
    stamp(6)
    A(f'''
    s_cmp_eq_u32 {s(sLay)}, 3
    s_cbranch_scc1 FINAL
    ''')
    Sa = [T + 2 * k for k in range(4)]; Qa = [T + 8 + 2 * k for k in range(4)]
    for k in range(4):
        A(f'v_pk_add_f32 {v(Sa[k],2)}, {v(X[k],2)}, {v(X[k]+2,2)}')
        A(f'v_pk_mul_f32 {v(Qa[k],2)}, {v(X[k],2)}, {v(X[k],2)}')
    for p in range(1, 4):
        for k in range(4):
            if p > 1: A(f'v_pk_add_f32 {v(Sa[k],2)}, {v(Sa[k],2)}, {v(X[k]+2*p,2)}')
            A(f'v_pk_fma_f32 {v(Qa[k],2)}, {v(X[k]+2*p,2)}, {v(X[k]+2*p,2)}, {v(Qa[k],2)}')
    A(f'''
    s_cmp_lg_u32 {s(sSpec)}, 0
    s_cbranch_scc1 NOSWAP
    s_mov_b64 exec, {s(sRho,2)}
    v_swap_b32 {v(Sa[2])}, {v(Sa[3])}
    v_swap_b32 {v(Sa[2]+1)}, {v(Sa[3]+1)}
    v_swap_b32 {v(Qa[2])}, {v(Qa[3])}
    v_swap_b32 {v(Qa[2]+1)}, {v(Qa[3]+1)}
    s_mov_b64 exec, -1
    NOSWAP:
    v_pk_add_f32 {v(Sa[0],2)}, {v(Sa[0],2)}, {v(Sa[2],2)}
    v_pk_add_f32 {v(Sa[1],2)}, {v(Sa[1],2)}, {v(Sa[3],2)}
    v_pk_add_f32 {v(Qa[0],2)}, {v(Qa[0],2)}, {v(Qa[2],2)}
    v_pk_add_f32 {v(Qa[1],2)}, {v(Qa[1],2)}, {v(Qa[3],2)}
    v_add_f32 {v(Sa[0])}, {v(Sa[0])}, {v(Sa[0]+1)}
    v_add_f32 {v(Sa[1])}, {v(Sa[1])}, {v(Sa[1]+1)}
    v_add_f32 {v(Qa[0])}, {v(Qa[0])}, {v(Qa[0]+1)}
    v_add_f32 {v(Qa[1])}, {v(Qa[1])}, {v(Qa[1]+1)}
    v_permlane32_swap_b32 {v(Sa[0])}, {v(Sa[1])}
    v_permlane32_swap_b32 {v(Qa[0])}, {v(Qa[1])}
    v_add_f32 {v(Sa[0])}, {v(Sa[0])}, {v(Sa[1])}
    v_add_f32 {v(Qa[0])}, {v(Qa[0])}, {v(Qa[1])}
    v_permlane16_swap_b32 {v(Sa[0])}, {v(Qa[0])}
    v_add_f32 {v(Sa[0])}, {v(Sa[0])}, {v(Qa[0])}
    buffer_store_dword {v(Sa[0])}, {v(vSout)}, {s(sW,4)}, {s(sSb)} offen sc1
    s_mov_b32 {s(sCnt)}, {BOUND}
    ''')
    stamp(7)
    A('s_waitcnt vmcnt(0)')
    A('SPOLL:')
    G4 = T + 16
    for j in range(4):
        A(f'buffer_load_dwordx4 {v(G4+4*j,4)}, {v(vSin)}, {s(sW,4)}, {s(sSb)} offen offset:{1024*j} sc1')
    A('s_waitcnt vmcnt(0)')
    maxall(range(G4, G4 + 16), vt, vt2)
    poll_tail('SPOLL', 2, vt)
    stamp(8)
    if OPT['stamps']:
        A(f's_sub_u32 {s(56+2*10)}, {BOUND}, {s(sCnt)}')
        A(f's_mul_i32 {s(sLn)}, {s(sLay)}, 12')
    stamp_flush(vStamp, 11, 8, sLane=sLn)
    e, f_, u1, u2 = G4, G4 + 1, G4 + 4, G4 + 5
    A(f'''
    v_pk_add_f32 {v(G4,2)}, {v(G4,2)}, {v(G4+4,2)}
    v_pk_add_f32 {v(G4+2,2)}, {v(G4+2,2)}, {v(G4+6,2)}
    v_pk_add_f32 {v(G4+8,2)}, {v(G4+8,2)}, {v(G4+12,2)}
    v_pk_add_f32 {v(G4+10,2)}, {v(G4+10,2)}, {v(G4+14,2)}
    v_pk_add_f32 {v(G4,2)}, {v(G4,2)}, {v(G4+8,2)}
    v_pk_add_f32 {v(G4+2,2)}, {v(G4+2,2)}, {v(G4+10,2)}
    v_permlane32_swap_b32 {v(G4)}, {v(G4+2)}
    v_permlane32_swap_b32 {v(G4+1)}, {v(G4+3)}
    v_pk_add_f32 {v(G4,2)}, {v(G4,2)}, {v(G4+2,2)}
    v_mov_b64 {v(u1,2)}, {v(G4,2)}
    v_permlane16_swap_b32 {v(e)}, {v(u1)}
    v_permlane16_swap_b32 {v(f_)}, {v(u2)}
    v_pk_add_f32 {v(G4,2)}, {v(G4,2)}, {v(u1,2)}
    v_mul_f32 {v(e)}, {f32(1/1024)}, {v(e)}
    v_mul_f32 {v(f_)}, {f32(1/1024)}, {v(f_)}
    v_fma_f32 {v(f_)}, -{v(e)}, {v(e)}, {v(f_)}
    v_max_f32 {v(f_)}, 0, {v(f_)}
    v_add_f32 {v(f_)}, {f32(1e-5)}, {v(f_)}
    v_rsq_f32 {v(rR)}, {v(f_)}
    v_mul_f32 {v(cR)}, {v(e)}, {v(rR)}
    v_mov_b32 {v(rM)}, {v(rR)}
    v_mov_b32 {v(cM)}, {v(cR)}
    v_permlane32_swap_b32 {v(rR)}, {v(rM)}
    v_permlane32_swap_b32 {v(cR)}, {v(cM)}
    s_add_u32 {s(sLay)}, {s(sLay)}, 1
    s_add_u32 {s(sXb)}, {s(sXb)}, {XSTR}
    s_add_u32 {s(sXb2)}, {s(sXb2)}, {XSTR}
    s_add_u32 {s(sSb)}, {s(sSb)}, {SSTR}
    s_branch LOOP
    ''')

    A('FINAL:')
    Pk = T
    A(f's_mov_b32 {s(t3)}, {FB}')
    for k in range(4):
        for r in range(4):
            A(f'v_cvt_pk_bf16_f32 {v(Pk+4*k+r)}, {v(X[k]+2*r)}, {v(X[k]+2*r+1)}')
        A(f'buffer_store_dwordx4 {v(Pk+4*k,4)}, {v(vFout)}, {s(sW,4)}, {s(t3)} offen offset:{256*k} sc1')
    vLin, vRep, vMir, vA0, vC0, vD0 = [T + 32 + j for j in range(6)]
    relayout_addrs(vL, sBase, vLin, vRep, vMir, vA0, vC0, vD0, vt, vt2, sm)
    stamp(7)
    Fd = T + 16
    A(f"""
    s_cmp_eq_u32 {s(sR)}, 0
    s_cselect_b32 {s(t0)}, 256, 0
    s_add_u32 {s(sFo2)}, {s(t0)}, {FB+512}
    s_sub_u32 {s(sFo3)}, {FB+768}, {s(t0)}
    v_lshlrev_b32 {v(vXin)}, 4, {v(vL)}
    s_mov_b32 {s(sCnt)}, {BOUND}
    s_waitcnt vmcnt(0)
    """)
    if OPT['fp']: A(f's_sleep {OPT["fp"]}')
    A(f"""
    FPOLL:
    buffer_load_dwordx4 {v(Fd,4)}, {v(vFin)}, {s(sW,4)}, {s(t3)} offen sc1
    buffer_load_dwordx4 {v(Fd+4,4)}, {v(vFin)}, {s(sW,4)}, {s(t3)} offen offset:256 sc1
    buffer_load_dwordx4 {v(Fd+8,4)}, {v(vFin)}, {s(sW,4)}, {s(sFo2)} offen sc1
    buffer_load_dwordx4 {v(Fd+12,4)}, {v(vFin)}, {s(sW,4)}, {s(sFo3)} offen sc1
    s_waitcnt vmcnt(0)
    """)
    maxall(range(Fd, Fd + 16), vt, vt2)
    poll_tail('FPOLL', 4, vt)
    stamp(8)
    if OPT['stamps']: A(f's_sub_u32 {s(56+2*10)}, {BOUND}, {s(sCnt)}')
    for k in range(4):
        for c in range(8):
            ad, off = slot_addr(k, c, vRep, vMir, vA0, vC0, vD0)
            A(f'ds_write_b16{"_d16_hi" if c & 1 else ""} {v(ad)}, {v(Fd+4*k+c//2)} offset:{off}')
    A('s_waitcnt lgkmcnt(0)')
    for j, off in enumerate((0, 1088, ROWB, ROWB + 1088)):
        A(f'ds_read_b128 {v(Pk+4*j,4)}, {v(vLin)} offset:{off}')
    for j in range(4):
        A(f's_waitcnt lgkmcnt({3-j})')
        A(f'buffer_store_dwordx4 {v(Pk+4*j,4)}, {v(vXin)}, {s(sO,4)}, {s(sR if j < 2 else sM)} offen offset:{1024*(j&1)}')
    stamp(11)
    if OPT['stamps']: A('s_waitcnt vmcnt(0)')
    stamp(12)
    stamp_flush(vStamp, 13, 44)
    stamp_store(vStamp, vL, sW, 1, sWv, t0, t1, vt)
    A(f'''
    s_lshl_b32 {s(t0)}, {s(sN)}, 2
    s_or_b32 {s(t0)}, {s(t0)}, {s(sWv)}
    s_cmp_lg_u32 {s(t0)}, 0
    s_cbranch_scc1 NOTAG
    v_mov_b32 {v(vt)}, {s(sT)}
    v_mov_b32 {v(vt2)}, {EOFF}
    s_mov_b64 exec, 1
    buffer_store_dword {v(vt)}, {v(vt2)}, {s(sW,4)}, 0 offen sc1
    NOTAG:
    s_cmp_eq_u32 {s(sErr)}, 0
    s_cbranch_scc1 MAIN_END
    v_mov_b32 {v(vt)}, {s(sErr)}
    v_mov_b32 {v(vt2)}, 0
    s_mov_b64 exec, 1
    buffer_atomic_or {v(vt)}, {v(vt2)}, {s(sD,4)}, 0 offen
    MAIN_END:
    s_endpgm
    ''')

    A('GCOL0:')
    cls = T + 15
    B0 = T + 32
    for cb in range(2):
        A(f'''
        v_lshrrev_b32 {v(a0)}, 1, {v(vI)}
        v_cvt_f32_u32 {v(fr)}, {v(a0)}
        v_mul_f32 {v(fr)}, {f32(1/32)}, {v(fr)}
        v_add_f32 {v(fr)}, {'0' if cb == 0 else f32(0.25)}, {v(fr)}
        v_and_b32 {v(a1)}, 1, {v(vI)}
        v_lshrrev_b32 {v(cls)}, 1, {v(vG)}
        v_cmp_eq_u32 vcc, {v(a1)}, {v(cls)}
        v_mov_b32 {v(a0)}, {f32(math.sqrt(0.5))}
        v_cndmask_b32 {v(amp)}, 0, {v(a0)}, vcc
        v_mov_b32 {v(ph)}, {f32(0.125)}
        v_mov_b32 {v(voff)}, 0
        ''')
        if cb == 0:
            A(f'''
            s_mov_b32 exec_lo, 0x00030003
            s_mov_b32 exec_hi, 0x00030003
            v_mov_b32 {v(fr)}, 0.5
            v_cndmask_b32 {v(amp)}, 0.5, 0, vcc
            v_cvt_f32_u32 {v(ph)}, {v(cls)}
            v_mul_f32 {v(voff)}, {v(ph)}, {v(amp)}
            v_mul_f32 {v(ph)}, {f32(0.25)}, {v(ph)}
            s_mov_b64 exec, -1
            ''')
        A(f'''
        ; d0/32 = 8 (g&1) + 0.5 (g>>1)
        v_and_b32 {v(a0)}, 1, {v(vG)}
        v_lshl_add_u32 {v(a0)}, {v(a0)}, 4, {v(cls)}
        v_cvt_f32_u32 {v(a0)}, {v(a0)}
        v_mul_f32 {v(a0)}, 0.5, {v(a0)}
        v_mul_f32 {v(a0)}, {v(a0)}, {v(fr)}
        v_cmp_eq_u32 {s(sG0,2)}, 0, {v(vG)}
        v_mul_f32 {v(Z)}, {f32(16.0)}, {v(fr)}
        v_cndmask_b32 {v(Z)}, 0, {v(Z)}, {s(sG0,2)}
        v_sub_f32 {v(arg)}, {v(a0)}, {v(ph)}
        v_add_f32 {v(arg2)}, {v(arg)}, {v(Z)}
        v_cos_f32 {v(B0)}, {v(arg)}
        ''')
        cos_row(Ga + 4 * cb, fr, scaled=True, first=arg2)
        A(f'''
        v_fma_f32 {v(B0)}, {v(B0)}, {v(amp)}, {v(voff)}
        v_cvt_pk_f16_f32 {v(B0)}, {v(B0)}, {v(B0)}
        s_mov_b32 {s(t0)}, 0xffff
        v_bfi_b32 {v(Ga2+4*cb)}, {s(t0)}, {v(B0)}, {v(Ga+4*cb)}
        v_mov_b32 {v(Ga2+4*cb+1)}, {v(Ga+4*cb+1)}
        v_mov_b64 {v(Ga2+4*cb+2,2)}, {v(Ga+4*cb+2,2)}
        v_sub_f32 {v(arg)}, 0, {v(a0)}
        v_sub_f32 {v(arg)}, {v(arg)}, {v(ph)}
        v_sub_f32 {v(stp)}, 0, {v(fr)}
        v_add_f32 {v(arg2)}, {v(arg)}, {v(Z)}
        v_cos_f32 {v(B0)}, {v(arg2)}
        ''')
        cos_row(Gb + 4 * cb, stp, scaled=True)
        A(f'''
        v_fma_f32 {v(B0)}, {v(B0)}, {v(amp)}, {v(voff)}
        v_cvt_pk_f16_f32 {v(B0)}, {v(B0)}, {v(B0)}
        v_bfi_b32 {v(Gb2+4*cb)}, {s(t0)}, {v(B0)}, {v(Gb+4*cb)}
        v_mov_b32 {v(Gb2+4*cb+1)}, {v(Gb+4*cb+1)}
        v_mov_b64 {v(Gb2+4*cb+2,2)}, {v(Gb+4*cb+2,2)}
        ''')
    A('s_branch GCOL_DONE')
    A(f'''
    GROW0:
    v_cmp_le_u32 vcc, 2, {v(vG)}
    v_sub_f32 {v(stp)}, 0, {v(fr)}
    v_cndmask_b32 {v(stp)}, {v(fr)}, {v(stp)}, vcc
    v_sub_f32 {v(a0)}, {f32(48.0)}, {v(gf)}
    v_cndmask_b32 {v(a0)}, {v(gf)}, {v(a0)}, vcc
    v_fma_f32 {v(arg)}, {v(fr)}, {v(a0)}, -{v(ph)}
    v_cmp_eq_u32 {s(sG0,2)}, 2, {v(vG)}
    v_mul_f32 {v(Z)}, {f32(16.0)}, {v(fr)}
    v_cndmask_b32 {v(Z)}, 0, {v(Z)}, {s(sG0,2)}
    v_sub_f32 {v(arg2)}, {v(arg)}, {v(Z)}
    ''')
    cos_row(GR[0], stp, first=arg2)
    A(f'''
    v_sub_f32 {v(a0)}, {f32(47.0)}, {v(gf)}
    v_cndmask_b32 {v(a0)}, {v(gf)}, {v(a0)}, vcc
    v_fma_f32 {v(arg)}, {v(fr)}, {v(a0)}, -{v(ph)}
    ''')
    cos_row(GR[2], stp)
    A('s_branch GROW_DONE')
    A('COL0:')
    for r in range(4):
        A(f'v_cndmask_b32 {v(PC+r)}, {v(PB+r)}, {v(PA+r)}, {s(sRho,2)}')
        A(f'v_cndmask_b32 {v(PD+r)}, {v(PA+r)}, {v(PB+r)}, {s(sRho,2)}')
    z = T + 64
    A(f'''
    s_cmp_lg_u32 {s(sSpec)}, 0
    s_cbranch_scc1 COL0B
    s_mov_b64 exec, 1
    v_fma_f32 {v(z)}, {v(X[0])}, {v(rR)}, -{v(cR)}
    v_fma_f32 {v(z+1)}, {v(X[3])}, {v(rR)}, -{v(cR)}
    v_fma_f32 {v(z+2)}, {v(X[1])}, {v(rM)}, -{v(cM)}
    v_fma_f32 {v(z+3)}, {v(X[2])}, {v(rM)}, -{v(cM)}
    v_add_f32 {v(z)}, {v(z)}, {v(z)}
    v_add_f32 {v(z+1)}, {v(z+1)}, {v(z+1)}
    v_add_f32 {v(z+2)}, {v(z+2)}, {v(z+2)}
    v_add_f32 {v(z+3)}, {v(z+3)}, {v(z+3)}
    v_cvt_pk_f16_f32 {v(PA)}, {v(z)}, {v(pA+1)}
    v_cvt_pk_f16_f32 {v(PC)}, {v(z+1)}, {v(pA+1)}
    v_cvt_pk_f16_f32 {v(PB)}, {v(z+2)}, {v(pB+1)}
    v_cvt_pk_f16_f32 {v(PD)}, {v(z+3)}, {v(pB+1)}
    s_mov_b64 exec, -1
    COL0B:
    ''')
    for cb in range(2): A(f'{MF} {v(W+4*cb,4)}, {v(PA,4)}, {v(Ga+4*cb,4)}, 0')
    for cb in range(2): A(f'{MF} {v(W+8+4*cb,4)}, {v(PB,4)}, {v(Ga2+4*cb,4)}, 0')
    for cb in range(2): A(f'{MF} {v(W+4*cb,4)}, {v(PC,4)}, {v(Gb+4*cb,4)}, {v(W+4*cb,4)}')
    for cb in range(2): A(f'{MF} {v(W+8+4*cb,4)}, {v(PD,4)}, {v(Gb2+4*cb,4)}, {v(W+8+4*cb,4)}')
    A('s_branch COL_DONE')
    A(f"""
    CLRF:
    s_cmp_eq_u32 {s(sLay)}, 3
    s_cbranch_scc1 CLR_DONE
    s_lshl_b32 {s(t0)}, {s(sTau)}, 12
    s_add_u32 {s(t0)}, {s(t0)}, {s(sGb)}
    s_add_u32 {s(t0)}, {s(t0)}, {FB}
    v_lshlrev_b32 {v(vt)}, 4, {v(vL)}
    """)
    for k in range(4):
        A(f'buffer_store_dwordx4 {v(vOne,4)}, {v(vt)}, {s(sW,4)}, {s(t0)} offen offset:{1024*k} sc1')
    A('s_branch CLR_DONE')
    A(f"""
    FLAGS:
    s_mov_b32 {s(sCnt)}, {BOUND}
    s_waitcnt vmcnt(4)
    FLPOLL:
    v_cmp_ne_u32 vcc, {s(sT)}, {v(vFlagD)}
    s_cbranch_vccz CLR_DONE
    buffer_load_dword {v(vFlagD)}, {v(vFlag)}, {s(sW,4)}, {s(sHa)} offen sc1
    s_sub_u32 {s(sCnt)}, {s(sCnt)}, 1
    s_waitcnt vmcnt(0)
    s_cbranch_scc0 FLPOLL
    s_or_b32 {s(sErr)}, {s(sErr)}, 16
    s_branch CLR_DONE
    """)
    A('HSPEC:')
    for r in range(4):
        A(f'v_cndmask_b32 {v(BVo+r)}, 0, {v(BVs+r)}, {s(sRho,2)}')
        A(f'v_cndmask_b32 {v(BVs+r)}, {v(BVs+r)}, 0, {s(sRho,2)}')
    for mb in range(2): A(f'{MF} {v(CC+4*mb,4)}, {v(Hc+4*mb,4)}, {v(BVc,4)}, 0')
    for mb in range(2): A(f'{MF} {v(SS+4*mb,4)}, {v(Hs+4*mb,4)}, {v(BVs,4)}, 0')
    for mb in range(2): A(f'{MF} {v(SS+4*mb,4)}, {v(Hc+4*mb,4)}, {v(BVo,4)}, {v(SS+4*mb,4)}')
    A('s_branch H_DONE')
    A('EHGEN:')
    tf = T + 0; t32 = T + 1; an = T + 2; cs = T + 4; sn = T + 5; e0 = T + 6; e1 = T + 7; gfl = T + 8; an1 = T + 9; an2 = T + 10
    sgn = T + 11
    A(f'''
    s_lshr_b32 {s(t0)}, {s(sWv)}, 1
    s_and_b32 {s(t1)}, {s(sWv)}, 1
    s_lshl_b32 {s(t2)}, {s(t0)}, 5
    s_add_u32 {s(t2)}, {s(t2)}, {s(sK)}
    s_lshl_b32 {s(t3)}, {s(t1)}, 10
    s_add_u32 {s(t2)}, {s(t2)}, {s(t3)}
    s_add_u32 {s(t3)}, {s(t3)}, 16
    s_lshl_b32 {s(t1)}, {s(t1)}, 5
    s_cmp_eq_u32 {s(t0)}, 1
    s_cselect_b32 {s(t1)}, {s(t3)}, {s(t1)}
    s_cselect_b32 {s(sEA)}, 0, {f32(1/16)}
    s_cselect_b32 {s(sEC)}, {f32(1/16)}, 0
    s_cmp_eq_u32 {s(sK)}, 0
    s_cselect_b32 {s(t2)}, {s(t1)}, {s(t2)}
    s_cselect_b32 {s(sEA)}, {s(sEA)}, {f32(1/16)}
    s_cselect_b32 {s(sEC)}, {s(sEC)}, 0
    s_cselect_b32 {s(sEB)}, 0, {f32(-1/16)}
    s_cselect_b32 {s(sEnB)}, 0, {f32(1/16)}
    v_lshlrev_b32 {v(tf)}, 6, {v(vI)}
    v_add_u32 {v(tf)}, {s(t2)}, {v(tf)}
    v_cvt_f32_u32 {v(tf)}, {v(tf)}
    v_cvt_f32_u32 {v(gfl)}, {v(vG)}
    v_mul_f32 {v(tf)}, {f32(1/2048)}, {v(tf)}
    v_mul_f32 {v(t32)}, {f32(32.0)}, {v(tf)}
    v_cmp_eq_u32 {s(sG0,2)}, 0, {v(vG)}
    s_mov_b32 {s(t0)}, 0x80008000
    ''')
    def e_pair(ang, dc, ds_):
        A(f'''
        v_cos_f32 {v(cs)}, {v(ang)}
        v_sin_f32 {v(sn)}, {v(ang)}
        v_mul_f32 {v(e0)}, {s(sEA)}, {v(cs)}
        v_mul_f32 {v(e1)}, {s(sEC)}, {v(cs)}
        v_fmac_f32 {v(e1)}, {s(sEB)}, {v(sn)}
        v_cvt_pk_f16_f32 {v(dc)}, {v(e0)}, {v(e1)}
        v_mul_f32 {v(e0)}, {s(sEA)}, {v(sn)}
        v_mul_f32 {v(e1)}, {s(sEC)}, {v(sn)}
        v_fmac_f32 {v(e1)}, {s(sEnB)}, {v(cs)}
        v_cvt_pk_f16_f32 {v(ds_)}, {v(e0)}, {v(e1)}
        ''')
    for q in range(4):
        if q == 0:
            A(f'''
            v_mul_f32 {v(an)}, {v(tf)}, {v(gfl)}
            v_mul_f32 {v(an1)}, 0.5, {v(t32)}
            v_cndmask_b32 {v(an1)}, {v(t32)}, {v(an1)}, {s(sG0,2)}
            v_add_f32 {v(an1)}, {v(an1)}, {v(an)}
            v_cndmask_b32 {v(an2)}, {v(an)}, {v(t32)}, {s(sG0,2)}
            v_mov_b32 {v(sgn)}, {s(t0)}
            v_cndmask_b32 {v(sgn)}, {v(sgn)}, 0, {s(sG0,2)}
            ''')
            e_pair(an, Ec, Es); e_pair(an1, Ec + 1, Es + 1); e_pair(an2, Ec + 2, Es + 2)
            A(f'''
            v_xor_b32 {v(Es+2)}, {v(sgn)}, {v(Es+2)}
            v_mov_b32 {v(Ec+3)}, {v(Ec+1)}
            v_xor_b32 {v(Es+3)}, {s(t0)}, {v(Es+1)}
            ''')
        else:
            A(f'''
            v_fmac_f32 {v(an)}, 4.0, {v(tf)}
            v_add_f32 {v(an1)}, {v(an)}, {v(t32)}
            ''')
            e_pair(an, Ec + 4 * q, Es + 4 * q); e_pair(an1, Ec + 4 * q + 1, Es + 4 * q + 1)
            A(f'''
            v_mov_b64 {v(Ec+4*q+2,2)}, {v(Ec+4*q,2)}
            v_xor_b32 {v(Es+4*q+2)}, {s(t0)}, {v(Es+4*q)}
            v_xor_b32 {v(Es+4*q+3)}, {s(t0)}, {v(Es+4*q+1)}
            ''')
    A(f'''
    s_and_b32 exec_lo, {s(sRho)}, 0x00010000
    s_mov_b32 exec_hi, exec_lo
    ''')
    for r in range(16):
        A(f'v_mov_b32 {v(Ec+r)}, 0')
        A(f'v_mov_b32 {v(Es+r)}, 0xac00')
    A('s_mov_b64 exec, -1')
    hA = T + 12; hB = T + 13; hC = T + 14; hO = T + 15; ef = T + 16; ls = T + 18; mu = T + 22; sg = T + 23; hnB = T + 24
    A(f'''
    v_lshrrev_b32 {v(mu)}, 2, {v(vI)}
    v_lshlrev_b32 {v(mu)}, 3, {v(mu)}
    v_and_b32 {v(e0)}, 3, {v(vI)}
    v_add_u32 {v(mu)}, {v(mu)}, {v(e0)}
    v_lshlrev_b32 {v(ef)}, 5, {v(mu)}
    v_add_u32 {v(ef)}, {s(sL)}, {v(ef)}
    v_add_u32 {v(ef+1)}, 128, {v(ef)}
    v_mov_b32 {v(hA)}, {f32(16.0)}
    v_mov_b32 {v(hB)}, {f32(-16.0)}
    v_mov_b32 {v(hC)}, 0
    v_mov_b32 {v(hO)}, 0
    s_cmp_eq_u32 {s(sL)}, 0
    s_cselect_b32 exec_lo, 0xff00ff00, 0
    s_mov_b32 exec_hi, exec_lo
    v_subrev_u32 {v(ef)}, {512-16}, {v(ef)}
    v_subrev_u32 {v(ef+1)}, {512-16}, {v(ef+1)}
    v_mov_b32 {v(hA)}, 0
    v_mov_b32 {v(hB)}, 0
    v_mov_b32 {v(hC)}, {f32(16.0)}
    s_cselect_b32 exec_lo, 0x00ff00ff, 0
    s_mov_b32 exec_hi, exec_lo
    v_mov_b32 {v(hB)}, 0
    v_mov_b32 {v(hO)}, {f32(-16.0)}
    s_cselect_b32 exec_lo, 0x00010001, 0
    s_mov_b32 exec_hi, exec_lo
    v_mov_b32 {v(ef)}, 512
    s_mov_b64 exec, -1
    v_cvt_f32_u32 {v(ef)}, {v(ef)}
    v_cvt_f32_u32 {v(ef+1)}, {v(ef+1)}
    v_sub_f32 {v(hnB)}, 0, {v(hB)}
    v_mul_f32 {v(ef)}, {f32(1/1024)}, {v(ef)}
    v_mul_f32 {v(ef+1)}, {f32(1/1024)}, {v(ef+1)}
    v_add_f32 {v(ls)}, {v(gfl)}, {v(gfl)}
    v_add_f32 {v(ls+1)}, 1.0, {v(ls)}
    v_add_f32 {v(ls+2)}, {f32(8.0)}, {v(ls)}
    v_add_f32 {v(ls+3)}, {f32(9.0)}, {v(ls)}
    ''')
    for mb in range(2):
        for d in range(4):
            A(f'''
            v_mul_f32 {v(an)}, {v(ef+mb)}, {v(ls+d)}
            v_cos_f32 {v(cs)}, {v(an)}
            v_sin_f32 {v(sn)}, {v(an)}
            v_fma_f32 {v(e0)}, {v(hA)}, {v(cs)}, {v(hO)}
            v_mul_f32 {v(e1)}, {v(hC)}, {v(cs)}
            v_fmac_f32 {v(e1)}, {v(hB)}, {v(sn)}
            v_cvt_pk_f16_f32 {v(Hc+4*mb+d)}, {v(e0)}, {v(e1)}
            v_mul_f32 {v(e0)}, {v(hA)}, {v(sn)}
            v_mul_f32 {v(e1)}, {v(hC)}, {v(sn)}
            v_fmac_f32 {v(e1)}, {v(hnB)}, {v(cs)}
            v_cvt_pk_f16_f32 {v(Hs+4*mb+d)}, {v(e0)}, {v(e1)}
            ''')
    A(f'''
    v_and_b32 {v(sg)}, 1, {v(vI)}
    v_cvt_f32_u32 {v(sg)}, {v(sg)}
    v_fma_f32 {v(sg)}, {v(sg)}, -2.0, 1.0
    v_add_f32 {v(e0)}, {v(hnB)}, {v(hO)}
    v_fma_f32 {v(e0)}, -{v(hO)}, {v(sg)}, {v(e0)}
    v_fma_f32 {v(e1)}, {v(hnB)}, {v(sg)}, {v(hC)}
    v_fma_f32 {v(cs)}, {v(hC)}, {v(sg)}, {v(hnB)}
    v_mul_f32 {v(sn)}, {v(hnB)}, {v(sg)}
    s_mov_b64 exec, 0xffff
    v_cvt_pk_f16_f32 {v(Hc)}, {v(e0)}, {v(e1)}
    v_cvt_pk_f16_f32 {v(Hc+4)}, {v(e0)}, {v(e1)}
    v_cvt_pk_f16_f32 {v(Hs)}, {v(cs)}, {v(sn)}
    v_cvt_pk_f16_f32 {v(Hs+4)}, {v(cs)}, {v(sn)}
    s_mov_b64 exec, -1
    ''')
    if OPT['debug'] >= 2:
        dump(10, Ga, 16); dump(11, Gb, 16); dump(12, GR[0], 12); dump(13, Ec, 16); dump(14, Es, 16); dump(15, Hc, 16)
    A('s_branch EH_DONE')
    return V.hi

def descriptor(name, nv):
    nv = (nv + 7) // 8 * 8
    return f'''.section .rodata,"a"
.p2align 6
.amdhsa_kernel {name}
  .amdhsa_next_free_vgpr {nv}
  .amdhsa_next_free_sgpr 96
  .amdhsa_accum_offset {nv}
  .amdhsa_group_segment_fixed_size 0
  .amdhsa_kernarg_size 104
  .amdhsa_user_sgpr_count 2
  .amdhsa_user_sgpr_kernarg_segment_ptr 1
  .amdhsa_system_sgpr_workgroup_id_x 1
.end_amdhsa_kernel
'''

hdr = open('cdna_kernels/' + NAME + '.s.ref').read().split('; Override launch')[0]
nv2 = gen_main()
npad = A.pad()
out = hdr
out += f'; @launch grid=(256,1,1) block=(256,1,1) lds={LDS_MAIN}\n'
out += '.amdgcn_target "amdgcn-amd-amdhsa--gfx950"\n.text\n'
out += A.text()
out += descriptor(MAIN, nv2)
open(sys.argv[1], 'w').write(out)
print('vgprs', nv2, 'pad states', npad, 'lines', out.count('\n'))
```

```python
import sys, math
sys.path.insert(0, 'work')
from asmlib import *

NAME = 'interleave_layers__spectral_fnet__spectral_fnet__prompt'
MAIN = NAME + '_kernel'
WS_SIZE = 0x2000000
GSH = 21
H0B, FLG, EOFF, SB, XB, FB, DUMPB = 0, 0x60000, 0x68000, 0x70000, 0x80000, 0x100000, 0x2000000
SSTR, XSTR = 0x4000, 0x20000
HWG, HSL = 24576, 384
LDS_W, LDS_Q, LDS_R = 0, 8192, 16384
ROWB = 2176
LDS_MAIN = LDS_R + 4 * 2 * ROWB
BOUND = 20000
OPT = dict(debug=0, stamps=0, xp=0, sl=0, fp=0, hp=0)
for a in sys.argv[2:]:
    k, val = a.split('='); OPT[k] = int(val)

if OPT['debug']: WS_SIZE = 0x10000000
A = Asm()

def wg_indices(sK, sL, sN, sT):
    A(f'''
    s_and_b32 {s(sK)}, s2, 7
    s_lshl_b32 {s(sK)}, {s(sK)}, 1
    s_bfe_u32 {s(sT)}, s2, 0x10003
    s_or_b32 {s(sK)}, {s(sK)}, {s(sT)}
    s_lshr_b32 {s(sL)}, s2, 4
    s_lshl_b32 {s(sN)}, {s(sK)}, 4
    s_or_b32 {s(sN)}, {s(sN)}, {s(sL)}
    ''')

def rows_scalar(sK, sTau, sR, sM, t0, t1):
    A(f'''
    s_lshr_b32 {s(t0)}, {s(sTau)}, 5
    s_and_b32 {s(t1)}, {s(sTau)}, 31
    s_lshl_b32 {s(sR)}, {s(t1)}, 6
    s_lshl_b32 {s(sM)}, {s(t0)}, 5
    s_add_u32 {s(sM)}, {s(sM)}, {s(sK)}
    s_cmp_ge_u32 {s(t1)}, 16
    s_cselect_b32 {s(t1)}, -992, 0
    s_cmp_eq_u32 {s(t0)}, 1
    s_cselect_b32 {s(t1)}, 16, {s(t1)}
    s_cmp_eq_u32 {s(sK)}, 0
    s_cselect_b32 {s(sM)}, {s(t1)}, {s(sM)}
    s_add_u32 {s(sR)}, {s(sR)}, {s(sM)}
    s_sub_u32 {s(sM)}, 2048, {s(sR)}
    s_cmp_eq_u32 {s(sR)}, 0
    s_cselect_b32 {s(sM)}, 1024, {s(sM)}
    s_lshl_b32 {s(sR)}, {s(sR)}, 11
    s_lshl_b32 {s(sM)}, {s(sM)}, 11
    ''')

def relayout_addrs(vL, sBase, vLin, vRep, vMir, vA0, vC0, vD0, t0, t1, sm):
    def pos(dst, col, tmp):
        A(f'''
        v_lshrrev_b32 {v(tmp)}, 8, {v(col)}
        v_lshlrev_b32 {v(tmp)}, 5, {v(tmp)}
        v_lshl_add_u32 {v(dst)}, {v(col)}, 1, {v(tmp)}
        v_add_u32 {v(dst)}, {s(sBase)}, {v(dst)}
        ''')
    A(f'''
    v_lshrrev_b32 {v(t0)}, 5, {v(vL)}
    v_lshlrev_b32 {v(t0)}, 5, {v(t0)}
    v_lshl_add_u32 {v(vLin)}, {v(vL)}, 4, {v(t0)}
    v_add_u32 {v(vLin)}, {s(sBase)}, {v(vLin)}
    v_and_b32 {v(t0)}, 3, {v(vL)}
    v_lshlrev_b32 {v(t0)}, 8, {v(t0)}
    v_lshrrev_b32 {v(t1)}, 2, {v(vL)}
    v_add_u32 {v(vA0)}, {v(t0)}, {v(t1)}
    v_and_b32 {v(t0)}, 1, {v(vL)}
    v_lshlrev_b32 {v(t0)}, 8, {v(t0)}
    v_and_b32 {v(t1)}, 2, {v(vL)}
    v_lshl_add_u32 {v(t0)}, {v(t1)}, 3, {v(t0)}
    v_cmp_gt_u32 {s(sm,2)}, 4, {v(vL)}
    v_cndmask_b32 {v(vA0)}, {v(vA0)}, {v(t0)}, {s(sm,2)}
    ''')
    pos(vRep, vA0, t0)
    A(f'v_sub_u32 {v(t1)}, {1024-224}, {v(vA0)}')
    pos(vMir, t1, t0)
    A(f'''
    v_sub_u32 {v(t1)}, 1024, {v(vA0)}
    v_and_b32 {v(t1)}, 1023, {v(t1)}
    ''')
    pos(vC0, t1, t0)
    A(f'''
    v_cmp_eq_u32 {s(sm,2)}, 0, {v(vL)}
    v_mov_b32 {v(t0)}, {2*512+64}
    v_cndmask_b32 {v(t0)}, 0, {v(t0)}, {s(sm,2)}
    v_add_u32 {v(vA0)}, {v(vRep)}, {v(t0)}
    v_add_u32 {v(vD0)}, {v(vC0)}, {v(t0)}
    ''')

def slot_addr(k, c, vRep, vMir, vA0, vC0, vD0):
    row = ROWB if k in (1, 3) else 0
    if c == 0:
        return [(vA0, 0), (vRep, ROWB), (vC0, 0), (vD0, ROWB)][k]
    if k < 2: return (vRep, row + 64 * c)
    return (vMir, row + 64 * (7 - c))

def red64x2(a, b, u):
    A(f'''
    v_permlane32_swap_b32 {v(a)}, {v(b)}
    v_add_f32 {v(a)}, {v(a)}, {v(b)}
    v_add_f32_dpp {v(a)}, {v(a)}, {v(a)} row_ror:8 row_mask:0xf bank_mask:0xf
    v_add_f32_dpp {v(a)}, {v(a)}, {v(a)} row_ror:4 row_mask:0xf bank_mask:0xf
    v_add_f32_dpp {v(a)}, {v(a)}, {v(a)} row_ror:2 row_mask:0xf bank_mask:0xf
    v_add_f32_dpp {v(a)}, {v(a)}, {v(a)} row_ror:1 row_mask:0xf bank_mask:0xf
    v_mov_b32 {v(u)}, {v(a)}
    v_permlane16_swap_b32 {v(a)}, {v(u)}
    v_add_f32 {v(a)}, {v(a)}, {v(u)}
    ''')

STB = 0x180000
def stamp(idx, base=56):
    if OPT['stamps']: A(f's_memrealtime {s(base+2*idx,2)}')
def stamp_flush(vS, n, lane0, base=56, sLane=None, tmp=None):
    if not OPT['stamps']: return
    A('s_waitcnt lgkmcnt(0)')
    for k in range(n):
        if sLane is None: A(f'v_writelane_b32 {v(vS)}, {s(base+2*k)}, {lane0+k}')
        else:
            A(f's_add_u32 m0, {s(sLane)}, {lane0+k}')
            A(f'v_writelane_b32 {v(vS)}, {s(base+2*k)}, m0')
def stamp_store(vS, vL, sW, which, sWv, t0, t1, vt):
    if not OPT['stamps']: return
    A(f'''
    s_mov_b64 exec, -1
    s_lshl_b32 {s(t0)}, s2, 10
    s_lshl_b32 {s(t1)}, {s(sWv)}, 8
    s_add_u32 {s(t0)}, {s(t0)}, {s(t1)}
    s_add_u32 {s(t0)}, {s(t0)}, {STB}
    v_lshlrev_b32 {v(vt)}, 2, {v(vL)}
    buffer_store_dword {v(vS)}, {v(vt)}, {s(sW,4)}, {s(t0)} offen
    ''')

def kernel_head(name):
    A.raw(f'.globl {name}\n.p2align 8\n.type {name},@function\n{name}:')
    A.raw('.KERNEL')

def gen_main():
    kernel_head(MAIN)
    V = Regs('v', 1, 256)
    sW, sO, sD, sX = 4, 8, 12, 84
    (sK, sL, sN, sWv, sLay, sXb, sXb2, sSb, sCnt, sErr, t0, t1, t2, t3, sSpec, sEA, sEB, sEC, sEnB, sTau, sR, sM,
     sBase, sFo2, sFo3, sT) = range(16, 42)
    sGb, sHa, sHb, sHin = 50, 51, 53, 55
    sRho = 42
    sm = 44; sm2 = 46; sG0 = 48
    vL = V.alloc(); vI = V.alloc(); vG = V.alloc()
    vXin = V.alloc(); vXout = V.alloc(); vSout = V.alloc(); vSin = V.alloc(); vFout = V.alloc(); vFin = V.alloc()
    vWa1 = V.alloc(); vWa2 = V.alloc(); vWr = V.alloc(); vQw = V.alloc(); vQr = V.alloc()
    vDump = V.alloc(); vFlag = V.alloc(); vFlagD = V.alloc()
    vOne = V.alloc(4, 4)
    X = [V.alloc(8, 4) for _ in range(4)]
    Ga = V.alloc(8, 4); Ga2 = V.alloc(8, 4); Gb = V.alloc(8, 4); Gb2 = V.alloc(8, 4)
    GR = [V.alloc(4, 4) for _ in range(3)]
    Ec = V.alloc(16, 4); Es = V.alloc(16, 4); Hc = V.alloc(8, 4); Hs = V.alloc(8, 4)
    M2 = V.alloc(2, 2); M3 = V.alloc(2, 2); M4 = V.alloc(2, 2)
    St = V.alloc(4, 4)
    Ps = V.alloc(2, 2); Pc = V.alloc(2, 2)
    T = V.alloc(80, 4)

    def poll_tail(lab, code, vt):
        done = A.newlabel('DONE')
        A(f'''
        v_cmp_eq_u32 vcc, -1, {v(vt)}
        s_sub_u32 {s(sCnt)}, {s(sCnt)}, 1
        s_cbranch_vccz {done}
        s_cbranch_scc0 {lab}
        s_or_b32 {s(sErr)}, {s(sErr)}, {code}
        {done}:
        ''')
    def maxall(regs, vt, vt2):
        regs = list(regs)
        accs = [vt, vt2]; first = [True, True]; k = 0
        while regs:
            a = accs[k]
            if first[k]:
                if len(regs) >= 3: A(f'v_max3_u32 {v(a)}, {v(regs[0])}, {v(regs[1])}, {v(regs[2])}'); regs = regs[3:]
                else: raise Exception
                first[k] = False
            elif len(regs) >= 2: A(f'v_max3_u32 {v(a)}, {v(a)}, {v(regs[0])}, {v(regs[1])}'); regs = regs[2:]
            else: A(f'v_max_u32 {v(a)}, {v(a)}, {v(regs[0])}'); regs = regs[1:]
            k ^= 1
        A(f'v_max_u32 {v(vt)}, {v(vt)}, {v(vt2)}')
    sDbg = 52
    def dump(slot, reg, n, lay=0):
        if not OPT['debug']: return
        A(f's_mul_i32 {s(sDbg)}, {s(sLay)}, {lay * 0x400000}')
        A(f's_add_u32 {s(sDbg)}, {s(sDbg)}, {DUMPB + slot * 0x400000}')
        for r in range(0, n, 4):
            A(f'buffer_store_dwordx4 {v(reg+r,4)}, {v(vDump)}, {s(sW,4)}, {s(sDbg)} offen offset:{4*r}')
        A('s_waitcnt vmcnt(0)')
    vStamp = V.alloc()

    sLn = 54
    stamp(0)
    tau = T + 1; a0 = T + 2; a1 = T + 3
    vL16 = T + 16; vRow = X[0]
    A(f"""
    s_cmp_ge_u32 s2, 256
    s_cbranch_scc1 MAIN_END
    s_load_dwordx2 {s(sX,2)}, s[0:1], 0
    s_load_dwordx2 {s(sW,2)}, s[0:1], 96
    s_load_dwordx4 {s(sO,4)}, s[0:1], 80
    v_lshrrev_b32 {v(T)}, 6, v0
    v_and_b32 {v(vL)}, 63, v0
    v_readfirstlane_b32 {s(sWv)}, {v(T)}
    s_mov_b32 {s(sX+2)}, 0x400000
    s_mov_b32 {s(sX+3)}, 0x00020000
    s_mov_b32 {s(sW+2)}, {WS_SIZE}
    s_mov_b32 {s(sW+3)}, 0x00020000
    v_lshlrev_b32 {v(vL16)}, 4, {v(vL)}
    """)
    wg_indices(sK, sL, sN, t0)
    A(f"""
    s_lshl_b32 {s(sTau)}, {s(sL)}, 2
    s_add_u32 {s(sTau)}, {s(sTau)}, {s(sWv)}
    """)
    rows_scalar(sK, sTau, sR, sM, t0, t1)
    A(f"""
    v_and_b32 {v(vI)}, 15, v0
    v_lshrrev_b32 {v(vG)}, 4, {v(vL)}
    s_lshl_b32 {s(sGb)}, {s(sK)}, {GSH}
    s_waitcnt lgkmcnt(0)
    buffer_load_dwordx4 {v(vRow,4)}, {v(vL16)}, {s(sX,4)}, {s(sR)} offen
    buffer_load_dwordx4 {v(vRow+4,4)}, {v(vL16)}, {s(sX,4)}, {s(sR)} offen offset:1024
    buffer_load_dwordx4 {v(vRow+8,4)}, {v(vL16)}, {s(sX,4)}, {s(sM)} offen
    buffer_load_dwordx4 {v(vRow+12,4)}, {v(vL16)}, {s(sX,4)}, {s(sM)} offen offset:1024
    s_load_dword {s(sT)}, {s(sW,2)}, {EOFF}
    s_mov_b32 {s(sD)}, {s(sO+2)}
    s_mov_b32 {s(sD+1)}, {s(sO+3)}
    s_mov_b32 {s(sO+2)}, 0x400000
    s_mov_b32 {s(sO+3)}, 0x00020000
    s_mov_b32 {s(sD+2)}, 256
    s_mov_b32 {s(sD+3)}, 0x00020000
    v_mov_b32 {v(vOne)}, -1
    v_mov_b32 {v(vOne+1)}, -1
    v_mov_b32 {v(vOne+2)}, -1
    v_mov_b32 {v(vOne+3)}, -1
    s_lshl_b32 {s(t0)}, {s(sL)}, 13
    s_add_u32 {s(t0)}, {s(t0)}, {s(sGb)}
    s_lshr_b32 {s(t1)}, {s(sWv)}, 1
    s_lshl_b32 {s(t1)}, {s(t1)}, 12
    s_add_u32 {s(t0)}, {s(t0)}, {s(t1)}
    s_and_b32 {s(t1)}, {s(sWv)}, 1
    s_lshl_b32 {s(t2)}, {s(t1)}, 8
    s_add_u32 {s(t0)}, {s(t0)}, {s(t2)}
    v_lshlrev_b32 {v(a0)}, 4, {v(vI)}
    v_lshl_add_u32 {v(vXout)}, {v(vG)}, 10, {v(a0)}
    v_add_u32 {v(vXout)}, {s(t0)}, {v(vXout)}
    s_mov_b32 {s(sXb)}, {XB}
    s_mov_b32 {s(sXb2)}, {XB + (2 << GSH)}
    buffer_store_dwordx4 {v(vOne,4)}, {v(vXout)}, {s(sW,4)}, {s(sXb)} offen sc1
    buffer_store_dwordx4 {v(vOne,4)}, {v(vXout)}, {s(sW,4)}, {s(sXb)} offen offset:512 sc1
    s_lshl_b32 {s(t0)}, {s(sL)}, 10
    s_min_u32 {s(t2)}, {s(sWv)}, 2
    s_mul_i32 {s(t2)}, {s(t2)}, {SSTR}
    s_add_u32 {s(t0)}, {s(t0)}, {s(sGb)}
    s_add_u32 {s(t2)}, {s(t2)}, {s(t0)}
    s_add_u32 {s(t2)}, {s(t2)}, {SB}
    buffer_store_dwordx4 {v(vOne,4)}, {v(vL16)}, {s(sW,4)}, {s(t2)} offen sc1
    s_mov_b32 {s(sErr)}, 0
    s_mov_b32 {s(sLay)}, 0
    s_mov_b32 {s(sSb)}, {SB}
    ; tau = 16 w + i
    s_lshl_b32 {s(t2)}, {s(sWv)}, 4
    v_add_u32 {v(tau)}, {s(t2)}, {v(vI)}
    v_lshlrev_b32 {v(a1)}, 4, {v(tau)}
    v_lshl_add_u32 {v(vSout)}, {v(vG)}, 2, {v(a1)}
    v_add_u32 {v(vSout)}, {s(t0)}, {v(vSout)}
    v_lshl_add_u32 {v(vSin)}, {v(vG)}, 12, {v(a1)}
    v_add_u32 {v(vSin)}, {s(sGb)}, {v(vSin)}
    v_lshrrev_b32 {v(a0)}, 5, {v(vL)}
    v_lshlrev_b32 {v(vXin)}, {GSH}, {v(a0)}
    v_bfe_u32 {v(a0)}, {v(vL)}, 1, 4
    v_lshl_add_u32 {v(vXin)}, {v(a0)}, 13, {v(vXin)}
    v_and_b32 {v(a0)}, 1, {v(vL)}
    v_lshl_add_u32 {v(vXin)}, {v(a0)}, 4, {v(vXin)}
    s_lshl_b32 {s(t2)}, {s(sWv)}, {GSH+2}
    s_lshl_b32 {s(t3)}, {s(sN)}, 5
    s_add_u32 {s(t2)}, {s(t2)}, {s(t3)}
    v_add_u32 {v(vXin)}, {s(t2)}, {v(vXin)}
    s_lshl_b32 {s(t2)}, {s(sWv)}, 11
    s_add_u32 {s(t2)}, {s(t2)}, {LDS_Q}
    v_add_u32 {v(vQw)}, {s(t2)}, {v(vL16)}
    v_lshrrev_b32 {v(a0)}, 2, {v(tau)}
    v_lshlrev_b32 {v(vFout)}, 14, {v(a0)}
    v_and_b32 {v(a0)}, 3, {v(vI)}
    v_lshl_add_u32 {v(vFout)}, {v(a0)}, 6, {v(vFout)}
    v_lshl_add_u32 {v(vFout)}, {v(vG)}, 4, {v(vFout)}
    v_add_u32 {v(vFout)}, {s(t0)}, {v(vFout)}
    v_lshrrev_b32 {v(a0)}, 2, {v(vL)}
    v_lshlrev_b32 {v(vFin)}, 10, {v(a0)}
    v_and_b32 {v(a0)}, 3, {v(vL)}
    v_lshl_add_u32 {v(vFin)}, {v(a0)}, 4, {v(vFin)}
    s_lshl_b32 {s(t2)}, {s(sL)}, 14
    s_add_u32 {s(t2)}, {s(t2)}, {s(sGb)}
    s_lshl_b32 {s(t3)}, {s(sWv)}, 6
    s_add_u32 {s(t2)}, {s(t2)}, {s(t3)}
    v_add_u32 {v(vFin)}, {s(t2)}, {v(vFin)}
    """)
    A(f'''
    v_lshlrev_b32 {v(a0)}, 4, {v(vI)}
    v_lshl_add_u32 {v(vWr)}, {v(vG)}, 8, {v(a0)}
    v_lshl_add_u32 {v(vQr)}, {v(vG)}, 9, {v(a0)}
    s_lshl_b32 {s(t2)}, {s(t1)}, 10
    v_add_u32 {v(vWr)}, {s(t2)}, {v(vWr)}
    v_add_u32 {v(vQr)}, {LDS_Q}, {v(vQr)}
    v_lshrrev_b32 {v(a1)}, 1, {v(vG)}
    v_lshl_add_u32 {v(a0)}, {v(a1)}, 8, {v(a0)}
    v_and_b32 {v(a1)}, 1, {v(vG)}
    v_lshl_add_u32 {v(a0)}, {v(a1)}, 3, {v(a0)}
    s_lshr_b32 {s(t0)}, {s(sWv)}, 1
    s_lshl_b32 {s(t0)}, {s(t0)}, 11
    s_lshl_b32 {s(t2)}, {s(t1)}, 9
    s_add_u32 {s(t0)}, {s(t0)}, {s(t2)}
    s_lshl_b32 {s(t2)}, {s(sWv)}, 12
    s_lshl_b32 {s(t3)}, {s(sK)}, 2
    s_or_b32 {s(sSpec)}, {s(t3)}, {s(sWv)}
    s_cmp_lt_u32 {s(sSpec)}, 2
    s_cselect_b32 {s(t0)}, {s(t2)}, {s(t0)}
    s_cselect_b32 {s(t2)}, 1, 8
    s_lshl_b32 {s(t2)}, {s(t2)}, 9
    s_add_u32 {s(t2)}, {s(t2)}, {s(t0)}
    v_add_u32 {v(vWa1)}, {s(t0)}, {v(a0)}
    v_add_u32 {v(vWa2)}, {s(t2)}, {v(a0)}
    s_cmp_eq_u32 {s(sSpec)}, 0
    s_cselect_b32 {s(sRho)}, 0x00010001, 0
    s_mov_b32 {s(sRho+1)}, {s(sRho)}
    v_mov_b32 {v(M2)}, 1.0
    v_mov_b32 {v(M2+1)}, 1.0
    v_mov_b32 {v(M3)}, 1.0
    v_mov_b32 {v(M3+1)}, 1.0
    v_mov_b32 {v(M4)}, 1.0
    v_mov_b32 {v(M4+1)}, 1.0
    s_cmp_eq_u32 {s(sL)}, 0
    s_cselect_b32 exec_lo, 0xffff, 0
    s_mov_b32 exec_hi, 0
    v_mov_b32 {v(M2)}, 0
    v_mov_b32 {v(M3)}, 0
    s_and_b32 exec_lo, exec_lo, {s(sRho)}
    v_mov_b32 {v(M3)}, 1.0
    v_mov_b32 {v(M4)}, 0
    s_mov_b64 exec, -1
    v_mov_b32 {v(vStamp)}, 0
    ''')
    if OPT['debug']:
        A(f'''
        s_lshl_b32 {s(t0)}, {s(sN)}, 8
        v_add_u32 {v(vDump)}, {s(t0)}, v0
        v_lshlrev_b32 {v(vDump)}, 6, {v(vDump)}
        ''')

    stamp(1)
    fr = T + 4; ph = T + 5; arg = T + 6; c0 = T + 8; stp = T + 7; gf = T + 10; amp = T + 11; voff = T + 12; Z = T + 13; arg2 = T + 14
    def f_ph(x_sgpr_or_imm):
        A(f'''
        v_lshrrev_b32 {v(a0)}, 1, {v(vI)}
        v_cvt_f32_u32 {v(fr)}, {v(a0)}
        v_and_b32 {v(a1)}, 1, {v(vI)}
        v_cvt_f32_u32 {v(ph)}, {v(a1)}
        v_mul_f32 {v(fr)}, {f32(1/32)}, {v(fr)}
        v_mul_f32 {v(ph)}, {f32(0.25)}, {v(ph)}
        v_add_f32 {v(fr)}, {x_sgpr_or_imm}, {v(fr)}
        v_cmp_eq_f32 vcc, 0, {v(fr)}
        v_cndmask_b32 {v(a0)}, 0, {v(ph)}, vcc
        v_fmac_f32 {v(fr)}, 2.0, {v(a0)}
        v_sub_f32 {v(ph)}, {v(ph)}, {v(a0)}
        ''')
    def cos_row(dst, step, scaled=False, first=None):
        for c in range(8):
            src = first if (c == 0 and first is not None) else arg
            A(f'v_cos_f32 {v(c0 + (c & 1))}, {v(src)}')
            if c < 7: A(f'v_add_f32 {v(arg)}, {v(arg)}, {v(step)}')
            if scaled: A(f'v_fma_f32 {v(c0 + (c & 1))}, {v(c0 + (c & 1))}, {v(amp)}, {v(voff)}')
            if c & 1: A(f'v_cvt_pk_f16_f32 {v(dst + c // 2)}, {v(c0)}, {v(c0+1)}')
    A(f'''
    v_cvt_f32_u32 {v(gf)}, {v(vG)}
    v_mul_f32 {v(gf)}, {f32(8.0)}, {v(gf)}
    s_cmp_eq_u32 {s(sL)}, 0
    s_cbranch_scc1 GCOL0
    ''')
    for cb in range(2):
        f_ph('0' if cb == 0 else f32(0.25))
        A(f'v_fma_f32 {v(arg)}, {v(fr)}, {v(gf)}, -{v(ph)}')
        cos_row(Ga + 4 * cb, fr)
    for r in range(0, 8, 2): A(f'v_mov_b64 {v(Ga2+r,2)}, {v(Ga+r,2)}')
    A('GCOL_DONE:')
    A(f'''
    s_lshr_b32 {s(t0)}, {s(sWv)}, 1
    s_mul_i32 {s(t0)}, {s(t0)}, {f32(0.25)}
    ''')
    f_ph(s(t0))
    A(f'v_fma_f32 {v(arg)}, {v(fr)}, {v(gf)}, -{v(ph)}')
    cos_row(GR[1], fr)
    A(f'''
    s_cmp_eq_u32 {s(sK)}, 0
    s_cbranch_scc1 GROW0
    ''')
    for r in range(0, 4, 2):
        A(f'v_mov_b64 {v(GR[0]+r,2)}, {v(GR[1]+r,2)}')
        A(f'v_mov_b64 {v(GR[2]+r,2)}, {v(GR[1]+r,2)}')
    A('GROW_DONE:')
    vLin, vRep0, vA0, vMir0, vC0, vRep1, vMir1, vH = range(Hc, Hc + 8)
    vE, vEm, q0, q1 = range(Hs, Hs + 4)
    vHin = T + 38; GRN = T + 40; HI = T + 64; vF = Ec
    def dreg(h, j): return GRN + 12 * h + 4 * (j // 3) + 1 + j % 3
    def pos(dst, col, rowoff):
        A(f"""
        v_lshrrev_b32 {v(q1)}, 8, {v(col)}
        v_lshl_add_u32 {v(q1)}, {v(q1)}, 5, {v(rowoff)}
        v_lshl_add_u32 {v(dst)}, {v(col)}, 1, {v(q1)}
        """)
    A(f"""
    s_mul_i32 {s(sBase)}, {s(sWv)}, {2*ROWB}
    s_add_u32 {s(sBase)}, {s(sBase)}, {LDS_R}
    v_lshrrev_b32 {v(q0)}, 5, {v(vL)}
    v_lshlrev_b32 {v(q0)}, 5, {v(q0)}
    v_lshl_add_u32 {v(vLin)}, {v(vL)}, 4, {v(q0)}
    v_add_u32 {v(vLin)}, {s(sBase)}, {v(vLin)}
    s_mov_b32 {s(sm)}, 0xf0f0f0f0
    s_mov_b32 {s(sm+1)}, 0xf0f0f0f0
    s_add_u32 {s(t0)}, {s(sBase)}, {ROWB}
    v_mov_b32 {v(q0)}, {s(sBase)}
    v_mov_b32 {v(q1)}, {s(t0)}
    v_cndmask_b32 {v(vE)}, {v(q0)}, {v(q1)}, {s(sm,2)}
    s_cmp_eq_u32 {s(sR)}, 0
    s_cselect_b32 {s(t1)}, -1, 0
    s_xor_b32 {s(sm2)}, {s(sm)}, {s(t1)}
    s_mov_b32 {s(sm2+1)}, {s(sm2)}
    v_cndmask_b32 {v(vEm)}, {v(q0)}, {v(q1)}, {s(sm2,2)}
    v_and_b32 {v(q0)}, 3, {v(vL)}
    v_lshrrev_b32 {v(vH)}, 3, {v(vL)}
    v_lshl_add_u32 {v(vA0)}, {v(q0)}, 8, {v(vH)}
    v_add_u32 {v(q0)}, 8, {v(vA0)}
    """)
    pos(vRep1, q0, vE)
    A(f'v_sub_u32 {v(q0)}, {1024-224-8}, {v(vA0)}')
    pos(vMir1, q0, vEm)
    A(f"""
    v_and_b32 {v(q0)}, 1, {v(vL)}
    v_lshlrev_b32 {v(q0)}, 8, {v(q0)}
    v_and_b32 {v(q1)}, 2, {v(vL)}
    s_mov_b64 exec, 0xff
    v_lshl_add_u32 {v(vA0)}, {v(q1)}, 3, {v(q0)}
    s_mov_b64 exec, -1
    """)
    pos(vRep0, vA0, vE)
    A(f'v_sub_u32 {v(q0)}, {1024-224}, {v(vA0)}')
    pos(vMir0, q0, vEm)
    A(f"""
    v_sub_u32 {v(q0)}, 1024, {v(vA0)}
    v_and_b32 {v(q0)}, 1023, {v(q0)}
    """)
    pos(vC0, q0, vEm)
    A(f"""
    v_mov_b32 {v(vA0)}, {v(vRep0)}
    s_mov_b64 exec, 1
    v_add_u32 {v(vA0)}, {2*512+64}, {v(vA0)}
    s_and_b32 exec_lo, {s(sm2)}, 0x11
    v_add_u32 {v(vC0)}, {2*512+64}, {v(vC0)}
    s_mov_b64 exec, -1
    s_mov_b32 {s(t0)}, {HWG}
    v_mul_lo_u32 {v(vH)}, {v(vH)}, {s(t0)}
    v_and_b32 {v(q0)}, 7, {v(vL)}
    v_lshl_add_u32 {v(vH)}, {v(q0)}, 4, {v(vH)}
    s_mul_i32 {s(sHa)}, {s(sTau)}, {HSL}
    s_add_u32 {s(sHa)}, {s(sHa)}, {s(sGb)}
    s_add_u32 {s(sHb)}, {s(sHa)}, {H0B + 8*HWG}
    s_add_u32 {s(sHa)}, {s(sHa)}, {H0B}
    v_mul_u32_u24 {v(vHin)}, {HSL}, {v(tau)}
    v_lshl_add_u32 {v(vHin)}, {v(vG)}, 4, {v(vHin)}
    s_mul_i32 {s(sHin)}, {s(sL)}, {HWG}
    s_add_u32 {s(sHin)}, {s(sHin)}, {s(sGb)}
    s_add_u32 {s(sHin)}, {s(sHin)}, {H0B}
    s_waitcnt lgkmcnt(0)
    s_mul_i32 {s(sT)}, {s(sT)}, 0x19660d
    s_add_u32 {s(sT)}, {s(sT)}, 0x3c6ef35f
    """)
    for h in range(2):
        for t in range(3): A(f'v_mov_b32 {v(GRN+12*h+4*t)}, {s(sT)}')
    stamp(2)
    A('s_waitcnt vmcnt(3)')
    stamp(3)
    A(f"""
    ds_write_b128 {v(vLin)}, {v(vRow,4)}
    ds_write_b128 {v(vLin)}, {v(vRow+4,4)} offset:1088
    ds_write_b128 {v(vLin)}, {v(vRow+8,4)} offset:{ROWB}
    ds_write_b128 {v(vLin)}, {v(vRow+12,4)} offset:{ROWB+1088}
    """)
    for r in range(16):
        A(f"""
        v_lshlrev_b32 {v(vF+2*r)}, 16, {v(vRow+r)}
        v_and_b32 {v(vF+2*r+1)}, 0xffff0000, {v(vRow+r)}
        """)
    A('s_waitcnt lgkmcnt(0)')
    for h in range(2):
        for part in range(2):
            for c in range(8):
                if part == 0: ad, off = ((vA0, 0) if (c == 0 and h == 0) else ((vRep0, vRep1)[h], 64 * c))
                else: ad, off = ((vC0, 0) if (c == 0 and h == 0) else ((vMir0, vMir1)[h], 64 * (7 - c)))
                j = 4 * part + c // 2
                A(f'ds_read_u16 {v(HI+8*h+j if c & 1 else dreg(h, j))}, {v(ad)} offset:{off}')
    a, b, u, m = T + 4, T + 6, T + 8, T + 10
    for (acc, base) in ((a, vF), (b, vF + 16)):
        A(f'v_pk_add_f32 {v(acc,2)}, {v(base,2)}, {v(base+2,2)}')
    for p in range(2, 8):
        for (acc, base) in ((a, vF), (b, vF + 16)):
            A(f'v_pk_add_f32 {v(acc,2)}, {v(acc,2)}, {v(base+2*p,2)}')
    A(f"""
    v_add_f32 {v(a)}, {v(a)}, {v(a+1)}
    v_add_f32 {v(b)}, {v(b)}, {v(b+1)}
    """)
    red64x2(a, b, u)
    A(f"""
    v_mul_f32 {v(m)}, {f32(1/1024)}, {v(a)}
    v_mov_b32 {v(u)}, {v(m)}
    v_mov_b32 {v(u+1)}, {v(m)}
    v_permlane32_swap_b32 {v(u)}, {v(u+1)}
    """)
    for p in range(8):
        A(f'v_pk_add_f32 {v(vF+2*p,2)}, {v(vF+2*p,2)}, {v(u,2)} op_sel_hi:[1,0] neg_lo:[0,1] neg_hi:[0,1]')
        A(f'v_pk_add_f32 {v(vF+16+2*p,2)}, {v(vF+16+2*p,2)}, {v(u,2)} op_sel:[0,1] op_sel_hi:[1,1] neg_lo:[0,1] neg_hi:[0,1]')
    for (acc, base) in ((a, vF), (b, vF + 16)):
        A(f'v_pk_mul_f32 {v(acc,2)}, {v(base,2)}, {v(base,2)}')
    for p in range(1, 8):
        for (acc, base) in ((a, vF), (b, vF + 16)):
            A(f'v_pk_fma_f32 {v(acc,2)}, {v(base+2*p,2)}, {v(base+2*p,2)}, {v(acc,2)}')
    A(f"""
    v_add_f32 {v(a)}, {v(a)}, {v(a+1)}
    v_add_f32 {v(b)}, {v(b)}, {v(b+1)}
    s_waitcnt lgkmcnt(0)
    """)
    def hstore(h, t):
        A(f'buffer_store_dwordx4 {v(GRN+12*h+4*t,4)}, {v(vH)}, {s(sW,4)}, {s((sHa, sHb)[h])} offen offset:{128*t} sc1')
    for h in range(2):
        for j in range(8):
            A(f'v_lshl_or_b32 {v(dreg(h, j))}, {v(HI+8*h+j)}, 16, {v(dreg(h, j))}')
            if j in (2, 5): hstore(h, j // 3)
    red64x2(a, b, u)
    A(f"""
    v_mov_b32 {v(u)}, {f32(1e-5)}
    v_fmac_f32 {v(u)}, {f32(1/1024)}, {v(a)}
    v_rsq_f32 {v(a)}, {v(u)}
    s_mov_b32 {s(sm2)}, 0xaaaaaaaa
    s_mov_b32 {s(sm2+1)}, 0xaaaaaaaa
    v_mul_f32 {v(a+1)}, {v(m)}, {v(a)}
    v_cndmask_b32 {v(a)}, {v(a)}, {v(a+1)}, {s(sm2,2)}
    v_mov_b32 {v(a+1)}, {v(a)}
    v_permlane32_swap_b32 {v(a)}, {v(a+1)}
    v_cndmask_b32 {v(dreg(0, 8))}, {v(a)}, {v(a+1)}, {s(sm,2)}
    v_cndmask_b32 {v(dreg(1, 8))}, {v(a)}, {v(a+1)}, {s(sm,2)}
    """)
    hstore(0, 2); hstore(1, 2)
    A(f"""
    s_mov_b32 {s(t0)}, {XB + XSTR}
    buffer_store_dwordx4 {v(vOne,4)}, {v(vXout)}, {s(sW,4)}, {s(t0)} offen sc1
    buffer_store_dwordx4 {v(vOne,4)}, {v(vXout)}, {s(sW,4)}, {s(t0)} offen offset:512 sc1
    """)
    stamp(4)
    A(f"""
    s_waitcnt vmcnt(8)
    s_barrier
    s_cmp_lg_u32 {s(sWv)}, 0
    s_cbranch_scc1 NOFLAG
    s_lshl_b32 {s(t0)}, {s(sL)}, 4
    s_add_u32 {s(t0)}, {s(t0)}, {s(sGb)}
    v_mov_b32 {v(vFlag)}, {FLG}
    s_mov_b64 exec, 1
    buffer_store_dword {v(GRN)}, {v(vFlag)}, {s(sW,4)}, {s(t0)} offen sc1
    s_mov_b64 exec, -1
    NOFLAG:
    s_branch EHGEN
    EH_DONE:
    """)
    stamp(5)
    vt = T + 68; vt2 = T + 69
    A(f"""
    v_lshlrev_b32 {v(vFlag)}, {GSH}, {v(vG)}
    v_lshl_add_u32 {v(vFlag)}, {v(vI)}, 4, {v(vFlag)}
    s_lshl_b32 {s(sHa)}, {s(sWv)}, {GSH+2}
    s_add_u32 {s(sHa)}, {s(sHa)}, {FLG}
    s_mov_b32 {s(sCnt)}, {BOUND}
    s_waitcnt vmcnt(0)
    """)
    if OPT['hp']: A(f's_sleep {OPT["hp"]}')
    A('HPOLL:')
    for t in range(3):
        for e in range(2):
            A(f'buffer_load_dwordx4 {v(GRN+12*e+4*t,4)}, {v(vHin)}, {s(sW,4)}, {s(sHin)} offen offset:{128*t+64*e} sc1')
    tg = [GRN + 4 * k for k in range(6)]
    A(f"""
    s_waitcnt vmcnt(0)
    v_min3_u32 {v(vt)}, {v(tg[0])}, {v(tg[1])}, {v(tg[2])}
    v_max3_u32 {v(vt2)}, {v(tg[0])}, {v(tg[1])}, {v(tg[2])}
    v_min3_u32 {v(vt)}, {v(vt)}, {v(tg[3])}, {v(tg[4])}
    v_max3_u32 {v(vt2)}, {v(vt2)}, {v(tg[3])}, {v(tg[4])}
    v_min_u32 {v(vt)}, {v(vt)}, {v(tg[5])}
    v_max_u32 {v(vt2)}, {v(vt2)}, {v(tg[5])}
    v_cmp_ne_u32 vcc, {s(sT)}, {v(vt)}
    v_cmp_ne_u32 {s(sm,2)}, {s(sT)}, {v(vt2)}
    s_or_b64 {s(sm,2)}, {s(sm,2)}, vcc
    s_cbranch_scc0 HGOT
    s_sub_u32 {s(sCnt)}, {s(sCnt)}, 1
    s_cbranch_scc0 HPOLL
    s_or_b32 {s(sErr)}, {s(sErr)}, 8
    HGOT:
    buffer_load_dword {v(vFlagD)}, {v(vFlag)}, {s(sW,4)}, {s(sHa)} offen sc1
    """)
    stamp(6)
    if OPT['stamps']: A(f's_sub_u32 {s(56+2*7)}, {BOUND}, {s(sCnt)}')
    stamp_flush(vStamp, 8, 0)
    A(f"""
    v_mov_b32 {v(St)}, {v(dreg(0, 8))}
    v_mov_b32 {v(St+1)}, {v(dreg(0, 8))}
    v_mov_b32 {v(St+2)}, {v(dreg(1, 8))}
    v_mov_b32 {v(St+3)}, {v(dreg(1, 8))}
    """)
    for k in range(4):
        for r in range(4):
            src = dreg(k & 1, 4 * (k >> 1) + r)
            A(f"""
            v_lshlrev_b32 {v(X[k]+2*r)}, 16, {v(src)}
            v_and_b32 {v(X[k]+2*r+1)}, 0xffff0000, {v(src)}
            """)
        if k == 0:
            A(f"""
            v_permlane16_swap_b32 {v(St)}, {v(St+1)}
            v_permlane16_swap_b32 {v(St+2)}, {v(St+3)}
            """)
    dump(0, X[0], 16); dump(1, X[2], 16)

    rR, cR, rM, cM = St, St + 1, St + 2, St + 3
    pA = T; pB = T + 8; PA = T + 16; PB = T + 20; PC = T + 24; PD = T + 28
    W = T + 32
    Wh = T + 48
    Wb = T + 0
    Dacc = T + 16
    Fr = T + 56
    A('LOOP:')
    stamp(0)
    A(f'''
    v_cndmask_b32 {v(Ps)}, {v(rM)}, {v(rR)}, {s(sRho,2)}
    v_cndmask_b32 {v(Ps+1)}, {v(rR)}, {v(rM)}, {s(sRho,2)}
    v_cndmask_b32 {v(Pc)}, {v(cM)}, {v(cR)}, {s(sRho,2)}
    v_cndmask_b32 {v(Pc+1)}, {v(cR)}, {v(cM)}, {s(sRho,2)}
    v_add_f32 {v(Pc)}, {v(Pc)}, {v(cR)}
    v_add_f32 {v(Pc+1)}, {v(Pc+1)}, {v(cM)}
    ''')
    for p in range(4):
        A(f'v_pk_fma_f32 {v(pA+2*p,2)}, {v(X[0]+2*p,2)}, {v(St,2)}, {v(Pc,2)} op_sel_hi:[1,0,0] neg_lo:[0,0,1] neg_hi:[0,0,1]')
        A(f'v_pk_fma_f32 {v(pB+2*p,2)}, {v(X[1]+2*p,2)}, {v(St+2,2)}, {v(Pc,2)} op_sel:[0,0,1] op_sel_hi:[1,0,1] neg_lo:[0,0,1] neg_hi:[0,0,1]')
    for p in range(4):
        A(f'v_pk_fma_f32 {v(pA+2*p,2)}, {v(X[3]+2*p,2)}, {v(Ps,2)}, {v(pA+2*p,2)} op_sel_hi:[1,0,1]')
        A(f'v_pk_fma_f32 {v(pB+2*p,2)}, {v(X[2]+2*p,2)}, {v(Ps,2)}, {v(pB+2*p,2)} op_sel:[0,1,0] op_sel_hi:[1,1,1]')
    for p in range(4):
        A(f'v_cvt_pk_f16_f32 {v(PA+p)}, {v(pA+2*p)}, {v(pA+2*p+1)}')
    for p in range(4):
        A(f'v_cvt_pk_f16_f32 {v(PB+p)}, {v(pB+2*p)}, {v(pB+2*p+1)}')
    A(f'''
    s_cmp_eq_u32 {s(sL)}, 0
    s_cbranch_scc1 COL0
    ''')
    MF = 'v_mfma_f32_16x16x32_f16'
    for cb in range(2): A(f'{MF} {v(W+4*cb,4)}, {v(PA,4)}, {v(Ga+4*cb,4)}, 0')
    for cb in range(2): A(f'{MF} {v(W+8+4*cb,4)}, {v(PB,4)}, {v(Ga2+4*cb,4)}, 0')
    A('COL_DONE:')
    dump(16, St, 8, 1); dump(20, PA, 16, 1); dump(24, W, 16, 1)
    for j in range(4):
        A(f'''
        v_cvt_pk_f16_f32 {v(Wh+2*j)}, {v(W+4*j)}, {v(W+4*j+1)}
        v_cvt_pk_f16_f32 {v(Wh+2*j+1)}, {v(W+4*j+2)}, {v(W+4*j+3)}
        ds_write_b64 {v(vWa1 if j < 2 else vWa2)}, {v(Wh+2*j,2)} offset:{LDS_W + 1024*(j&1)}
        ''')
    stamp(1)
    A('''
    s_waitcnt lgkmcnt(0)
    s_barrier
    ''')
    for u in range(4): A(f'ds_read_b128 {v(Wb+4*u,4)}, {v(vWr)} offset:{LDS_W + 2048*u}')
    for u in range(4):
        A(f's_waitcnt lgkmcnt({3-u})')
        A(f'{MF} {v(Dacc+4*u,4)}, {v(GR[[0,1,2,1][u]],4)}, {v(Wb+4*u,4)}, 0')
    dump(28, Dacc, 16, 1)
    for j in range(2):
        for u in range(4):
            A(f'v_cvt_pk_f16_f32 {v(Fr+4*j+u)}, {v(Dacc+4*u+2*j)}, {v(Dacc+4*u+2*j+1)}')
        A(f'buffer_store_dwordx4 {v(Fr+4*j,4)}, {v(vXout)}, {s(sW,4)}, {s(sXb)} offen offset:{512*j} sc1')
    stamp(2)
    if OPT['xp'] & 1: A('s_waitcnt vmcnt(0)')
    A(f"""
    s_cmp_ge_u32 {s(sLay)}, 2
    s_cbranch_scc1 CLRF
    s_add_u32 {s(t0)}, {s(sXb)}, {2*XSTR}
    buffer_store_dwordx4 {v(vOne,4)}, {v(vXout)}, {s(sW,4)}, {s(t0)} offen sc1
    buffer_store_dwordx4 {v(vOne,4)}, {v(vXout)}, {s(sW,4)}, {s(t0)} offen offset:512 sc1
    s_cmp_eq_u32 {s(sLay)}, 0
    s_cbranch_scc1 FLAGS
    CLR_DONE:
    s_mov_b32 {s(sCnt)}, {BOUND}
    """)
    if OPT['sl']: A(f's_sleep {OPT["sl"]}')
    else: A('s_waitcnt vmcnt(0)')
    if OPT['xp'] & 2: A('s_barrier')
    stamp(3)
    Qp = T; Q = T + 8; Vc = T + 40; Vs = T + 48; BVc = T + 56; BVs = T + 60; BVo = T + 64; CC = T + 0; SS = T + 8
    A(f"""
    XPOLL:
    buffer_load_dwordx4 {v(Qp,4)}, {v(vXin)}, {s(sW,4)}, {s(sXb)} offen sc1
    buffer_load_dwordx4 {v(Qp+4,4)}, {v(vXin)}, {s(sW,4)}, {s(sXb2)} offen sc1
    s_waitcnt vmcnt(0)
    """)
    maxall(range(Qp, Qp + 8), vt, vt2)
    poll_tail('XPOLL', 1, vt)
    stamp(4)
    if OPT['stamps']: A(f's_sub_u32 {s(56+2*9)}, {BOUND}, {s(sCnt)}')
    A(f"""
    ds_write_b128 {v(vQw)}, {v(Qp,4)}
    ds_write_b128 {v(vQw)}, {v(Qp+4,4)} offset:1024
    s_waitcnt lgkmcnt(0)
    s_barrier
    """)
    stamp(5)
    for q in range(4):
        for blk in range(2):
            A(f'ds_read_b128 {v(Q+8*q+4*blk,4)}, {v(vQr)} offset:{2048*q+256*blk}')
    for q in range(4):
        for blk in range(2):
            A(f's_waitcnt lgkmcnt({7-2*q-blk})')
            for (acc, E) in ((Vc, Ec), (Vs, Es)):
                cin = '0' if q == 0 else v(acc+4*blk,4)
                A(f'{MF} {v(acc+4*blk,4)}, {v(Q+8*q+4*blk,4)}, {v(E+4*q,4)}, {cin}')
    dump(32, Vc, 16, 1)
    for (acc, B) in ((Vc, BVc), (Vs, BVs)):
        for r in range(4):
            A(f'v_cvt_pk_f16_f32 {v(B+r)}, {v(acc+2*r)}, {v(acc+2*r+1)}')
    A(f'''
    s_cmp_eq_u32 {s(sSpec)}, 0
    s_cbranch_scc1 HSPEC
    ''')
    for mb in range(2): A(f'{MF} {v(CC+4*mb,4)}, {v(Hc+4*mb,4)}, {v(BVc,4)}, 0')
    for mb in range(2): A(f'{MF} {v(SS+4*mb,4)}, {v(Hs+4*mb,4)}, {v(BVs,4)}, 0')
    A('H_DONE:')
    dump(36, CC, 16, 1)
    U1 = T + 16; U2 = T + 24
    for p in range(4):
        A(f'v_pk_add_f32 {v(U1+2*p,2)}, {v(CC+2*p,2)}, {v(SS+2*p,2)} neg_lo:[0,1] neg_hi:[0,1]')
        A(f'v_pk_add_f32 {v(U2+2*p,2)}, {v(CC+2*p,2)}, {v(SS+2*p,2)}')
    for p in range(4):
        for k, U, M in ((0, U1, None), (1, U2, M2), (2, U2, M3), (3, U1, M4)):
            if p == 0 and M is not None:
                A(f'v_pk_fma_f32 {v(X[k],2)}, {v(U,2)}, {v(M,2)}, {v(X[k],2)}')
            else:
                A(f'v_pk_add_f32 {v(X[k]+2*p,2)}, {v(X[k]+2*p,2)}, {v(U+2*p,2)}')
    dump(2, X[0], 16, 2); dump(3, X[2], 16, 2)
    stamp(6)
    A(f'''
    s_cmp_eq_u32 {s(sLay)}, 3
    s_cbranch_scc1 FINAL
    ''')
    Sa = [T + 2 * k for k in range(4)]; Qa = [T + 8 + 2 * k for k in range(4)]
    for k in range(4):
        A(f'v_pk_add_f32 {v(Sa[k],2)}, {v(X[k],2)}, {v(X[k]+2,2)}')
        A(f'v_pk_mul_f32 {v(Qa[k],2)}, {v(X[k],2)}, {v(X[k],2)}')
    for p in range(1, 4):
        for k in range(4):
            if p > 1: A(f'v_pk_add_f32 {v(Sa[k],2)}, {v(Sa[k],2)}, {v(X[k]+2*p,2)}')
            A(f'v_pk_fma_f32 {v(Qa[k],2)}, {v(X[k]+2*p,2)}, {v(X[k]+2*p,2)}, {v(Qa[k],2)}')
    A(f'''
    s_cmp_lg_u32 {s(sSpec)}, 0
    s_cbranch_scc1 NOSWAP
    s_mov_b64 exec, {s(sRho,2)}
    v_swap_b32 {v(Sa[2])}, {v(Sa[3])}
    v_swap_b32 {v(Sa[2]+1)}, {v(Sa[3]+1)}
    v_swap_b32 {v(Qa[2])}, {v(Qa[3])}
    v_swap_b32 {v(Qa[2]+1)}, {v(Qa[3]+1)}
    s_mov_b64 exec, -1
    NOSWAP:
    v_pk_add_f32 {v(Sa[0],2)}, {v(Sa[0],2)}, {v(Sa[2],2)}
    v_pk_add_f32 {v(Sa[1],2)}, {v(Sa[1],2)}, {v(Sa[3],2)}
    v_pk_add_f32 {v(Qa[0],2)}, {v(Qa[0],2)}, {v(Qa[2],2)}
    v_pk_add_f32 {v(Qa[1],2)}, {v(Qa[1],2)}, {v(Qa[3],2)}
    v_add_f32 {v(Sa[0])}, {v(Sa[0])}, {v(Sa[0]+1)}
    v_add_f32 {v(Sa[1])}, {v(Sa[1])}, {v(Sa[1]+1)}
    v_add_f32 {v(Qa[0])}, {v(Qa[0])}, {v(Qa[0]+1)}
    v_add_f32 {v(Qa[1])}, {v(Qa[1])}, {v(Qa[1]+1)}
    v_permlane32_swap_b32 {v(Sa[0])}, {v(Sa[1])}
    v_permlane32_swap_b32 {v(Qa[0])}, {v(Qa[1])}
    v_add_f32 {v(Sa[0])}, {v(Sa[0])}, {v(Sa[1])}
    v_add_f32 {v(Qa[0])}, {v(Qa[0])}, {v(Qa[1])}
    v_permlane16_swap_b32 {v(Sa[0])}, {v(Qa[0])}
    v_add_f32 {v(Sa[0])}, {v(Sa[0])}, {v(Qa[0])}
    buffer_store_dword {v(Sa[0])}, {v(vSout)}, {s(sW,4)}, {s(sSb)} offen sc1
    s_mov_b32 {s(sCnt)}, {BOUND}
    ''')
    stamp(7)
    A('s_waitcnt vmcnt(0)')
    A('SPOLL:')
    G4 = T + 16
    for j in range(4):
        A(f'buffer_load_dwordx4 {v(G4+4*j,4)}, {v(vSin)}, {s(sW,4)}, {s(sSb)} offen offset:{1024*j} sc1')
    A('s_waitcnt vmcnt(0)')
    maxall(range(G4, G4 + 16), vt, vt2)
    poll_tail('SPOLL', 2, vt)
    stamp(8)
    if OPT['stamps']:
        A(f's_sub_u32 {s(56+2*10)}, {BOUND}, {s(sCnt)}')
        A(f's_mul_i32 {s(sLn)}, {s(sLay)}, 12')
    stamp_flush(vStamp, 11, 8, sLane=sLn)
    e, f_, u1, u2 = G4, G4 + 1, G4 + 4, G4 + 5
    A(f'''
    v_pk_add_f32 {v(G4,2)}, {v(G4,2)}, {v(G4+4,2)}
    v_pk_add_f32 {v(G4+2,2)}, {v(G4+2,2)}, {v(G4+6,2)}
    v_pk_add_f32 {v(G4+8,2)}, {v(G4+8,2)}, {v(G4+12,2)}
    v_pk_add_f32 {v(G4+10,2)}, {v(G4+10,2)}, {v(G4+14,2)}
    v_pk_add_f32 {v(G4,2)}, {v(G4,2)}, {v(G4+8,2)}
    v_pk_add_f32 {v(G4+2,2)}, {v(G4+2,2)}, {v(G4+10,2)}
    v_permlane32_swap_b32 {v(G4)}, {v(G4+2)}
    v_permlane32_swap_b32 {v(G4+1)}, {v(G4+3)}
    v_pk_add_f32 {v(G4,2)}, {v(G4,2)}, {v(G4+2,2)}
    v_mov_b64 {v(u1,2)}, {v(G4,2)}
    v_permlane16_swap_b32 {v(e)}, {v(u1)}
    v_permlane16_swap_b32 {v(f_)}, {v(u2)}
    v_pk_add_f32 {v(G4,2)}, {v(G4,2)}, {v(u1,2)}
    v_mul_f32 {v(e)}, {f32(1/1024)}, {v(e)}
    v_mul_f32 {v(f_)}, {f32(1/1024)}, {v(f_)}
    v_fma_f32 {v(f_)}, -{v(e)}, {v(e)}, {v(f_)}
    v_max_f32 {v(f_)}, 0, {v(f_)}
    v_add_f32 {v(f_)}, {f32(1e-5)}, {v(f_)}
    v_rsq_f32 {v(rR)}, {v(f_)}
    v_mul_f32 {v(cR)}, {v(e)}, {v(rR)}
    v_mov_b32 {v(rM)}, {v(rR)}
    v_mov_b32 {v(cM)}, {v(cR)}
    v_permlane32_swap_b32 {v(rR)}, {v(rM)}
    v_permlane32_swap_b32 {v(cR)}, {v(cM)}
    s_add_u32 {s(sLay)}, {s(sLay)}, 1
    s_add_u32 {s(sXb)}, {s(sXb)}, {XSTR}
    s_add_u32 {s(sXb2)}, {s(sXb2)}, {XSTR}
    s_add_u32 {s(sSb)}, {s(sSb)}, {SSTR}
    s_branch LOOP
    ''')

    A('FINAL:')
    Pk = T
    A(f's_mov_b32 {s(t3)}, {FB}')
    for k in range(4):
        for r in range(4):
            A(f'v_cvt_pk_bf16_f32 {v(Pk+4*k+r)}, {v(X[k]+2*r)}, {v(X[k]+2*r+1)}')
        A(f'buffer_store_dwordx4 {v(Pk+4*k,4)}, {v(vFout)}, {s(sW,4)}, {s(t3)} offen offset:{256*k} sc1')
    vLin, vRep, vMir, vA0, vC0, vD0 = [T + 32 + j for j in range(6)]
    relayout_addrs(vL, sBase, vLin, vRep, vMir, vA0, vC0, vD0, vt, vt2, sm)
    stamp(7)
    Fd = T + 16
    A(f"""
    s_cmp_eq_u32 {s(sR)}, 0
    s_cselect_b32 {s(t0)}, 256, 0
    s_add_u32 {s(sFo2)}, {s(t0)}, {FB+512}
    s_sub_u32 {s(sFo3)}, {FB+768}, {s(t0)}
    v_lshlrev_b32 {v(vXin)}, 4, {v(vL)}
    s_mov_b32 {s(sCnt)}, {BOUND}
    s_waitcnt vmcnt(0)
    """)
    if OPT['fp']: A(f's_sleep {OPT["fp"]}')
    A(f"""
    FPOLL:
    buffer_load_dwordx4 {v(Fd,4)}, {v(vFin)}, {s(sW,4)}, {s(t3)} offen sc1
    buffer_load_dwordx4 {v(Fd+4,4)}, {v(vFin)}, {s(sW,4)}, {s(t3)} offen offset:256 sc1
    buffer_load_dwordx4 {v(Fd+8,4)}, {v(vFin)}, {s(sW,4)}, {s(sFo2)} offen sc1
    buffer_load_dwordx4 {v(Fd+12,4)}, {v(vFin)}, {s(sW,4)}, {s(sFo3)} offen sc1
    s_waitcnt vmcnt(0)
    """)
    maxall(range(Fd, Fd + 16), vt, vt2)
    poll_tail('FPOLL', 4, vt)
    stamp(8)
    if OPT['stamps']: A(f's_sub_u32 {s(56+2*10)}, {BOUND}, {s(sCnt)}')
    for k in range(4):
        for c in range(8):
            ad, off = slot_addr(k, c, vRep, vMir, vA0, vC0, vD0)
            A(f'ds_write_b16{"_d16_hi" if c & 1 else ""} {v(ad)}, {v(Fd+4*k+c//2)} offset:{off}')
    A('s_waitcnt lgkmcnt(0)')
    for j, off in enumerate((0, 1088, ROWB, ROWB + 1088)):
        A(f'ds_read_b128 {v(Pk+4*j,4)}, {v(vLin)} offset:{off}')
    for j in range(4):
        A(f's_waitcnt lgkmcnt({3-j})')
        A(f'buffer_store_dwordx4 {v(Pk+4*j,4)}, {v(vXin)}, {s(sO,4)}, {s(sR if j < 2 else sM)} offen offset:{1024*(j&1)}')
    stamp(11)
    if OPT['stamps']: A('s_waitcnt vmcnt(0)')
    stamp(12)
    stamp_flush(vStamp, 13, 44)
    stamp_store(vStamp, vL, sW, 1, sWv, t0, t1, vt)
    if OPT['stamps'] == 2:
        sel = [None, 0, 0, 2, 3, 4, 6, 8+2, 8+4, 8+8, 20+4, 20+8, 32+8, 44+4, 44+8, 44+12]
        A(f'v_mov_b32 {v(vt)}, 0')
        for k, src in enumerate(sel):
            if src is None: continue
            A(f'v_readlane_b32 {s(t0)}, {v(vStamp)}, {src}')
            if k == 1: A(f's_not_b32 {s(t0)}, {s(t0)}')
            A(f'v_writelane_b32 {v(vt)}, {s(t0)}, {k}')
        A(f"""
        v_lshlrev_b32 {v(vt2)}, 2, {v(vL)}
        s_mov_b64 exec, 0xffff
        buffer_atomic_umax {v(vt)}, {v(vt2)}, {s(sD,4)}, 0 offen
        s_mov_b64 exec, -1
        """)
    A(f'''
    s_lshl_b32 {s(t0)}, {s(sN)}, 2
    s_or_b32 {s(t0)}, {s(t0)}, {s(sWv)}
    s_cmp_lg_u32 {s(t0)}, 0
    s_cbranch_scc1 NOTAG
    v_mov_b32 {v(vt)}, {s(sT)}
    v_mov_b32 {v(vt2)}, {EOFF}
    s_mov_b64 exec, 1
    buffer_store_dword {v(vt)}, {v(vt2)}, {s(sW,4)}, 0 offen sc1
    NOTAG:
    s_cmp_eq_u32 {s(sErr)}, 0
    s_cbranch_scc1 MAIN_END
    v_mov_b32 {v(vt)}, {s(sErr)}
    v_mov_b32 {v(vt2)}, 0
    s_mov_b64 exec, 1
    buffer_atomic_or {v(vt)}, {v(vt2)}, {s(sD,4)}, 0 offen
    MAIN_END:
    s_endpgm
    ''')

    A('GCOL0:')
    cls = T + 15
    B0 = T + 32
    for cb in range(2):
        A(f'''
        v_lshrrev_b32 {v(a0)}, 1, {v(vI)}
        v_cvt_f32_u32 {v(fr)}, {v(a0)}
        v_mul_f32 {v(fr)}, {f32(1/32)}, {v(fr)}
        v_add_f32 {v(fr)}, {'0' if cb == 0 else f32(0.25)}, {v(fr)}
        v_and_b32 {v(a1)}, 1, {v(vI)}
        v_lshrrev_b32 {v(cls)}, 1, {v(vG)}
        v_cmp_eq_u32 vcc, {v(a1)}, {v(cls)}
        v_mov_b32 {v(a0)}, {f32(math.sqrt(0.5))}
        v_cndmask_b32 {v(amp)}, 0, {v(a0)}, vcc
        v_mov_b32 {v(ph)}, {f32(0.125)}
        v_mov_b32 {v(voff)}, 0
        ''')
        if cb == 0:
            A(f'''
            s_mov_b32 exec_lo, 0x00030003
            s_mov_b32 exec_hi, 0x00030003
            v_mov_b32 {v(fr)}, 0.5
            v_cndmask_b32 {v(amp)}, 0.5, 0, vcc
            v_cvt_f32_u32 {v(ph)}, {v(cls)}
            v_mul_f32 {v(voff)}, {v(ph)}, {v(amp)}
            v_mul_f32 {v(ph)}, {f32(0.25)}, {v(ph)}
            s_mov_b64 exec, -1
            ''')
        A(f'''
        ; d0/32 = 8 (g&1) + 0.5 (g>>1)
        v_and_b32 {v(a0)}, 1, {v(vG)}
        v_lshl_add_u32 {v(a0)}, {v(a0)}, 4, {v(cls)}
        v_cvt_f32_u32 {v(a0)}, {v(a0)}
        v_mul_f32 {v(a0)}, 0.5, {v(a0)}
        v_mul_f32 {v(a0)}, {v(a0)}, {v(fr)}
        v_cmp_eq_u32 {s(sG0,2)}, 0, {v(vG)}
        v_mul_f32 {v(Z)}, {f32(16.0)}, {v(fr)}
        v_cndmask_b32 {v(Z)}, 0, {v(Z)}, {s(sG0,2)}
        v_sub_f32 {v(arg)}, {v(a0)}, {v(ph)}
        v_add_f32 {v(arg2)}, {v(arg)}, {v(Z)}
        v_cos_f32 {v(B0)}, {v(arg)}
        ''')
        cos_row(Ga + 4 * cb, fr, scaled=True, first=arg2)
        A(f'''
        v_fma_f32 {v(B0)}, {v(B0)}, {v(amp)}, {v(voff)}
        v_cvt_pk_f16_f32 {v(B0)}, {v(B0)}, {v(B0)}
        s_mov_b32 {s(t0)}, 0xffff
        v_bfi_b32 {v(Ga2+4*cb)}, {s(t0)}, {v(B0)}, {v(Ga+4*cb)}
        v_mov_b32 {v(Ga2+4*cb+1)}, {v(Ga+4*cb+1)}
        v_mov_b64 {v(Ga2+4*cb+2,2)}, {v(Ga+4*cb+2,2)}
        v_sub_f32 {v(arg)}, 0, {v(a0)}
        v_sub_f32 {v(arg)}, {v(arg)}, {v(ph)}
        v_sub_f32 {v(stp)}, 0, {v(fr)}
        v_add_f32 {v(arg2)}, {v(arg)}, {v(Z)}
        v_cos_f32 {v(B0)}, {v(arg2)}
        ''')
        cos_row(Gb + 4 * cb, stp, scaled=True)
        A(f'''
        v_fma_f32 {v(B0)}, {v(B0)}, {v(amp)}, {v(voff)}
        v_cvt_pk_f16_f32 {v(B0)}, {v(B0)}, {v(B0)}
        v_bfi_b32 {v(Gb2+4*cb)}, {s(t0)}, {v(B0)}, {v(Gb+4*cb)}
        v_mov_b32 {v(Gb2+4*cb+1)}, {v(Gb+4*cb+1)}
        v_mov_b64 {v(Gb2+4*cb+2,2)}, {v(Gb+4*cb+2,2)}
        ''')
    A('s_branch GCOL_DONE')
    A(f'''
    GROW0:
    v_cmp_le_u32 vcc, 2, {v(vG)}
    v_sub_f32 {v(stp)}, 0, {v(fr)}
    v_cndmask_b32 {v(stp)}, {v(fr)}, {v(stp)}, vcc
    v_sub_f32 {v(a0)}, {f32(48.0)}, {v(gf)}
    v_cndmask_b32 {v(a0)}, {v(gf)}, {v(a0)}, vcc
    v_fma_f32 {v(arg)}, {v(fr)}, {v(a0)}, -{v(ph)}
    v_cmp_eq_u32 {s(sG0,2)}, 2, {v(vG)}
    v_mul_f32 {v(Z)}, {f32(16.0)}, {v(fr)}
    v_cndmask_b32 {v(Z)}, 0, {v(Z)}, {s(sG0,2)}
    v_sub_f32 {v(arg2)}, {v(arg)}, {v(Z)}
    ''')
    cos_row(GR[0], stp, first=arg2)
    A(f'''
    v_sub_f32 {v(a0)}, {f32(47.0)}, {v(gf)}
    v_cndmask_b32 {v(a0)}, {v(gf)}, {v(a0)}, vcc
    v_fma_f32 {v(arg)}, {v(fr)}, {v(a0)}, -{v(ph)}
    ''')
    cos_row(GR[2], stp)
    A('s_branch GROW_DONE')
    A('COL0:')
    for r in range(4):
        A(f'v_cndmask_b32 {v(PC+r)}, {v(PB+r)}, {v(PA+r)}, {s(sRho,2)}')
        A(f'v_cndmask_b32 {v(PD+r)}, {v(PA+r)}, {v(PB+r)}, {s(sRho,2)}')
    z = T + 64
    A(f'''
    s_cmp_lg_u32 {s(sSpec)}, 0
    s_cbranch_scc1 COL0B
    s_mov_b64 exec, 1
    v_fma_f32 {v(z)}, {v(X[0])}, {v(rR)}, -{v(cR)}
    v_fma_f32 {v(z+1)}, {v(X[3])}, {v(rR)}, -{v(cR)}
    v_fma_f32 {v(z+2)}, {v(X[1])}, {v(rM)}, -{v(cM)}
    v_fma_f32 {v(z+3)}, {v(X[2])}, {v(rM)}, -{v(cM)}
    v_add_f32 {v(z)}, {v(z)}, {v(z)}
    v_add_f32 {v(z+1)}, {v(z+1)}, {v(z+1)}
    v_add_f32 {v(z+2)}, {v(z+2)}, {v(z+2)}
    v_add_f32 {v(z+3)}, {v(z+3)}, {v(z+3)}
    v_cvt_pk_f16_f32 {v(PA)}, {v(z)}, {v(pA+1)}
    v_cvt_pk_f16_f32 {v(PC)}, {v(z+1)}, {v(pA+1)}
    v_cvt_pk_f16_f32 {v(PB)}, {v(z+2)}, {v(pB+1)}
    v_cvt_pk_f16_f32 {v(PD)}, {v(z+3)}, {v(pB+1)}
    s_mov_b64 exec, -1
    COL0B:
    ''')
    for cb in range(2): A(f'{MF} {v(W+4*cb,4)}, {v(PA,4)}, {v(Ga+4*cb,4)}, 0')
    for cb in range(2): A(f'{MF} {v(W+8+4*cb,4)}, {v(PB,4)}, {v(Ga2+4*cb,4)}, 0')
    for cb in range(2): A(f'{MF} {v(W+4*cb,4)}, {v(PC,4)}, {v(Gb+4*cb,4)}, {v(W+4*cb,4)}')
    for cb in range(2): A(f'{MF} {v(W+8+4*cb,4)}, {v(PD,4)}, {v(Gb2+4*cb,4)}, {v(W+8+4*cb,4)}')
    A('s_branch COL_DONE')
    A(f"""
    CLRF:
    s_cmp_eq_u32 {s(sLay)}, 3
    s_cbranch_scc1 CLR_DONE
    s_lshl_b32 {s(t0)}, {s(sTau)}, 12
    s_add_u32 {s(t0)}, {s(t0)}, {s(sGb)}
    s_add_u32 {s(t0)}, {s(t0)}, {FB}
    v_lshlrev_b32 {v(vt)}, 4, {v(vL)}
    """)
    for k in range(4):
        A(f'buffer_store_dwordx4 {v(vOne,4)}, {v(vt)}, {s(sW,4)}, {s(t0)} offen offset:{1024*k} sc1')
    A('s_branch CLR_DONE')
    A(f"""
    FLAGS:
    s_mov_b32 {s(sCnt)}, {BOUND}
    s_waitcnt vmcnt(4)
    FLPOLL:
    v_cmp_ne_u32 vcc, {s(sT)}, {v(vFlagD)}
    s_cbranch_vccz CLR_DONE
    buffer_load_dword {v(vFlagD)}, {v(vFlag)}, {s(sW,4)}, {s(sHa)} offen sc1
    s_sub_u32 {s(sCnt)}, {s(sCnt)}, 1
    s_waitcnt vmcnt(0)
    s_cbranch_scc0 FLPOLL
    s_or_b32 {s(sErr)}, {s(sErr)}, 16
    s_branch CLR_DONE
    """)
    A('HSPEC:')
    for r in range(4):
        A(f'v_cndmask_b32 {v(BVo+r)}, 0, {v(BVs+r)}, {s(sRho,2)}')
        A(f'v_cndmask_b32 {v(BVs+r)}, {v(BVs+r)}, 0, {s(sRho,2)}')
    for mb in range(2): A(f'{MF} {v(CC+4*mb,4)}, {v(Hc+4*mb,4)}, {v(BVc,4)}, 0')
    for mb in range(2): A(f'{MF} {v(SS+4*mb,4)}, {v(Hs+4*mb,4)}, {v(BVs,4)}, 0')
    for mb in range(2): A(f'{MF} {v(SS+4*mb,4)}, {v(Hc+4*mb,4)}, {v(BVo,4)}, {v(SS+4*mb,4)}')
    A('s_branch H_DONE')
    A('EHGEN:')
    tf = T + 0; t32 = T + 1; an = T + 2; cs = T + 4; sn = T + 5; e0 = T + 6; e1 = T + 7; gfl = T + 8; an1 = T + 9; an2 = T + 10
    sgn = T + 11
    A(f'''
    s_lshr_b32 {s(t0)}, {s(sWv)}, 1
    s_and_b32 {s(t1)}, {s(sWv)}, 1
    s_lshl_b32 {s(t2)}, {s(t0)}, 5
    s_add_u32 {s(t2)}, {s(t2)}, {s(sK)}
    s_lshl_b32 {s(t3)}, {s(t1)}, 10
    s_add_u32 {s(t2)}, {s(t2)}, {s(t3)}
    s_add_u32 {s(t3)}, {s(t3)}, 16
    s_lshl_b32 {s(t1)}, {s(t1)}, 5
    s_cmp_eq_u32 {s(t0)}, 1
    s_cselect_b32 {s(t1)}, {s(t3)}, {s(t1)}
    s_cselect_b32 {s(sEA)}, 0, {f32(1/16)}
    s_cselect_b32 {s(sEC)}, {f32(1/16)}, 0
    s_cmp_eq_u32 {s(sK)}, 0
    s_cselect_b32 {s(t2)}, {s(t1)}, {s(t2)}
    s_cselect_b32 {s(sEA)}, {s(sEA)}, {f32(1/16)}
    s_cselect_b32 {s(sEC)}, {s(sEC)}, 0
    s_cselect_b32 {s(sEB)}, 0, {f32(-1/16)}
    s_cselect_b32 {s(sEnB)}, 0, {f32(1/16)}
    v_lshlrev_b32 {v(tf)}, 6, {v(vI)}
    v_add_u32 {v(tf)}, {s(t2)}, {v(tf)}
    v_cvt_f32_u32 {v(tf)}, {v(tf)}
    v_cvt_f32_u32 {v(gfl)}, {v(vG)}
    v_mul_f32 {v(tf)}, {f32(1/2048)}, {v(tf)}
    v_mul_f32 {v(t32)}, {f32(32.0)}, {v(tf)}
    v_cmp_eq_u32 {s(sG0,2)}, 0, {v(vG)}
    s_mov_b32 {s(t0)}, 0x80008000
    ''')
    def e_pair(ang, dc, ds_):
        A(f'''
        v_cos_f32 {v(cs)}, {v(ang)}
        v_sin_f32 {v(sn)}, {v(ang)}
        v_mul_f32 {v(e0)}, {s(sEA)}, {v(cs)}
        v_mul_f32 {v(e1)}, {s(sEC)}, {v(cs)}
        v_fmac_f32 {v(e1)}, {s(sEB)}, {v(sn)}
        v_cvt_pk_f16_f32 {v(dc)}, {v(e0)}, {v(e1)}
        v_mul_f32 {v(e0)}, {s(sEA)}, {v(sn)}
        v_mul_f32 {v(e1)}, {s(sEC)}, {v(sn)}
        v_fmac_f32 {v(e1)}, {s(sEnB)}, {v(cs)}
        v_cvt_pk_f16_f32 {v(ds_)}, {v(e0)}, {v(e1)}
        ''')
    for q in range(4):
        if q == 0:
            A(f'''
            v_mul_f32 {v(an)}, {v(tf)}, {v(gfl)}
            v_mul_f32 {v(an1)}, 0.5, {v(t32)}
            v_cndmask_b32 {v(an1)}, {v(t32)}, {v(an1)}, {s(sG0,2)}
            v_add_f32 {v(an1)}, {v(an1)}, {v(an)}
            v_cndmask_b32 {v(an2)}, {v(an)}, {v(t32)}, {s(sG0,2)}
            v_mov_b32 {v(sgn)}, {s(t0)}
            v_cndmask_b32 {v(sgn)}, {v(sgn)}, 0, {s(sG0,2)}
            ''')
            e_pair(an, Ec, Es); e_pair(an1, Ec + 1, Es + 1); e_pair(an2, Ec + 2, Es + 2)
            A(f'''
            v_xor_b32 {v(Es+2)}, {v(sgn)}, {v(Es+2)}
            v_mov_b32 {v(Ec+3)}, {v(Ec+1)}
            v_xor_b32 {v(Es+3)}, {s(t0)}, {v(Es+1)}
            ''')
        else:
            A(f'''
            v_fmac_f32 {v(an)}, 4.0, {v(tf)}
            v_add_f32 {v(an1)}, {v(an)}, {v(t32)}
            ''')
            e_pair(an, Ec + 4 * q, Es + 4 * q); e_pair(an1, Ec + 4 * q + 1, Es + 4 * q + 1)
            A(f'''
            v_mov_b64 {v(Ec+4*q+2,2)}, {v(Ec+4*q,2)}
            v_xor_b32 {v(Es+4*q+2)}, {s(t0)}, {v(Es+4*q)}
            v_xor_b32 {v(Es+4*q+3)}, {s(t0)}, {v(Es+4*q+1)}
            ''')
    A(f'''
    s_and_b32 exec_lo, {s(sRho)}, 0x00010000
    s_mov_b32 exec_hi, exec_lo
    ''')
    for r in range(16):
        A(f'v_mov_b32 {v(Ec+r)}, 0')
        A(f'v_mov_b32 {v(Es+r)}, 0xac00')
    A('s_mov_b64 exec, -1')
    hA = T + 12; hB = T + 13; hC = T + 14; hO = T + 15; ef = T + 16; ls = T + 18; mu = T + 22; sg = T + 23; hnB = T + 24
    A(f'''
    v_lshrrev_b32 {v(mu)}, 2, {v(vI)}
    v_lshlrev_b32 {v(mu)}, 3, {v(mu)}
    v_and_b32 {v(e0)}, 3, {v(vI)}
    v_add_u32 {v(mu)}, {v(mu)}, {v(e0)}
    v_lshlrev_b32 {v(ef)}, 5, {v(mu)}
    v_add_u32 {v(ef)}, {s(sL)}, {v(ef)}
    v_add_u32 {v(ef+1)}, 128, {v(ef)}
    v_mov_b32 {v(hA)}, {f32(16.0)}
    v_mov_b32 {v(hB)}, {f32(-16.0)}
    v_mov_b32 {v(hC)}, 0
    v_mov_b32 {v(hO)}, 0
    s_cmp_eq_u32 {s(sL)}, 0
    s_cselect_b32 exec_lo, 0xff00ff00, 0
    s_mov_b32 exec_hi, exec_lo
    v_subrev_u32 {v(ef)}, {512-16}, {v(ef)}
    v_subrev_u32 {v(ef+1)}, {512-16}, {v(ef+1)}
    v_mov_b32 {v(hA)}, 0
    v_mov_b32 {v(hB)}, 0
    v_mov_b32 {v(hC)}, {f32(16.0)}
    s_cselect_b32 exec_lo, 0x00ff00ff, 0
    s_mov_b32 exec_hi, exec_lo
    v_mov_b32 {v(hB)}, 0
    v_mov_b32 {v(hO)}, {f32(-16.0)}
    s_cselect_b32 exec_lo, 0x00010001, 0
    s_mov_b32 exec_hi, exec_lo
    v_mov_b32 {v(ef)}, 512
    s_mov_b64 exec, -1
    v_cvt_f32_u32 {v(ef)}, {v(ef)}
    v_cvt_f32_u32 {v(ef+1)}, {v(ef+1)}
    v_sub_f32 {v(hnB)}, 0, {v(hB)}
    v_mul_f32 {v(ef)}, {f32(1/1024)}, {v(ef)}
    v_mul_f32 {v(ef+1)}, {f32(1/1024)}, {v(ef+1)}
    v_add_f32 {v(ls)}, {v(gfl)}, {v(gfl)}
    v_add_f32 {v(ls+1)}, 1.0, {v(ls)}
    v_add_f32 {v(ls+2)}, {f32(8.0)}, {v(ls)}
    v_add_f32 {v(ls+3)}, {f32(9.0)}, {v(ls)}
    ''')
    for mb in range(2):
        for d in range(4):
            A(f'''
            v_mul_f32 {v(an)}, {v(ef+mb)}, {v(ls+d)}
            v_cos_f32 {v(cs)}, {v(an)}
            v_sin_f32 {v(sn)}, {v(an)}
            v_fma_f32 {v(e0)}, {v(hA)}, {v(cs)}, {v(hO)}
            v_mul_f32 {v(e1)}, {v(hC)}, {v(cs)}
            v_fmac_f32 {v(e1)}, {v(hB)}, {v(sn)}
            v_cvt_pk_f16_f32 {v(Hc+4*mb+d)}, {v(e0)}, {v(e1)}
            v_mul_f32 {v(e0)}, {v(hA)}, {v(sn)}
            v_mul_f32 {v(e1)}, {v(hC)}, {v(sn)}
            v_fmac_f32 {v(e1)}, {v(hnB)}, {v(cs)}
            v_cvt_pk_f16_f32 {v(Hs+4*mb+d)}, {v(e0)}, {v(e1)}
            ''')
    A(f'''
    v_and_b32 {v(sg)}, 1, {v(vI)}
    v_cvt_f32_u32 {v(sg)}, {v(sg)}
    v_fma_f32 {v(sg)}, {v(sg)}, -2.0, 1.0
    v_add_f32 {v(e0)}, {v(hnB)}, {v(hO)}
    v_fma_f32 {v(e0)}, -{v(hO)}, {v(sg)}, {v(e0)}
    v_fma_f32 {v(e1)}, {v(hnB)}, {v(sg)}, {v(hC)}
    v_fma_f32 {v(cs)}, {v(hC)}, {v(sg)}, {v(hnB)}
    v_mul_f32 {v(sn)}, {v(hnB)}, {v(sg)}
    s_mov_b64 exec, 0xffff
    v_cvt_pk_f16_f32 {v(Hc)}, {v(e0)}, {v(e1)}
    v_cvt_pk_f16_f32 {v(Hc+4)}, {v(e0)}, {v(e1)}
    v_cvt_pk_f16_f32 {v(Hs)}, {v(cs)}, {v(sn)}
    v_cvt_pk_f16_f32 {v(Hs+4)}, {v(cs)}, {v(sn)}
    s_mov_b64 exec, -1
    ''')
    if OPT['debug'] >= 2:
        dump(10, Ga, 16); dump(11, Gb, 16); dump(12, GR[0], 12); dump(13, Ec, 16); dump(14, Es, 16); dump(15, Hc, 16)
    A('s_branch EH_DONE')
    return V.hi

def descriptor(name, nv):
    nv = (nv + 7) // 8 * 8
    return f'''.section .rodata,"a"
.p2align 6
.amdhsa_kernel {name}
  .amdhsa_next_free_vgpr {nv}
  .amdhsa_next_free_sgpr 96
  .amdhsa_accum_offset {nv}
  .amdhsa_group_segment_fixed_size 0
  .amdhsa_kernarg_size 104
  .amdhsa_user_sgpr_count 2
  .amdhsa_user_sgpr_kernarg_segment_ptr 1
  .amdhsa_system_sgpr_workgroup_id_x 1
.end_amdhsa_kernel
'''

hdr = open('cdna_kernels/' + NAME + '.s.ref').read().split('; Override launch')[0]
nv2 = gen_main()
npad = A.pad()
out = hdr
out += f'; @launch grid=(256,1,1) block=(256,1,1) lds={LDS_MAIN}\n'
out += '.amdgcn_target "amdgcn-amd-amdhsa--gfx950"\n.text\n'
out += A.text()
out += descriptor(MAIN, nv2)
open(sys.argv[1], 'w').write(out)
print('vgprs', nv2, 'pad states', npad, 'lines', out.count('\n'))
```

```python
import sys, math
sys.path.insert(0, 'work')
from asmlib import *

NAME = 'interleave_layers__spectral_fnet__spectral_fnet__prompt'
MAIN = NAME + '_kernel'
WS_SIZE = 0x2000000
GSH = 21
H0B, FLG, EOFF, SB, XB, FB, DUMPB = 0, 0x60000, 0x68000, 0x70000, 0x80000, 0x100000, 0x2000000
SSTR, XSTR = 0x4000, 0x20000
HWG, HSL = 24576, 384
LDS_W, LDS_Q, LDS_R = 0, 8192, 16384
ROWB = 2176
LDS_MAIN = LDS_R + 4 * 2 * ROWB
BOUND = 20000
OPT = dict(debug=0, stamps=0, xp=0, sl=0, fp=0, hp=0, spin=0, om=0)
for a in sys.argv[2:]:
    k, val = a.split('='); OPT[k] = int(val)

if OPT['debug']: WS_SIZE = 0x10000000
A = Asm()

def wg_indices(sK, sL, sN, sT):
    A(f'''
    s_and_b32 {s(sK)}, s2, 7
    s_lshl_b32 {s(sK)}, {s(sK)}, 1
    s_bfe_u32 {s(sT)}, s2, 0x10003
    s_or_b32 {s(sK)}, {s(sK)}, {s(sT)}
    s_lshr_b32 {s(sL)}, s2, 4
    s_lshl_b32 {s(sN)}, {s(sK)}, 4
    s_or_b32 {s(sN)}, {s(sN)}, {s(sL)}
    ''')

def rows_scalar(sK, sTau, sR, sM, t0, t1):
    A(f'''
    s_lshr_b32 {s(t0)}, {s(sTau)}, 5
    s_and_b32 {s(t1)}, {s(sTau)}, 31
    s_lshl_b32 {s(sR)}, {s(t1)}, 6
    s_lshl_b32 {s(sM)}, {s(t0)}, 5
    s_add_u32 {s(sM)}, {s(sM)}, {s(sK)}
    s_cmp_ge_u32 {s(t1)}, 16
    s_cselect_b32 {s(t1)}, -992, 0
    s_cmp_eq_u32 {s(t0)}, 1
    s_cselect_b32 {s(t1)}, 16, {s(t1)}
    s_cmp_eq_u32 {s(sK)}, 0
    s_cselect_b32 {s(sM)}, {s(t1)}, {s(sM)}
    s_add_u32 {s(sR)}, {s(sR)}, {s(sM)}
    s_sub_u32 {s(sM)}, 2048, {s(sR)}
    s_cmp_eq_u32 {s(sR)}, 0
    s_cselect_b32 {s(sM)}, 1024, {s(sM)}
    s_lshl_b32 {s(sR)}, {s(sR)}, 11
    s_lshl_b32 {s(sM)}, {s(sM)}, 11
    ''')

def relayout_addrs(vL, sBase, vLin, vRep, vMir, vA0, vC0, vD0, t0, t1, sm):
    def pos(dst, col, tmp):
        A(f'''
        v_lshrrev_b32 {v(tmp)}, 8, {v(col)}
        v_lshlrev_b32 {v(tmp)}, 5, {v(tmp)}
        v_lshl_add_u32 {v(dst)}, {v(col)}, 1, {v(tmp)}
        v_add_u32 {v(dst)}, {s(sBase)}, {v(dst)}
        ''')
    A(f'''
    v_lshrrev_b32 {v(t0)}, 5, {v(vL)}
    v_lshlrev_b32 {v(t0)}, 5, {v(t0)}
    v_lshl_add_u32 {v(vLin)}, {v(vL)}, 4, {v(t0)}
    v_add_u32 {v(vLin)}, {s(sBase)}, {v(vLin)}
    v_and_b32 {v(t0)}, 3, {v(vL)}
    v_lshlrev_b32 {v(t0)}, 8, {v(t0)}
    v_lshrrev_b32 {v(t1)}, 2, {v(vL)}
    v_add_u32 {v(vA0)}, {v(t0)}, {v(t1)}
    v_and_b32 {v(t0)}, 1, {v(vL)}
    v_lshlrev_b32 {v(t0)}, 8, {v(t0)}
    v_and_b32 {v(t1)}, 2, {v(vL)}
    v_lshl_add_u32 {v(t0)}, {v(t1)}, 3, {v(t0)}
    v_cmp_gt_u32 {s(sm,2)}, 4, {v(vL)}
    v_cndmask_b32 {v(vA0)}, {v(vA0)}, {v(t0)}, {s(sm,2)}
    ''')
    pos(vRep, vA0, t0)
    A(f'v_sub_u32 {v(t1)}, {1024-224}, {v(vA0)}')
    pos(vMir, t1, t0)
    A(f'''
    v_sub_u32 {v(t1)}, 1024, {v(vA0)}
    v_and_b32 {v(t1)}, 1023, {v(t1)}
    ''')
    pos(vC0, t1, t0)
    A(f'''
    v_cmp_eq_u32 {s(sm,2)}, 0, {v(vL)}
    v_mov_b32 {v(t0)}, {2*512+64}
    v_cndmask_b32 {v(t0)}, 0, {v(t0)}, {s(sm,2)}
    v_add_u32 {v(vA0)}, {v(vRep)}, {v(t0)}
    v_add_u32 {v(vD0)}, {v(vC0)}, {v(t0)}
    ''')

def slot_addr(k, c, vRep, vMir, vA0, vC0, vD0):
    row = ROWB if k in (1, 3) else 0
    if c == 0:
        return [(vA0, 0), (vRep, ROWB), (vC0, 0), (vD0, ROWB)][k]
    if k < 2: return (vRep, row + 64 * c)
    return (vMir, row + 64 * (7 - c))

def red64x2(a, b, u):
    A(f'''
    v_permlane32_swap_b32 {v(a)}, {v(b)}
    v_add_f32 {v(a)}, {v(a)}, {v(b)}
    v_add_f32_dpp {v(a)}, {v(a)}, {v(a)} row_ror:8 row_mask:0xf bank_mask:0xf
    v_add_f32_dpp {v(a)}, {v(a)}, {v(a)} row_ror:4 row_mask:0xf bank_mask:0xf
    v_add_f32_dpp {v(a)}, {v(a)}, {v(a)} row_ror:2 row_mask:0xf bank_mask:0xf
    v_add_f32_dpp {v(a)}, {v(a)}, {v(a)} row_ror:1 row_mask:0xf bank_mask:0xf
    v_mov_b32 {v(u)}, {v(a)}
    v_permlane16_swap_b32 {v(a)}, {v(u)}
    v_add_f32 {v(a)}, {v(a)}, {v(u)}
    ''')

STB = 0x180000
def stamp(idx, base=56):
    if OPT['stamps']: A(f's_memrealtime {s(base+2*idx,2)}')
def stamp_flush(vS, n, lane0, base=56, sLane=None, tmp=None):
    if not OPT['stamps']: return
    A('s_waitcnt lgkmcnt(0)')
    for k in range(n):
        if sLane is None: A(f'v_writelane_b32 {v(vS)}, {s(base+2*k)}, {lane0+k}')
        else:
            A(f's_add_u32 m0, {s(sLane)}, {lane0+k}')
            A(f'v_writelane_b32 {v(vS)}, {s(base+2*k)}, m0')
def stamp_store(vS, vL, sW, which, sWv, t0, t1, vt):
    if not OPT['stamps']: return
    A(f'''
    s_mov_b64 exec, -1
    s_lshl_b32 {s(t0)}, s2, 10
    s_lshl_b32 {s(t1)}, {s(sWv)}, 8
    s_add_u32 {s(t0)}, {s(t0)}, {s(t1)}
    s_add_u32 {s(t0)}, {s(t0)}, {STB}
    v_lshlrev_b32 {v(vt)}, 2, {v(vL)}
    buffer_store_dword {v(vS)}, {v(vt)}, {s(sW,4)}, {s(t0)} offen
    ''')

def kernel_head(name):
    A.raw(f'.globl {name}\n.p2align 8\n.type {name},@function\n{name}:')
    A.raw('.KERNEL')

def gen_main():
    kernel_head(MAIN)
    V = Regs('v', 1, 256)
    sW, sO, sD, sX = 4, 8, 12, 84
    (sK, sL, sN, sWv, sLay, sXb, sXb2, sSb, sCnt, sErr, t0, t1, t2, t3, sSpec, sEA, sEB, sEC, sEnB, sTau, sR, sM,
     sBase, sFo2, sFo3, sT) = range(16, 42)
    sGb, sHa, sHb, sHin = 50, 51, 53, 55
    sRho = 42
    sm = 44; sm2 = 46; sG0 = 48
    vL = V.alloc(); vI = V.alloc(); vG = V.alloc()
    vXin = V.alloc(); vXout = V.alloc(); vSout = V.alloc(); vSin = V.alloc(); vFout = V.alloc(); vFin = V.alloc()
    vWa1 = V.alloc(); vWa2 = V.alloc(); vWr = V.alloc(); vQw = V.alloc(); vQr = V.alloc()
    vDump = V.alloc(); vFlag = V.alloc(); vFlagD = V.alloc()
    vOne = V.alloc(4, 4)
    X = [V.alloc(8, 4) for _ in range(4)]
    Ga = V.alloc(8, 4); Ga2 = V.alloc(8, 4); Gb = V.alloc(8, 4); Gb2 = V.alloc(8, 4)
    GR = [V.alloc(4, 4) for _ in range(3)]
    Ec = V.alloc(16, 4); Es = V.alloc(16, 4); Hc = V.alloc(8, 4); Hs = V.alloc(8, 4)
    M2 = V.alloc(2, 2); M3 = V.alloc(2, 2); M4 = V.alloc(2, 2)
    St = V.alloc(4, 4)
    Ps = V.alloc(2, 2); Pc = V.alloc(2, 2)
    T = V.alloc(80, 4)

    def poll_tail(lab, code, vt):
        done = A.newlabel('DONE')
        A(f'''
        v_cmp_eq_u32 vcc, -1, {v(vt)}
        s_sub_u32 {s(sCnt)}, {s(sCnt)}, 1
        s_cbranch_vccz {done}
        s_cbranch_scc0 {lab}
        s_or_b32 {s(sErr)}, {s(sErr)}, {code}
        {done}:
        ''')
    def maxall(regs, vt, vt2):
        regs = list(regs)
        accs = [vt, vt2]; first = [True, True]; k = 0
        while regs:
            a = accs[k]
            if first[k]:
                if len(regs) >= 3: A(f'v_max3_u32 {v(a)}, {v(regs[0])}, {v(regs[1])}, {v(regs[2])}'); regs = regs[3:]
                else: raise Exception
                first[k] = False
            elif len(regs) >= 2: A(f'v_max3_u32 {v(a)}, {v(a)}, {v(regs[0])}, {v(regs[1])}'); regs = regs[2:]
            else: A(f'v_max_u32 {v(a)}, {v(a)}, {v(regs[0])}'); regs = regs[1:]
            k ^= 1
        A(f'v_max_u32 {v(vt)}, {v(vt)}, {v(vt2)}')
    sDbg = 52
    def dump(slot, reg, n, lay=0):
        if not OPT['debug']: return
        A(f's_mul_i32 {s(sDbg)}, {s(sLay)}, {lay * 0x400000}')
        A(f's_add_u32 {s(sDbg)}, {s(sDbg)}, {DUMPB + slot * 0x400000}')
        for r in range(0, n, 4):
            A(f'buffer_store_dwordx4 {v(reg+r,4)}, {v(vDump)}, {s(sW,4)}, {s(sDbg)} offen offset:{4*r}')
        A('s_waitcnt vmcnt(0)')
    vStamp = V.alloc()

    sLn = 54
    stamp(0)
    if OPT['spin']: A('s_memrealtime s[88:89]')
    tau = T + 1; a0 = T + 2; a1 = T + 3
    vL16 = T + 16; vRow = X[0]
    A(f"""
    s_cmp_ge_u32 s2, 256
    s_cbranch_scc1 MAIN_END
    s_load_dwordx2 {s(sX,2)}, s[0:1], 0
    s_load_dwordx2 {s(sW,2)}, s[0:1], 96
    s_load_dwordx4 {s(sO,4)}, s[0:1], 80
    v_lshrrev_b32 {v(T)}, 6, v0
    v_and_b32 {v(vL)}, 63, v0
    v_readfirstlane_b32 {s(sWv)}, {v(T)}
    s_mov_b32 {s(sX+2)}, 0x400000
    s_mov_b32 {s(sX+3)}, 0x00020000
    s_mov_b32 {s(sW+2)}, {WS_SIZE}
    s_mov_b32 {s(sW+3)}, 0x00020000
    v_lshlrev_b32 {v(vL16)}, 4, {v(vL)}
    """)
    wg_indices(sK, sL, sN, t0)
    A(f"""
    s_lshl_b32 {s(sTau)}, {s(sL)}, 2
    s_add_u32 {s(sTau)}, {s(sTau)}, {s(sWv)}
    """)
    rows_scalar(sK, sTau, sR, sM, t0, t1)
    A(f"""
    v_and_b32 {v(vI)}, 15, v0
    v_lshrrev_b32 {v(vG)}, 4, {v(vL)}
    s_lshl_b32 {s(sGb)}, {s(sK)}, {GSH}
    s_waitcnt lgkmcnt(0)
    buffer_load_dwordx4 {v(vRow,4)}, {v(vL16)}, {s(sX,4)}, {s(sR)} offen
    buffer_load_dwordx4 {v(vRow+4,4)}, {v(vL16)}, {s(sX,4)}, {s(sR)} offen offset:1024
    buffer_load_dwordx4 {v(vRow+8,4)}, {v(vL16)}, {s(sX,4)}, {s(sM)} offen
    buffer_load_dwordx4 {v(vRow+12,4)}, {v(vL16)}, {s(sX,4)}, {s(sM)} offen offset:1024
    s_load_dword {s(sT)}, {s(sW,2)}, {EOFF}
    s_mov_b32 {s(sD)}, {s(sO+2)}
    s_mov_b32 {s(sD+1)}, {s(sO+3)}
    s_mov_b32 {s(sO+2)}, 0x400000
    s_mov_b32 {s(sO+3)}, 0x00020000
    s_mov_b32 {s(sD+2)}, 256
    s_mov_b32 {s(sD+3)}, 0x00020000
    v_mov_b32 {v(vOne)}, -1
    v_mov_b32 {v(vOne+1)}, -1
    v_mov_b32 {v(vOne+2)}, -1
    v_mov_b32 {v(vOne+3)}, -1
    s_lshl_b32 {s(t0)}, {s(sL)}, 13
    s_add_u32 {s(t0)}, {s(t0)}, {s(sGb)}
    s_lshr_b32 {s(t1)}, {s(sWv)}, 1
    s_lshl_b32 {s(t1)}, {s(t1)}, 12
    s_add_u32 {s(t0)}, {s(t0)}, {s(t1)}
    s_and_b32 {s(t1)}, {s(sWv)}, 1
    s_lshl_b32 {s(t2)}, {s(t1)}, 8
    s_add_u32 {s(t0)}, {s(t0)}, {s(t2)}
    v_lshlrev_b32 {v(a0)}, 4, {v(vI)}
    v_lshl_add_u32 {v(vXout)}, {v(vG)}, 10, {v(a0)}
    v_add_u32 {v(vXout)}, {s(t0)}, {v(vXout)}
    s_mov_b32 {s(sXb)}, {XB}
    s_mov_b32 {s(sXb2)}, {XB + (2 << GSH)}
    buffer_store_dwordx4 {v(vOne,4)}, {v(vXout)}, {s(sW,4)}, {s(sXb)} offen sc1
    buffer_store_dwordx4 {v(vOne,4)}, {v(vXout)}, {s(sW,4)}, {s(sXb)} offen offset:512 sc1
    s_lshl_b32 {s(t0)}, {s(sL)}, 10
    s_min_u32 {s(t2)}, {s(sWv)}, 2
    s_mul_i32 {s(t2)}, {s(t2)}, {SSTR}
    s_add_u32 {s(t0)}, {s(t0)}, {s(sGb)}
    s_add_u32 {s(t2)}, {s(t2)}, {s(t0)}
    s_add_u32 {s(t2)}, {s(t2)}, {SB}
    buffer_store_dwordx4 {v(vOne,4)}, {v(vL16)}, {s(sW,4)}, {s(t2)} offen sc1
    s_mov_b32 {s(sErr)}, 0
    s_mov_b32 {s(sLay)}, 0
    s_mov_b32 {s(sSb)}, {SB}
    ; tau = 16 w + i
    s_lshl_b32 {s(t2)}, {s(sWv)}, 4
    v_add_u32 {v(tau)}, {s(t2)}, {v(vI)}
    v_lshlrev_b32 {v(a1)}, 4, {v(tau)}
    v_lshl_add_u32 {v(vSout)}, {v(vG)}, 2, {v(a1)}
    v_add_u32 {v(vSout)}, {s(t0)}, {v(vSout)}
    v_lshl_add_u32 {v(vSin)}, {v(vG)}, 12, {v(a1)}
    v_add_u32 {v(vSin)}, {s(sGb)}, {v(vSin)}
    v_lshrrev_b32 {v(a0)}, 5, {v(vL)}
    v_lshlrev_b32 {v(vXin)}, {GSH}, {v(a0)}
    v_bfe_u32 {v(a0)}, {v(vL)}, 1, 4
    v_lshl_add_u32 {v(vXin)}, {v(a0)}, 13, {v(vXin)}
    v_and_b32 {v(a0)}, 1, {v(vL)}
    v_lshl_add_u32 {v(vXin)}, {v(a0)}, 4, {v(vXin)}
    s_lshl_b32 {s(t2)}, {s(sWv)}, {GSH+2}
    s_lshl_b32 {s(t3)}, {s(sN)}, 5
    s_add_u32 {s(t2)}, {s(t2)}, {s(t3)}
    v_add_u32 {v(vXin)}, {s(t2)}, {v(vXin)}
    s_lshl_b32 {s(t2)}, {s(sWv)}, 11
    s_add_u32 {s(t2)}, {s(t2)}, {LDS_Q}
    v_add_u32 {v(vQw)}, {s(t2)}, {v(vL16)}
    v_lshrrev_b32 {v(a0)}, 2, {v(tau)}
    v_lshlrev_b32 {v(vFout)}, 14, {v(a0)}
    v_and_b32 {v(a0)}, 3, {v(vI)}
    v_lshl_add_u32 {v(vFout)}, {v(a0)}, 6, {v(vFout)}
    v_lshl_add_u32 {v(vFout)}, {v(vG)}, 4, {v(vFout)}
    v_add_u32 {v(vFout)}, {s(t0)}, {v(vFout)}
    v_lshrrev_b32 {v(a0)}, 2, {v(vL)}
    v_lshlrev_b32 {v(vFin)}, 10, {v(a0)}
    v_and_b32 {v(a0)}, 3, {v(vL)}
    v_lshl_add_u32 {v(vFin)}, {v(a0)}, 4, {v(vFin)}
    s_lshl_b32 {s(t2)}, {s(sL)}, 14
    s_add_u32 {s(t2)}, {s(t2)}, {s(sGb)}
    s_lshl_b32 {s(t3)}, {s(sWv)}, 6
    s_add_u32 {s(t2)}, {s(t2)}, {s(t3)}
    v_add_u32 {v(vFin)}, {s(t2)}, {v(vFin)}
    """)
    A(f'''
    v_lshlrev_b32 {v(a0)}, 4, {v(vI)}
    v_lshl_add_u32 {v(vWr)}, {v(vG)}, 8, {v(a0)}
    v_lshl_add_u32 {v(vQr)}, {v(vG)}, 9, {v(a0)}
    s_lshl_b32 {s(t2)}, {s(t1)}, 10
    v_add_u32 {v(vWr)}, {s(t2)}, {v(vWr)}
    v_add_u32 {v(vQr)}, {LDS_Q}, {v(vQr)}
    v_lshrrev_b32 {v(a1)}, 1, {v(vG)}
    v_lshl_add_u32 {v(a0)}, {v(a1)}, 8, {v(a0)}
    v_and_b32 {v(a1)}, 1, {v(vG)}
    v_lshl_add_u32 {v(a0)}, {v(a1)}, 3, {v(a0)}
    s_lshr_b32 {s(t0)}, {s(sWv)}, 1
    s_lshl_b32 {s(t0)}, {s(t0)}, 11
    s_lshl_b32 {s(t2)}, {s(t1)}, 9
    s_add_u32 {s(t0)}, {s(t0)}, {s(t2)}
    s_lshl_b32 {s(t2)}, {s(sWv)}, 12
    s_lshl_b32 {s(t3)}, {s(sK)}, 2
    s_or_b32 {s(sSpec)}, {s(t3)}, {s(sWv)}
    s_cmp_lt_u32 {s(sSpec)}, 2
    s_cselect_b32 {s(t0)}, {s(t2)}, {s(t0)}
    s_cselect_b32 {s(t2)}, 1, 8
    s_lshl_b32 {s(t2)}, {s(t2)}, 9
    s_add_u32 {s(t2)}, {s(t2)}, {s(t0)}
    v_add_u32 {v(vWa1)}, {s(t0)}, {v(a0)}
    v_add_u32 {v(vWa2)}, {s(t2)}, {v(a0)}
    s_cmp_eq_u32 {s(sSpec)}, 0
    s_cselect_b32 {s(sRho)}, 0x00010001, 0
    s_mov_b32 {s(sRho+1)}, {s(sRho)}
    v_mov_b32 {v(M2)}, 1.0
    v_mov_b32 {v(M2+1)}, 1.0
    v_mov_b32 {v(M3)}, 1.0
    v_mov_b32 {v(M3+1)}, 1.0
    v_mov_b32 {v(M4)}, 1.0
    v_mov_b32 {v(M4+1)}, 1.0
    s_cmp_eq_u32 {s(sL)}, 0
    s_cselect_b32 exec_lo, 0xffff, 0
    s_mov_b32 exec_hi, 0
    v_mov_b32 {v(M2)}, 0
    v_mov_b32 {v(M3)}, 0
    s_and_b32 exec_lo, exec_lo, {s(sRho)}
    v_mov_b32 {v(M3)}, 1.0
    v_mov_b32 {v(M4)}, 0
    s_mov_b64 exec, -1
    v_mov_b32 {v(vStamp)}, 0
    ''')
    if OPT['debug']:
        A(f'''
        s_lshl_b32 {s(t0)}, {s(sN)}, 8
        v_add_u32 {v(vDump)}, {s(t0)}, v0
        v_lshlrev_b32 {v(vDump)}, 6, {v(vDump)}
        ''')

    stamp(1)
    fr = T + 4; ph = T + 5; arg = T + 6; c0 = T + 8; stp = T + 7; gf = T + 10; amp = T + 11; voff = T + 12; Z = T + 13; arg2 = T + 14
    def f_ph(x_sgpr_or_imm):
        A(f'''
        v_lshrrev_b32 {v(a0)}, 1, {v(vI)}
        v_cvt_f32_u32 {v(fr)}, {v(a0)}
        v_and_b32 {v(a1)}, 1, {v(vI)}
        v_cvt_f32_u32 {v(ph)}, {v(a1)}
        v_mul_f32 {v(fr)}, {f32(1/32)}, {v(fr)}
        v_mul_f32 {v(ph)}, {f32(0.25)}, {v(ph)}
        v_add_f32 {v(fr)}, {x_sgpr_or_imm}, {v(fr)}
        v_cmp_eq_f32 vcc, 0, {v(fr)}
        v_cndmask_b32 {v(a0)}, 0, {v(ph)}, vcc
        v_fmac_f32 {v(fr)}, 2.0, {v(a0)}
        v_sub_f32 {v(ph)}, {v(ph)}, {v(a0)}
        ''')
    def cos_row(dst, step, scaled=False, first=None):
        for c in range(8):
            src = first if (c == 0 and first is not None) else arg
            A(f'v_cos_f32 {v(c0 + (c & 1))}, {v(src)}')
            if c < 7: A(f'v_add_f32 {v(arg)}, {v(arg)}, {v(step)}')
            if scaled: A(f'v_fma_f32 {v(c0 + (c & 1))}, {v(c0 + (c & 1))}, {v(amp)}, {v(voff)}')
            if c & 1: A(f'v_cvt_pk_f16_f32 {v(dst + c // 2)}, {v(c0)}, {v(c0+1)}')
    A(f'''
    v_cvt_f32_u32 {v(gf)}, {v(vG)}
    v_mul_f32 {v(gf)}, {f32(8.0)}, {v(gf)}
    s_cmp_eq_u32 {s(sL)}, 0
    s_cbranch_scc1 GCOL0
    ''')
    for cb in range(2):
        f_ph('0' if cb == 0 else f32(0.25))
        A(f'v_fma_f32 {v(arg)}, {v(fr)}, {v(gf)}, -{v(ph)}')
        cos_row(Ga + 4 * cb, fr)
    for r in range(0, 8, 2): A(f'v_mov_b64 {v(Ga2+r,2)}, {v(Ga+r,2)}')
    A('GCOL_DONE:')
    A(f'''
    s_lshr_b32 {s(t0)}, {s(sWv)}, 1
    s_mul_i32 {s(t0)}, {s(t0)}, {f32(0.25)}
    ''')
    f_ph(s(t0))
    A(f'v_fma_f32 {v(arg)}, {v(fr)}, {v(gf)}, -{v(ph)}')
    cos_row(GR[1], fr)
    A(f'''
    s_cmp_eq_u32 {s(sK)}, 0
    s_cbranch_scc1 GROW0
    ''')
    for r in range(0, 4, 2):
        A(f'v_mov_b64 {v(GR[0]+r,2)}, {v(GR[1]+r,2)}')
        A(f'v_mov_b64 {v(GR[2]+r,2)}, {v(GR[1]+r,2)}')
    A('GROW_DONE:')
    vLin, vRep0, vA0, vMir0, vC0, vRep1, vMir1, vH = range(Hc, Hc + 8)
    vE, vEm, q0, q1 = range(Hs, Hs + 4)
    vHin = T + 38; GRN = T + 40; HI = T + 64; vF = Ec
    def dreg(h, j): return GRN + 12 * h + 4 * (j // 3) + 1 + j % 3
    def pos(dst, col, rowoff):
        A(f"""
        v_lshrrev_b32 {v(q1)}, 8, {v(col)}
        v_lshl_add_u32 {v(q1)}, {v(q1)}, 5, {v(rowoff)}
        v_lshl_add_u32 {v(dst)}, {v(col)}, 1, {v(q1)}
        """)
    A(f"""
    s_mul_i32 {s(sBase)}, {s(sWv)}, {2*ROWB}
    s_add_u32 {s(sBase)}, {s(sBase)}, {LDS_R}
    v_lshrrev_b32 {v(q0)}, 5, {v(vL)}
    v_lshlrev_b32 {v(q0)}, 5, {v(q0)}
    v_lshl_add_u32 {v(vLin)}, {v(vL)}, 4, {v(q0)}
    v_add_u32 {v(vLin)}, {s(sBase)}, {v(vLin)}
    s_mov_b32 {s(sm)}, 0xf0f0f0f0
    s_mov_b32 {s(sm+1)}, 0xf0f0f0f0
    s_add_u32 {s(t0)}, {s(sBase)}, {ROWB}
    v_mov_b32 {v(q0)}, {s(sBase)}
    v_mov_b32 {v(q1)}, {s(t0)}
    v_cndmask_b32 {v(vE)}, {v(q0)}, {v(q1)}, {s(sm,2)}
    s_cmp_eq_u32 {s(sR)}, 0
    s_cselect_b32 {s(t1)}, -1, 0
    s_xor_b32 {s(sm2)}, {s(sm)}, {s(t1)}
    s_mov_b32 {s(sm2+1)}, {s(sm2)}
    v_cndmask_b32 {v(vEm)}, {v(q0)}, {v(q1)}, {s(sm2,2)}
    v_and_b32 {v(q0)}, 3, {v(vL)}
    v_lshrrev_b32 {v(vH)}, 3, {v(vL)}
    v_lshl_add_u32 {v(vA0)}, {v(q0)}, 8, {v(vH)}
    v_add_u32 {v(q0)}, 8, {v(vA0)}
    """)
    pos(vRep1, q0, vE)
    A(f'v_sub_u32 {v(q0)}, {1024-224-8}, {v(vA0)}')
    pos(vMir1, q0, vEm)
    A(f"""
    v_and_b32 {v(q0)}, 1, {v(vL)}
    v_lshlrev_b32 {v(q0)}, 8, {v(q0)}
    v_and_b32 {v(q1)}, 2, {v(vL)}
    s_mov_b64 exec, 0xff
    v_lshl_add_u32 {v(vA0)}, {v(q1)}, 3, {v(q0)}
    s_mov_b64 exec, -1
    """)
    pos(vRep0, vA0, vE)
    A(f'v_sub_u32 {v(q0)}, {1024-224}, {v(vA0)}')
    pos(vMir0, q0, vEm)
    A(f"""
    v_sub_u32 {v(q0)}, 1024, {v(vA0)}
    v_and_b32 {v(q0)}, 1023, {v(q0)}
    """)
    pos(vC0, q0, vEm)
    A(f"""
    v_mov_b32 {v(vA0)}, {v(vRep0)}
    s_mov_b64 exec, 1
    v_add_u32 {v(vA0)}, {2*512+64}, {v(vA0)}
    s_and_b32 exec_lo, {s(sm2)}, 0x11
    v_add_u32 {v(vC0)}, {2*512+64}, {v(vC0)}
    s_mov_b64 exec, -1
    s_mov_b32 {s(t0)}, {HWG}
    v_mul_lo_u32 {v(vH)}, {v(vH)}, {s(t0)}
    v_and_b32 {v(q0)}, 7, {v(vL)}
    v_lshl_add_u32 {v(vH)}, {v(q0)}, 4, {v(vH)}
    s_mul_i32 {s(sHa)}, {s(sTau)}, {HSL}
    s_add_u32 {s(sHa)}, {s(sHa)}, {s(sGb)}
    s_add_u32 {s(sHb)}, {s(sHa)}, {H0B + 8*HWG}
    s_add_u32 {s(sHa)}, {s(sHa)}, {H0B}
    v_mul_u32_u24 {v(vHin)}, {HSL}, {v(tau)}
    v_lshl_add_u32 {v(vHin)}, {v(vG)}, 4, {v(vHin)}
    s_mul_i32 {s(sHin)}, {s(sL)}, {HWG}
    s_add_u32 {s(sHin)}, {s(sHin)}, {s(sGb)}
    s_add_u32 {s(sHin)}, {s(sHin)}, {H0B}
    s_waitcnt lgkmcnt(0)
    s_mul_i32 {s(sT)}, {s(sT)}, 0x19660d
    s_add_u32 {s(sT)}, {s(sT)}, 0x3c6ef35f
    """)
    for h in range(2):
        for t in range(3): A(f'v_mov_b32 {v(GRN+12*h+4*t)}, {s(sT)}')
    stamp(2)
    A('s_waitcnt vmcnt(3)')
    stamp(3)
    A(f"""
    ds_write_b128 {v(vLin)}, {v(vRow,4)}
    ds_write_b128 {v(vLin)}, {v(vRow+4,4)} offset:1088
    ds_write_b128 {v(vLin)}, {v(vRow+8,4)} offset:{ROWB}
    ds_write_b128 {v(vLin)}, {v(vRow+12,4)} offset:{ROWB+1088}
    """)
    for r in range(16):
        A(f"""
        v_lshlrev_b32 {v(vF+2*r)}, 16, {v(vRow+r)}
        v_and_b32 {v(vF+2*r+1)}, 0xffff0000, {v(vRow+r)}
        """)
    A('s_waitcnt lgkmcnt(0)')
    for h in range(2):
        for part in range(2):
            for c in range(8):
                if part == 0: ad, off = ((vA0, 0) if (c == 0 and h == 0) else ((vRep0, vRep1)[h], 64 * c))
                else: ad, off = ((vC0, 0) if (c == 0 and h == 0) else ((vMir0, vMir1)[h], 64 * (7 - c)))
                j = 4 * part + c // 2
                A(f'ds_read_u16 {v(HI+8*h+j if c & 1 else dreg(h, j))}, {v(ad)} offset:{off}')
    a, b, u, m = T + 4, T + 6, T + 8, T + 10
    for (acc, base) in ((a, vF), (b, vF + 16)):
        A(f'v_pk_add_f32 {v(acc,2)}, {v(base,2)}, {v(base+2,2)}')
    for p in range(2, 8):
        for (acc, base) in ((a, vF), (b, vF + 16)):
            A(f'v_pk_add_f32 {v(acc,2)}, {v(acc,2)}, {v(base+2*p,2)}')
    A(f"""
    v_add_f32 {v(a)}, {v(a)}, {v(a+1)}
    v_add_f32 {v(b)}, {v(b)}, {v(b+1)}
    """)
    red64x2(a, b, u)
    A(f"""
    v_mul_f32 {v(m)}, {f32(1/1024)}, {v(a)}
    v_mov_b32 {v(u)}, {v(m)}
    v_mov_b32 {v(u+1)}, {v(m)}
    v_permlane32_swap_b32 {v(u)}, {v(u+1)}
    """)
    for p in range(8):
        A(f'v_pk_add_f32 {v(vF+2*p,2)}, {v(vF+2*p,2)}, {v(u,2)} op_sel_hi:[1,0] neg_lo:[0,1] neg_hi:[0,1]')
        A(f'v_pk_add_f32 {v(vF+16+2*p,2)}, {v(vF+16+2*p,2)}, {v(u,2)} op_sel:[0,1] op_sel_hi:[1,1] neg_lo:[0,1] neg_hi:[0,1]')
    for (acc, base) in ((a, vF), (b, vF + 16)):
        A(f'v_pk_mul_f32 {v(acc,2)}, {v(base,2)}, {v(base,2)}')
    for p in range(1, 8):
        for (acc, base) in ((a, vF), (b, vF + 16)):
            A(f'v_pk_fma_f32 {v(acc,2)}, {v(base+2*p,2)}, {v(base+2*p,2)}, {v(acc,2)}')
    A(f"""
    v_add_f32 {v(a)}, {v(a)}, {v(a+1)}
    v_add_f32 {v(b)}, {v(b)}, {v(b+1)}
    s_waitcnt lgkmcnt(0)
    """)
    def hstore(h, t):
        A(f'buffer_store_dwordx4 {v(GRN+12*h+4*t,4)}, {v(vH)}, {s(sW,4)}, {s((sHa, sHb)[h])} offen offset:{128*t} sc1')
    for h in range(2):
        for j in range(8):
            A(f'v_lshl_or_b32 {v(dreg(h, j))}, {v(HI+8*h+j)}, 16, {v(dreg(h, j))}')
            if j in (2, 5): hstore(h, j // 3)
    red64x2(a, b, u)
    A(f"""
    v_mov_b32 {v(u)}, {f32(1e-5)}
    v_fmac_f32 {v(u)}, {f32(1/1024)}, {v(a)}
    v_rsq_f32 {v(a)}, {v(u)}
    s_mov_b32 {s(sm2)}, 0xaaaaaaaa
    s_mov_b32 {s(sm2+1)}, 0xaaaaaaaa
    v_mul_f32 {v(a+1)}, {v(m)}, {v(a)}
    v_cndmask_b32 {v(a)}, {v(a)}, {v(a+1)}, {s(sm2,2)}
    v_mov_b32 {v(a+1)}, {v(a)}
    v_permlane32_swap_b32 {v(a)}, {v(a+1)}
    v_cndmask_b32 {v(dreg(0, 8))}, {v(a)}, {v(a+1)}, {s(sm,2)}
    v_cndmask_b32 {v(dreg(1, 8))}, {v(a)}, {v(a+1)}, {s(sm,2)}
    """)
    hstore(0, 2); hstore(1, 2)
    A(f"""
    s_mov_b32 {s(t0)}, {XB + XSTR}
    buffer_store_dwordx4 {v(vOne,4)}, {v(vXout)}, {s(sW,4)}, {s(t0)} offen sc1
    buffer_store_dwordx4 {v(vOne,4)}, {v(vXout)}, {s(sW,4)}, {s(t0)} offen offset:512 sc1
    """)
    stamp(4)
    A(f"""
    s_waitcnt vmcnt(8)
    s_barrier
    s_cmp_lg_u32 {s(sWv)}, 0
    s_cbranch_scc1 NOFLAG
    s_lshl_b32 {s(t0)}, {s(sL)}, 4
    s_add_u32 {s(t0)}, {s(t0)}, {s(sGb)}
    v_mov_b32 {v(vFlag)}, {FLG}
    s_mov_b64 exec, 1
    buffer_store_dword {v(GRN)}, {v(vFlag)}, {s(sW,4)}, {s(t0)} offen sc1
    s_mov_b64 exec, -1
    NOFLAG:
    s_branch EHGEN
    EH_DONE:
    """)
    stamp(5)
    vt = T + 68; vt2 = T + 69
    A(f"""
    v_lshlrev_b32 {v(vFlag)}, {GSH}, {v(vG)}
    v_lshl_add_u32 {v(vFlag)}, {v(vI)}, 4, {v(vFlag)}
    s_lshl_b32 {s(sHa)}, {s(sWv)}, {GSH+2}
    s_add_u32 {s(sHa)}, {s(sHa)}, {FLG}
    s_mov_b32 {s(sCnt)}, {BOUND}
    s_waitcnt vmcnt(0)
    """)
    if OPT['hp']: A(f's_sleep {OPT["hp"]}')
    A('HPOLL:')
    for t in range(3):
        for e in range(2):
            A(f'buffer_load_dwordx4 {v(GRN+12*e+4*t,4)}, {v(vHin)}, {s(sW,4)}, {s(sHin)} offen offset:{128*t+64*e} sc1')
    tg = [GRN + 4 * k for k in range(6)]
    A(f"""
    s_waitcnt vmcnt(0)
    v_min3_u32 {v(vt)}, {v(tg[0])}, {v(tg[1])}, {v(tg[2])}
    v_max3_u32 {v(vt2)}, {v(tg[0])}, {v(tg[1])}, {v(tg[2])}
    v_min3_u32 {v(vt)}, {v(vt)}, {v(tg[3])}, {v(tg[4])}
    v_max3_u32 {v(vt2)}, {v(vt2)}, {v(tg[3])}, {v(tg[4])}
    v_min_u32 {v(vt)}, {v(vt)}, {v(tg[5])}
    v_max_u32 {v(vt2)}, {v(vt2)}, {v(tg[5])}
    v_cmp_ne_u32 vcc, {s(sT)}, {v(vt)}
    v_cmp_ne_u32 {s(sm,2)}, {s(sT)}, {v(vt2)}
    s_or_b64 {s(sm,2)}, {s(sm,2)}, vcc
    s_cbranch_scc0 HGOT
    s_sub_u32 {s(sCnt)}, {s(sCnt)}, 1
    s_cbranch_scc0 HPOLL
    s_or_b32 {s(sErr)}, {s(sErr)}, 8
    HGOT:
    buffer_load_dword {v(vFlagD)}, {v(vFlag)}, {s(sW,4)}, {s(sHa)} offen sc1
    """)
    stamp(6)
    if OPT['stamps']: A(f's_sub_u32 {s(56+2*7)}, {BOUND}, {s(sCnt)}')
    stamp_flush(vStamp, 8, 0)
    A(f"""
    v_mov_b32 {v(St)}, {v(dreg(0, 8))}
    v_mov_b32 {v(St+1)}, {v(dreg(0, 8))}
    v_mov_b32 {v(St+2)}, {v(dreg(1, 8))}
    v_mov_b32 {v(St+3)}, {v(dreg(1, 8))}
    """)
    for k in range(4):
        for r in range(4):
            src = dreg(k & 1, 4 * (k >> 1) + r)
            A(f"""
            v_lshlrev_b32 {v(X[k]+2*r)}, 16, {v(src)}
            v_and_b32 {v(X[k]+2*r+1)}, 0xffff0000, {v(src)}
            """)
        if k == 0:
            A(f"""
            v_permlane16_swap_b32 {v(St)}, {v(St+1)}
            v_permlane16_swap_b32 {v(St+2)}, {v(St+3)}
            """)
    dump(0, X[0], 16); dump(1, X[2], 16)

    rR, cR, rM, cM = St, St + 1, St + 2, St + 3
    pA = T; pB = T + 8; PA = T + 16; PB = T + 20; PC = T + 24; PD = T + 28
    W = T + 32
    Wh = T + 48
    Wb = T + 0
    Dacc = T + 16
    Fr = T + 56
    A('LOOP:')
    stamp(0)
    A(f'''
    v_cndmask_b32 {v(Ps)}, {v(rM)}, {v(rR)}, {s(sRho,2)}
    v_cndmask_b32 {v(Ps+1)}, {v(rR)}, {v(rM)}, {s(sRho,2)}
    v_cndmask_b32 {v(Pc)}, {v(cM)}, {v(cR)}, {s(sRho,2)}
    v_cndmask_b32 {v(Pc+1)}, {v(cR)}, {v(cM)}, {s(sRho,2)}
    v_add_f32 {v(Pc)}, {v(Pc)}, {v(cR)}
    v_add_f32 {v(Pc+1)}, {v(Pc+1)}, {v(cM)}
    ''')
    for p in range(4):
        A(f'v_pk_fma_f32 {v(pA+2*p,2)}, {v(X[0]+2*p,2)}, {v(St,2)}, {v(Pc,2)} op_sel_hi:[1,0,0] neg_lo:[0,0,1] neg_hi:[0,0,1]')
        A(f'v_pk_fma_f32 {v(pB+2*p,2)}, {v(X[1]+2*p,2)}, {v(St+2,2)}, {v(Pc,2)} op_sel:[0,0,1] op_sel_hi:[1,0,1] neg_lo:[0,0,1] neg_hi:[0,0,1]')
    for p in range(4):
        A(f'v_pk_fma_f32 {v(pA+2*p,2)}, {v(X[3]+2*p,2)}, {v(Ps,2)}, {v(pA+2*p,2)} op_sel_hi:[1,0,1]')
        A(f'v_pk_fma_f32 {v(pB+2*p,2)}, {v(X[2]+2*p,2)}, {v(Ps,2)}, {v(pB+2*p,2)} op_sel:[0,1,0] op_sel_hi:[1,1,1]')
    for p in range(4):
        A(f'v_cvt_pk_f16_f32 {v(PA+p)}, {v(pA+2*p)}, {v(pA+2*p+1)}')
    for p in range(4):
        A(f'v_cvt_pk_f16_f32 {v(PB+p)}, {v(pB+2*p)}, {v(pB+2*p+1)}')
    A(f'''
    s_cmp_eq_u32 {s(sL)}, 0
    s_cbranch_scc1 COL0
    ''')
    MF = 'v_mfma_f32_16x16x32_f16'
    for cb in range(2): A(f'{MF} {v(W+4*cb,4)}, {v(PA,4)}, {v(Ga+4*cb,4)}, 0')
    for cb in range(2): A(f'{MF} {v(W+8+4*cb,4)}, {v(PB,4)}, {v(Ga2+4*cb,4)}, 0')
    A('COL_DONE:')
    dump(16, St, 8, 1); dump(20, PA, 16, 1); dump(24, W, 16, 1)
    for j in range(4):
        A(f'''
        v_cvt_pk_f16_f32 {v(Wh+2*j)}, {v(W+4*j)}, {v(W+4*j+1)}
        v_cvt_pk_f16_f32 {v(Wh+2*j+1)}, {v(W+4*j+2)}, {v(W+4*j+3)}
        ds_write_b64 {v(vWa1 if j < 2 else vWa2)}, {v(Wh+2*j,2)} offset:{LDS_W + 1024*(j&1)}
        ''')
    stamp(1)
    A('''
    s_waitcnt lgkmcnt(0)
    s_barrier
    ''')
    for u in range(4): A(f'ds_read_b128 {v(Wb+4*u,4)}, {v(vWr)} offset:{LDS_W + 2048*u}')
    for u in range(4):
        A(f's_waitcnt lgkmcnt({3-u})')
        A(f'{MF} {v(Dacc+4*u,4)}, {v(GR[[0,1,2,1][u]],4)}, {v(Wb+4*u,4)}, 0')
    dump(28, Dacc, 16, 1)
    for j in range(2):
        for u in range(4):
            A(f'v_cvt_pk_f16_f32 {v(Fr+4*j+u)}, {v(Dacc+4*u+2*j)}, {v(Dacc+4*u+2*j+1)}')
        A(f'buffer_store_dwordx4 {v(Fr+4*j,4)}, {v(vXout)}, {s(sW,4)}, {s(sXb)} offen offset:{512*j} sc1')
    stamp(2)
    if OPT['xp'] & 1: A('s_waitcnt vmcnt(0)')
    A(f"""
    s_cmp_ge_u32 {s(sLay)}, 2
    s_cbranch_scc1 CLRF
    s_add_u32 {s(t0)}, {s(sXb)}, {2*XSTR}
    buffer_store_dwordx4 {v(vOne,4)}, {v(vXout)}, {s(sW,4)}, {s(t0)} offen sc1
    buffer_store_dwordx4 {v(vOne,4)}, {v(vXout)}, {s(sW,4)}, {s(t0)} offen offset:512 sc1
    s_cmp_eq_u32 {s(sLay)}, 0
    s_cbranch_scc1 FLAGS
    CLR_DONE:
    s_mov_b32 {s(sCnt)}, {BOUND}
    """)
    if OPT['sl']: A(f's_sleep {OPT["sl"]}')
    else: A('s_waitcnt vmcnt(0)')
    if OPT['xp'] & 2: A('s_barrier')
    stamp(3)
    Qp = T; Q = T + 8; Vc = T + 40; Vs = T + 48; BVc = T + 56; BVs = T + 60; BVo = T + 64; CC = T + 0; SS = T + 8
    A(f"""
    XPOLL:
    buffer_load_dwordx4 {v(Qp,4)}, {v(vXin)}, {s(sW,4)}, {s(sXb)} offen sc1
    buffer_load_dwordx4 {v(Qp+4,4)}, {v(vXin)}, {s(sW,4)}, {s(sXb2)} offen sc1
    s_waitcnt vmcnt(0)
    """)
    maxall(range(Qp, Qp + 8), vt, vt2)
    poll_tail('XPOLL', 1, vt)
    stamp(4)
    if OPT['stamps']: A(f's_sub_u32 {s(56+2*9)}, {BOUND}, {s(sCnt)}')
    A(f"""
    ds_write_b128 {v(vQw)}, {v(Qp,4)}
    ds_write_b128 {v(vQw)}, {v(Qp+4,4)} offset:1024
    s_waitcnt lgkmcnt(0)
    s_barrier
    """)
    stamp(5)
    for q in range(4):
        for blk in range(2):
            A(f'ds_read_b128 {v(Q+8*q+4*blk,4)}, {v(vQr)} offset:{2048*q+256*blk}')
    for q in range(4):
        for blk in range(2):
            A(f's_waitcnt lgkmcnt({7-2*q-blk})')
            for (acc, E) in ((Vc, Ec), (Vs, Es)):
                cin = '0' if q == 0 else v(acc+4*blk,4)
                A(f'{MF} {v(acc+4*blk,4)}, {v(Q+8*q+4*blk,4)}, {v(E+4*q,4)}, {cin}')
    dump(32, Vc, 16, 1)
    for (acc, B) in ((Vc, BVc), (Vs, BVs)):
        for r in range(4):
            A(f'v_cvt_pk_f16_f32 {v(B+r)}, {v(acc+2*r)}, {v(acc+2*r+1)}')
    A(f'''
    s_cmp_eq_u32 {s(sSpec)}, 0
    s_cbranch_scc1 HSPEC
    ''')
    for mb in range(2): A(f'{MF} {v(CC+4*mb,4)}, {v(Hc+4*mb,4)}, {v(BVc,4)}, 0')
    for mb in range(2): A(f'{MF} {v(SS+4*mb,4)}, {v(Hs+4*mb,4)}, {v(BVs,4)}, 0')
    A('H_DONE:')
    dump(36, CC, 16, 1)
    U1 = T + 16; U2 = T + 24
    for p in range(4):
        A(f'v_pk_add_f32 {v(U1+2*p,2)}, {v(CC+2*p,2)}, {v(SS+2*p,2)} neg_lo:[0,1] neg_hi:[0,1]')
        A(f'v_pk_add_f32 {v(U2+2*p,2)}, {v(CC+2*p,2)}, {v(SS+2*p,2)}')
    for p in range(4):
        for k, U, M in ((0, U1, None), (1, U2, M2), (2, U2, M3), (3, U1, M4)):
            if p == 0 and M is not None:
                A(f'v_pk_fma_f32 {v(X[k],2)}, {v(U,2)}, {v(M,2)}, {v(X[k],2)}')
            else:
                A(f'v_pk_add_f32 {v(X[k]+2*p,2)}, {v(X[k]+2*p,2)}, {v(U+2*p,2)}')
    dump(2, X[0], 16, 2); dump(3, X[2], 16, 2)
    stamp(6)
    A(f'''
    s_cmp_eq_u32 {s(sLay)}, 3
    s_cbranch_scc1 FINAL
    ''')
    Sa = [T + 2 * k for k in range(4)]; Qa = [T + 8 + 2 * k for k in range(4)]
    for k in range(4):
        A(f'v_pk_add_f32 {v(Sa[k],2)}, {v(X[k],2)}, {v(X[k]+2,2)}')
        A(f'v_pk_mul_f32 {v(Qa[k],2)}, {v(X[k],2)}, {v(X[k],2)}')
    for p in range(1, 4):
        for k in range(4):
            if p > 1: A(f'v_pk_add_f32 {v(Sa[k],2)}, {v(Sa[k],2)}, {v(X[k]+2*p,2)}')
            A(f'v_pk_fma_f32 {v(Qa[k],2)}, {v(X[k]+2*p,2)}, {v(X[k]+2*p,2)}, {v(Qa[k],2)}')
    A(f'''
    s_cmp_lg_u32 {s(sSpec)}, 0
    s_cbranch_scc1 NOSWAP
    s_mov_b64 exec, {s(sRho,2)}
    v_swap_b32 {v(Sa[2])}, {v(Sa[3])}
    v_swap_b32 {v(Sa[2]+1)}, {v(Sa[3]+1)}
    v_swap_b32 {v(Qa[2])}, {v(Qa[3])}
    v_swap_b32 {v(Qa[2]+1)}, {v(Qa[3]+1)}
    s_mov_b64 exec, -1
    NOSWAP:
    v_pk_add_f32 {v(Sa[0],2)}, {v(Sa[0],2)}, {v(Sa[2],2)}
    v_pk_add_f32 {v(Sa[1],2)}, {v(Sa[1],2)}, {v(Sa[3],2)}
    v_pk_add_f32 {v(Qa[0],2)}, {v(Qa[0],2)}, {v(Qa[2],2)}
    v_pk_add_f32 {v(Qa[1],2)}, {v(Qa[1],2)}, {v(Qa[3],2)}
    v_add_f32 {v(Sa[0])}, {v(Sa[0])}, {v(Sa[0]+1)}
    v_add_f32 {v(Sa[1])}, {v(Sa[1])}, {v(Sa[1]+1)}
    v_add_f32 {v(Qa[0])}, {v(Qa[0])}, {v(Qa[0]+1)}
    v_add_f32 {v(Qa[1])}, {v(Qa[1])}, {v(Qa[1]+1)}
    v_permlane32_swap_b32 {v(Sa[0])}, {v(Sa[1])}
    v_permlane32_swap_b32 {v(Qa[0])}, {v(Qa[1])}
    v_add_f32 {v(Sa[0])}, {v(Sa[0])}, {v(Sa[1])}
    v_add_f32 {v(Qa[0])}, {v(Qa[0])}, {v(Qa[1])}
    v_permlane16_swap_b32 {v(Sa[0])}, {v(Qa[0])}
    v_add_f32 {v(Sa[0])}, {v(Sa[0])}, {v(Qa[0])}
    buffer_store_dword {v(Sa[0])}, {v(vSout)}, {s(sW,4)}, {s(sSb)} offen sc1
    s_mov_b32 {s(sCnt)}, {BOUND}
    ''')
    stamp(7)
    A('s_waitcnt vmcnt(0)')
    A('SPOLL:')
    G4 = T + 16
    for j in range(4):
        A(f'buffer_load_dwordx4 {v(G4+4*j,4)}, {v(vSin)}, {s(sW,4)}, {s(sSb)} offen offset:{1024*j} sc1')
    A('s_waitcnt vmcnt(0)')
    maxall(range(G4, G4 + 16), vt, vt2)
    poll_tail('SPOLL', 2, vt)
    stamp(8)
    if OPT['stamps']:
        A(f's_sub_u32 {s(56+2*10)}, {BOUND}, {s(sCnt)}')
        A(f's_mul_i32 {s(sLn)}, {s(sLay)}, 12')
    stamp_flush(vStamp, 11, 8, sLane=sLn)
    e, f_, u1, u2 = G4, G4 + 1, G4 + 4, G4 + 5
    A(f'''
    v_pk_add_f32 {v(G4,2)}, {v(G4,2)}, {v(G4+4,2)}
    v_pk_add_f32 {v(G4+2,2)}, {v(G4+2,2)}, {v(G4+6,2)}
    v_pk_add_f32 {v(G4+8,2)}, {v(G4+8,2)}, {v(G4+12,2)}
    v_pk_add_f32 {v(G4+10,2)}, {v(G4+10,2)}, {v(G4+14,2)}
    v_pk_add_f32 {v(G4,2)}, {v(G4,2)}, {v(G4+8,2)}
    v_pk_add_f32 {v(G4+2,2)}, {v(G4+2,2)}, {v(G4+10,2)}
    v_permlane32_swap_b32 {v(G4)}, {v(G4+2)}
    v_permlane32_swap_b32 {v(G4+1)}, {v(G4+3)}
    v_pk_add_f32 {v(G4,2)}, {v(G4,2)}, {v(G4+2,2)}
    v_mov_b64 {v(u1,2)}, {v(G4,2)}
    v_permlane16_swap_b32 {v(e)}, {v(u1)}
    v_permlane16_swap_b32 {v(f_)}, {v(u2)}
    v_pk_add_f32 {v(G4,2)}, {v(G4,2)}, {v(u1,2)}
    v_mul_f32 {v(e)}, {f32(1/1024)}, {v(e)}
    v_mul_f32 {v(f_)}, {f32(1/1024)}, {v(f_)}
    v_fma_f32 {v(f_)}, -{v(e)}, {v(e)}, {v(f_)}
    v_max_f32 {v(f_)}, 0, {v(f_)}
    v_add_f32 {v(f_)}, {f32(1e-5)}, {v(f_)}
    v_rsq_f32 {v(rR)}, {v(f_)}
    v_mul_f32 {v(cR)}, {v(e)}, {v(rR)}
    v_mov_b32 {v(rM)}, {v(rR)}
    v_mov_b32 {v(cM)}, {v(cR)}
    v_permlane32_swap_b32 {v(rR)}, {v(rM)}
    v_permlane32_swap_b32 {v(cR)}, {v(cM)}
    s_add_u32 {s(sLay)}, {s(sLay)}, 1
    s_add_u32 {s(sXb)}, {s(sXb)}, {XSTR}
    s_add_u32 {s(sXb2)}, {s(sXb2)}, {XSTR}
    s_add_u32 {s(sSb)}, {s(sSb)}, {SSTR}
    s_branch LOOP
    ''')

    A('FINAL:')
    Pk = T
    A(f's_mov_b32 {s(t3)}, {FB}')
    for k in range(4):
        for r in range(4):
            A(f'v_cvt_pk_bf16_f32 {v(Pk+4*k+r)}, {v(X[k]+2*r)}, {v(X[k]+2*r+1)}')
        A(f'buffer_store_dwordx4 {v(Pk+4*k,4)}, {v(vFout)}, {s(sW,4)}, {s(t3)} offen offset:{256*k} sc1')
    vLin, vRep, vMir, vA0, vC0, vD0 = [T + 32 + j for j in range(6)]
    relayout_addrs(vL, sBase, vLin, vRep, vMir, vA0, vC0, vD0, vt, vt2, sm)
    stamp(7)
    Fd = T + 16
    A(f"""
    s_cmp_eq_u32 {s(sR)}, 0
    s_cselect_b32 {s(t0)}, 256, 0
    s_add_u32 {s(sFo2)}, {s(t0)}, {FB+512}
    s_sub_u32 {s(sFo3)}, {FB+768}, {s(t0)}
    v_lshlrev_b32 {v(vXin)}, 4, {v(vL)}
    s_mov_b32 {s(sCnt)}, {BOUND}
    s_waitcnt vmcnt(0)
    """)
    if OPT['fp']: A(f's_sleep {OPT["fp"]}')
    A(f"""
    FPOLL:
    buffer_load_dwordx4 {v(Fd,4)}, {v(vFin)}, {s(sW,4)}, {s(t3)} offen sc1
    buffer_load_dwordx4 {v(Fd+4,4)}, {v(vFin)}, {s(sW,4)}, {s(t3)} offen offset:256 sc1
    buffer_load_dwordx4 {v(Fd+8,4)}, {v(vFin)}, {s(sW,4)}, {s(sFo2)} offen sc1
    buffer_load_dwordx4 {v(Fd+12,4)}, {v(vFin)}, {s(sW,4)}, {s(sFo3)} offen sc1
    s_waitcnt vmcnt(0)
    """)
    maxall(range(Fd, Fd + 16), vt, vt2)
    poll_tail('FPOLL', 4, vt)
    stamp(8)
    if OPT['stamps']: A(f's_sub_u32 {s(56+2*10)}, {BOUND}, {s(sCnt)}')
    for k in range(4):
        for c in range(8):
            ad, off = slot_addr(k, c, vRep, vMir, vA0, vC0, vD0)
            A(f'ds_write_b16{"_d16_hi" if c & 1 else ""} {v(ad)}, {v(Fd+4*k+c//2)} offset:{off}')
    A('s_waitcnt lgkmcnt(0)')
    for j, off in enumerate((0, 1088, ROWB, ROWB + 1088)):
        A(f'ds_read_b128 {v(Pk+4*j,4)}, {v(vLin)} offset:{off}')
    for j in range(4):
        A(f's_waitcnt lgkmcnt({3-j})')
        A(f'buffer_store_dwordx4 {v(Pk+4*j,4)}, {v(vXin)}, {s(sO,4)}, {s(sR if j < 2 else sM)} offen offset:{1024*(j&1)}' + ['', ' sc1', ' nt', ' sc0 sc1'][OPT['om']])
    stamp(11)
    if OPT['stamps']: A('s_waitcnt vmcnt(0)')
    stamp(12)
    stamp_flush(vStamp, 13, 44)
    stamp_store(vStamp, vL, sW, 1, sWv, t0, t1, vt)
    if OPT['spin']:
        A(f"""
        SPIN:
        s_memrealtime s[90:91]
        s_waitcnt lgkmcnt(0)
        s_sub_u32 {s(t0)}, s90, s88
        s_cmp_lt_u32 {s(t0)}, {OPT['spin']}
        s_cbranch_scc1 SPIN
        """)
    if OPT['stamps'] == 2:
        sel = [None, 0, 0, 2, 3, 4, 6, 8+2, 8+4, 8+8, 20+4, 20+8, 32+8, 44+4, 44+8, 44+12]
        A(f'v_mov_b32 {v(vt)}, 0')
        for k, src in enumerate(sel):
            if src is None: continue
            A(f'v_readlane_b32 {s(t0)}, {v(vStamp)}, {src}')
            if k == 1: A(f's_not_b32 {s(t0)}, {s(t0)}')
            A(f'v_writelane_b32 {v(vt)}, {s(t0)}, {k}')
        A(f"""
        v_lshlrev_b32 {v(vt2)}, 2, {v(vL)}
        s_mov_b64 exec, 0xffff
        buffer_atomic_umax {v(vt)}, {v(vt2)}, {s(sD,4)}, 0 offen
        s_mov_b64 exec, -1
        """)
    A(f'''
    s_lshl_b32 {s(t0)}, {s(sN)}, 2
    s_or_b32 {s(t0)}, {s(t0)}, {s(sWv)}
    s_cmp_lg_u32 {s(t0)}, 0
    s_cbranch_scc1 NOTAG
    v_mov_b32 {v(vt)}, {s(sT)}
    v_mov_b32 {v(vt2)}, {EOFF}
    s_mov_b64 exec, 1
    buffer_store_dword {v(vt)}, {v(vt2)}, {s(sW,4)}, 0 offen sc1
    NOTAG:
    s_cmp_eq_u32 {s(sErr)}, 0
    s_cbranch_scc1 MAIN_END
    v_mov_b32 {v(vt)}, {s(sErr)}
    v_mov_b32 {v(vt2)}, 0
    s_mov_b64 exec, 1
    buffer_atomic_or {v(vt)}, {v(vt2)}, {s(sD,4)}, 0 offen
    MAIN_END:
    s_endpgm
    ''')

    A('GCOL0:')
    cls = T + 15
    B0 = T + 32
    for cb in range(2):
        A(f'''
        v_lshrrev_b32 {v(a0)}, 1, {v(vI)}
        v_cvt_f32_u32 {v(fr)}, {v(a0)}
        v_mul_f32 {v(fr)}, {f32(1/32)}, {v(fr)}
        v_add_f32 {v(fr)}, {'0' if cb == 0 else f32(0.25)}, {v(fr)}
        v_and_b32 {v(a1)}, 1, {v(vI)}
        v_lshrrev_b32 {v(cls)}, 1, {v(vG)}
        v_cmp_eq_u32 vcc, {v(a1)}, {v(cls)}
        v_mov_b32 {v(a0)}, {f32(math.sqrt(0.5))}
        v_cndmask_b32 {v(amp)}, 0, {v(a0)}, vcc
        v_mov_b32 {v(ph)}, {f32(0.125)}
        v_mov_b32 {v(voff)}, 0
        ''')
        if cb == 0:
            A(f'''
            s_mov_b32 exec_lo, 0x00030003
            s_mov_b32 exec_hi, 0x00030003
            v_mov_b32 {v(fr)}, 0.5
            v_cndmask_b32 {v(amp)}, 0.5, 0, vcc
            v_cvt_f32_u32 {v(ph)}, {v(cls)}
            v_mul_f32 {v(voff)}, {v(ph)}, {v(amp)}
            v_mul_f32 {v(ph)}, {f32(0.25)}, {v(ph)}
            s_mov_b64 exec, -1
            ''')
        A(f'''
        ; d0/32 = 8 (g&1) + 0.5 (g>>1)
        v_and_b32 {v(a0)}, 1, {v(vG)}
        v_lshl_add_u32 {v(a0)}, {v(a0)}, 4, {v(cls)}
        v_cvt_f32_u32 {v(a0)}, {v(a0)}
        v_mul_f32 {v(a0)}, 0.5, {v(a0)}
        v_mul_f32 {v(a0)}, {v(a0)}, {v(fr)}
        v_cmp_eq_u32 {s(sG0,2)}, 0, {v(vG)}
        v_mul_f32 {v(Z)}, {f32(16.0)}, {v(fr)}
        v_cndmask_b32 {v(Z)}, 0, {v(Z)}, {s(sG0,2)}
        v_sub_f32 {v(arg)}, {v(a0)}, {v(ph)}
        v_add_f32 {v(arg2)}, {v(arg)}, {v(Z)}
        v_cos_f32 {v(B0)}, {v(arg)}
        ''')
        cos_row(Ga + 4 * cb, fr, scaled=True, first=arg2)
        A(f'''
        v_fma_f32 {v(B0)}, {v(B0)}, {v(amp)}, {v(voff)}
        v_cvt_pk_f16_f32 {v(B0)}, {v(B0)}, {v(B0)}
        s_mov_b32 {s(t0)}, 0xffff
        v_bfi_b32 {v(Ga2+4*cb)}, {s(t0)}, {v(B0)}, {v(Ga+4*cb)}
        v_mov_b32 {v(Ga2+4*cb+1)}, {v(Ga+4*cb+1)}
        v_mov_b64 {v(Ga2+4*cb+2,2)}, {v(Ga+4*cb+2,2)}
        v_sub_f32 {v(arg)}, 0, {v(a0)}
        v_sub_f32 {v(arg)}, {v(arg)}, {v(ph)}
        v_sub_f32 {v(stp)}, 0, {v(fr)}
        v_add_f32 {v(arg2)}, {v(arg)}, {v(Z)}
        v_cos_f32 {v(B0)}, {v(arg2)}
        ''')
        cos_row(Gb + 4 * cb, stp, scaled=True)
        A(f'''
        v_fma_f32 {v(B0)}, {v(B0)}, {v(amp)}, {v(voff)}
        v_cvt_pk_f16_f32 {v(B0)}, {v(B0)}, {v(B0)}
        v_bfi_b32 {v(Gb2+4*cb)}, {s(t0)}, {v(B0)}, {v(Gb+4*cb)}
        v_mov_b32 {v(Gb2+4*cb+1)}, {v(Gb+4*cb+1)}
        v_mov_b64 {v(Gb2+4*cb+2,2)}, {v(Gb+4*cb+2,2)}
        ''')
    A('s_branch GCOL_DONE')
    A(f'''
    GROW0:
    v_cmp_le_u32 vcc, 2, {v(vG)}
    v_sub_f32 {v(stp)}, 0, {v(fr)}
    v_cndmask_b32 {v(stp)}, {v(fr)}, {v(stp)}, vcc
    v_sub_f32 {v(a0)}, {f32(48.0)}, {v(gf)}
    v_cndmask_b32 {v(a0)}, {v(gf)}, {v(a0)}, vcc
    v_fma_f32 {v(arg)}, {v(fr)}, {v(a0)}, -{v(ph)}
    v_cmp_eq_u32 {s(sG0,2)}, 2, {v(vG)}
    v_mul_f32 {v(Z)}, {f32(16.0)}, {v(fr)}
    v_cndmask_b32 {v(Z)}, 0, {v(Z)}, {s(sG0,2)}
    v_sub_f32 {v(arg2)}, {v(arg)}, {v(Z)}
    ''')
    cos_row(GR[0], stp, first=arg2)
    A(f'''
    v_sub_f32 {v(a0)}, {f32(47.0)}, {v(gf)}
    v_cndmask_b32 {v(a0)}, {v(gf)}, {v(a0)}, vcc
    v_fma_f32 {v(arg)}, {v(fr)}, {v(a0)}, -{v(ph)}
    ''')
    cos_row(GR[2], stp)
    A('s_branch GROW_DONE')
    A('COL0:')
    for r in range(4):
        A(f'v_cndmask_b32 {v(PC+r)}, {v(PB+r)}, {v(PA+r)}, {s(sRho,2)}')
        A(f'v_cndmask_b32 {v(PD+r)}, {v(PA+r)}, {v(PB+r)}, {s(sRho,2)}')
    z = T + 64
    A(f'''
    s_cmp_lg_u32 {s(sSpec)}, 0
    s_cbranch_scc1 COL0B
    s_mov_b64 exec, 1
    v_fma_f32 {v(z)}, {v(X[0])}, {v(rR)}, -{v(cR)}
    v_fma_f32 {v(z+1)}, {v(X[3])}, {v(rR)}, -{v(cR)}
    v_fma_f32 {v(z+2)}, {v(X[1])}, {v(rM)}, -{v(cM)}
    v_fma_f32 {v(z+3)}, {v(X[2])}, {v(rM)}, -{v(cM)}
    v_add_f32 {v(z)}, {v(z)}, {v(z)}
    v_add_f32 {v(z+1)}, {v(z+1)}, {v(z+1)}
    v_add_f32 {v(z+2)}, {v(z+2)}, {v(z+2)}
    v_add_f32 {v(z+3)}, {v(z+3)}, {v(z+3)}
    v_cvt_pk_f16_f32 {v(PA)}, {v(z)}, {v(pA+1)}
    v_cvt_pk_f16_f32 {v(PC)}, {v(z+1)}, {v(pA+1)}
    v_cvt_pk_f16_f32 {v(PB)}, {v(z+2)}, {v(pB+1)}
    v_cvt_pk_f16_f32 {v(PD)}, {v(z+3)}, {v(pB+1)}
    s_mov_b64 exec, -1
    COL0B:
    ''')
    for cb in range(2): A(f'{MF} {v(W+4*cb,4)}, {v(PA,4)}, {v(Ga+4*cb,4)}, 0')
    for cb in range(2): A(f'{MF} {v(W+8+4*cb,4)}, {v(PB,4)}, {v(Ga2+4*cb,4)}, 0')
    for cb in range(2): A(f'{MF} {v(W+4*cb,4)}, {v(PC,4)}, {v(Gb+4*cb,4)}, {v(W+4*cb,4)}')
    for cb in range(2): A(f'{MF} {v(W+8+4*cb,4)}, {v(PD,4)}, {v(Gb2+4*cb,4)}, {v(W+8+4*cb,4)}')
    A('s_branch COL_DONE')
    A(f"""
    CLRF:
    s_cmp_eq_u32 {s(sLay)}, 3
    s_cbranch_scc1 CLR_DONE
    s_lshl_b32 {s(t0)}, {s(sTau)}, 12
    s_add_u32 {s(t0)}, {s(t0)}, {s(sGb)}
    s_add_u32 {s(t0)}, {s(t0)}, {FB}
    v_lshlrev_b32 {v(vt)}, 4, {v(vL)}
    """)
    for k in range(4):
        A(f'buffer_store_dwordx4 {v(vOne,4)}, {v(vt)}, {s(sW,4)}, {s(t0)} offen offset:{1024*k} sc1')
    A('s_branch CLR_DONE')
    A(f"""
    FLAGS:
    s_mov_b32 {s(sCnt)}, {BOUND}
    s_waitcnt vmcnt(4)
    FLPOLL:
    v_cmp_ne_u32 vcc, {s(sT)}, {v(vFlagD)}
    s_cbranch_vccz CLR_DONE
    buffer_load_dword {v(vFlagD)}, {v(vFlag)}, {s(sW,4)}, {s(sHa)} offen sc1
    s_sub_u32 {s(sCnt)}, {s(sCnt)}, 1
    s_waitcnt vmcnt(0)
    s_cbranch_scc0 FLPOLL
    s_or_b32 {s(sErr)}, {s(sErr)}, 16
    s_branch CLR_DONE
    """)
    A('HSPEC:')
    for r in range(4):
        A(f'v_cndmask_b32 {v(BVo+r)}, 0, {v(BVs+r)}, {s(sRho,2)}')
        A(f'v_cndmask_b32 {v(BVs+r)}, {v(BVs+r)}, 0, {s(sRho,2)}')
    for mb in range(2): A(f'{MF} {v(CC+4*mb,4)}, {v(Hc+4*mb,4)}, {v(BVc,4)}, 0')
    for mb in range(2): A(f'{MF} {v(SS+4*mb,4)}, {v(Hs+4*mb,4)}, {v(BVs,4)}, 0')
    for mb in range(2): A(f'{MF} {v(SS+4*mb,4)}, {v(Hc+4*mb,4)}, {v(BVo,4)}, {v(SS+4*mb,4)}')
    A('s_branch H_DONE')
    A('EHGEN:')
    tf = T + 0; t32 = T + 1; an = T + 2; cs = T + 4; sn = T + 5; e0 = T + 6; e1 = T + 7; gfl = T + 8; an1 = T + 9; an2 = T + 10
    sgn = T + 11
    A(f'''
    s_lshr_b32 {s(t0)}, {s(sWv)}, 1
    s_and_b32 {s(t1)}, {s(sWv)}, 1
    s_lshl_b32 {s(t2)}, {s(t0)}, 5
    s_add_u32 {s(t2)}, {s(t2)}, {s(sK)}
    s_lshl_b32 {s(t3)}, {s(t1)}, 10
    s_add_u32 {s(t2)}, {s(t2)}, {s(t3)}
    s_add_u32 {s(t3)}, {s(t3)}, 16
    s_lshl_b32 {s(t1)}, {s(t1)}, 5
    s_cmp_eq_u32 {s(t0)}, 1
    s_cselect_b32 {s(t1)}, {s(t3)}, {s(t1)}
    s_cselect_b32 {s(sEA)}, 0, {f32(1/16)}
    s_cselect_b32 {s(sEC)}, {f32(1/16)}, 0
    s_cmp_eq_u32 {s(sK)}, 0
    s_cselect_b32 {s(t2)}, {s(t1)}, {s(t2)}
    s_cselect_b32 {s(sEA)}, {s(sEA)}, {f32(1/16)}
    s_cselect_b32 {s(sEC)}, {s(sEC)}, 0
    s_cselect_b32 {s(sEB)}, 0, {f32(-1/16)}
    s_cselect_b32 {s(sEnB)}, 0, {f32(1/16)}
    v_lshlrev_b32 {v(tf)}, 6, {v(vI)}
    v_add_u32 {v(tf)}, {s(t2)}, {v(tf)}
    v_cvt_f32_u32 {v(tf)}, {v(tf)}
    v_cvt_f32_u32 {v(gfl)}, {v(vG)}
    v_mul_f32 {v(tf)}, {f32(1/2048)}, {v(tf)}
    v_mul_f32 {v(t32)}, {f32(32.0)}, {v(tf)}
    v_cmp_eq_u32 {s(sG0,2)}, 0, {v(vG)}
    s_mov_b32 {s(t0)}, 0x80008000
    ''')
    def e_pair(ang, dc, ds_):
        A(f'''
        v_cos_f32 {v(cs)}, {v(ang)}
        v_sin_f32 {v(sn)}, {v(ang)}
        v_mul_f32 {v(e0)}, {s(sEA)}, {v(cs)}
        v_mul_f32 {v(e1)}, {s(sEC)}, {v(cs)}
        v_fmac_f32 {v(e1)}, {s(sEB)}, {v(sn)}
        v_cvt_pk_f16_f32 {v(dc)}, {v(e0)}, {v(e1)}
        v_mul_f32 {v(e0)}, {s(sEA)}, {v(sn)}
        v_mul_f32 {v(e1)}, {s(sEC)}, {v(sn)}
        v_fmac_f32 {v(e1)}, {s(sEnB)}, {v(cs)}
        v_cvt_pk_f16_f32 {v(ds_)}, {v(e0)}, {v(e1)}
        ''')
    for q in range(4):
        if q == 0:
            A(f'''
            v_mul_f32 {v(an)}, {v(tf)}, {v(gfl)}
            v_mul_f32 {v(an1)}, 0.5, {v(t32)}
            v_cndmask_b32 {v(an1)}, {v(t32)}, {v(an1)}, {s(sG0,2)}
            v_add_f32 {v(an1)}, {v(an1)}, {v(an)}
            v_cndmask_b32 {v(an2)}, {v(an)}, {v(t32)}, {s(sG0,2)}
            v_mov_b32 {v(sgn)}, {s(t0)}
            v_cndmask_b32 {v(sgn)}, {v(sgn)}, 0, {s(sG0,2)}
            ''')
            e_pair(an, Ec, Es); e_pair(an1, Ec + 1, Es + 1); e_pair(an2, Ec + 2, Es + 2)
            A(f'''
            v_xor_b32 {v(Es+2)}, {v(sgn)}, {v(Es+2)}
            v_mov_b32 {v(Ec+3)}, {v(Ec+1)}
            v_xor_b32 {v(Es+3)}, {s(t0)}, {v(Es+1)}
            ''')
        else:
            A(f'''
            v_fmac_f32 {v(an)}, 4.0, {v(tf)}
            v_add_f32 {v(an1)}, {v(an)}, {v(t32)}
            ''')
            e_pair(an, Ec + 4 * q, Es + 4 * q); e_pair(an1, Ec + 4 * q + 1, Es + 4 * q + 1)
            A(f'''
            v_mov_b64 {v(Ec+4*q+2,2)}, {v(Ec+4*q,2)}
            v_xor_b32 {v(Es+4*q+2)}, {s(t0)}, {v(Es+4*q)}
            v_xor_b32 {v(Es+4*q+3)}, {s(t0)}, {v(Es+4*q+1)}
            ''')
    A(f'''
    s_and_b32 exec_lo, {s(sRho)}, 0x00010000
    s_mov_b32 exec_hi, exec_lo
    ''')
    for r in range(16):
        A(f'v_mov_b32 {v(Ec+r)}, 0')
        A(f'v_mov_b32 {v(Es+r)}, 0xac00')
    A('s_mov_b64 exec, -1')
    hA = T + 12; hB = T + 13; hC = T + 14; hO = T + 15; ef = T + 16; ls = T + 18; mu = T + 22; sg = T + 23; hnB = T + 24
    A(f'''
    v_lshrrev_b32 {v(mu)}, 2, {v(vI)}
    v_lshlrev_b32 {v(mu)}, 3, {v(mu)}
    v_and_b32 {v(e0)}, 3, {v(vI)}
    v_add_u32 {v(mu)}, {v(mu)}, {v(e0)}
    v_lshlrev_b32 {v(ef)}, 5, {v(mu)}
    v_add_u32 {v(ef)}, {s(sL)}, {v(ef)}
    v_add_u32 {v(ef+1)}, 128, {v(ef)}
    v_mov_b32 {v(hA)}, {f32(16.0)}
    v_mov_b32 {v(hB)}, {f32(-16.0)}
    v_mov_b32 {v(hC)}, 0
    v_mov_b32 {v(hO)}, 0
    s_cmp_eq_u32 {s(sL)}, 0
    s_cselect_b32 exec_lo, 0xff00ff00, 0
    s_mov_b32 exec_hi, exec_lo
    v_subrev_u32 {v(ef)}, {512-16}, {v(ef)}
    v_subrev_u32 {v(ef+1)}, {512-16}, {v(ef+1)}
    v_mov_b32 {v(hA)}, 0
    v_mov_b32 {v(hB)}, 0
    v_mov_b32 {v(hC)}, {f32(16.0)}
    s_cselect_b32 exec_lo, 0x00ff00ff, 0
    s_mov_b32 exec_hi, exec_lo
    v_mov_b32 {v(hB)}, 0
    v_mov_b32 {v(hO)}, {f32(-16.0)}
    s_cselect_b32 exec_lo, 0x00010001, 0
    s_mov_b32 exec_hi, exec_lo
    v_mov_b32 {v(ef)}, 512
    s_mov_b64 exec, -1
    v_cvt_f32_u32 {v(ef)}, {v(ef)}
    v_cvt_f32_u32 {v(ef+1)}, {v(ef+1)}
    v_sub_f32 {v(hnB)}, 0, {v(hB)}
    v_mul_f32 {v(ef)}, {f32(1/1024)}, {v(ef)}
    v_mul_f32 {v(ef+1)}, {f32(1/1024)}, {v(ef+1)}
    v_add_f32 {v(ls)}, {v(gfl)}, {v(gfl)}
    v_add_f32 {v(ls+1)}, 1.0, {v(ls)}
    v_add_f32 {v(ls+2)}, {f32(8.0)}, {v(ls)}
    v_add_f32 {v(ls+3)}, {f32(9.0)}, {v(ls)}
    ''')
    for mb in range(2):
        for d in range(4):
            A(f'''
            v_mul_f32 {v(an)}, {v(ef+mb)}, {v(ls+d)}
            v_cos_f32 {v(cs)}, {v(an)}
            v_sin_f32 {v(sn)}, {v(an)}
            v_fma_f32 {v(e0)}, {v(hA)}, {v(cs)}, {v(hO)}
            v_mul_f32 {v(e1)}, {v(hC)}, {v(cs)}
            v_fmac_f32 {v(e1)}, {v(hB)}, {v(sn)}
            v_cvt_pk_f16_f32 {v(Hc+4*mb+d)}, {v(e0)}, {v(e1)}
            v_mul_f32 {v(e0)}, {v(hA)}, {v(sn)}
            v_mul_f32 {v(e1)}, {v(hC)}, {v(sn)}
            v_fmac_f32 {v(e1)}, {v(hnB)}, {v(cs)}
            v_cvt_pk_f16_f32 {v(Hs+4*mb+d)}, {v(e0)}, {v(e1)}
            ''')
    A(f'''
    v_and_b32 {v(sg)}, 1, {v(vI)}
    v_cvt_f32_u32 {v(sg)}, {v(sg)}
    v_fma_f32 {v(sg)}, {v(sg)}, -2.0, 1.0
    v_add_f32 {v(e0)}, {v(hnB)}, {v(hO)}
    v_fma_f32 {v(e0)}, -{v(hO)}, {v(sg)}, {v(e0)}
    v_fma_f32 {v(e1)}, {v(hnB)}, {v(sg)}, {v(hC)}
    v_fma_f32 {v(cs)}, {v(hC)}, {v(sg)}, {v(hnB)}
    v_mul_f32 {v(sn)}, {v(hnB)}, {v(sg)}
    s_mov_b64 exec, 0xffff
    v_cvt_pk_f16_f32 {v(Hc)}, {v(e0)}, {v(e1)}
    v_cvt_pk_f16_f32 {v(Hc+4)}, {v(e0)}, {v(e1)}
    v_cvt_pk_f16_f32 {v(Hs)}, {v(cs)}, {v(sn)}
    v_cvt_pk_f16_f32 {v(Hs+4)}, {v(cs)}, {v(sn)}
    s_mov_b64 exec, -1
    ''')
    if OPT['debug'] >= 2:
        dump(10, Ga, 16); dump(11, Gb, 16); dump(12, GR[0], 12); dump(13, Ec, 16); dump(14, Es, 16); dump(15, Hc, 16)
    A('s_branch EH_DONE')
    return V.hi

def descriptor(name, nv):
    nv = (nv + 7) // 8 * 8
    return f'''.section .rodata,"a"
.p2align 6
.amdhsa_kernel {name}
  .amdhsa_next_free_vgpr {nv}
  .amdhsa_next_free_sgpr 96
  .amdhsa_accum_offset {nv}
  .amdhsa_group_segment_fixed_size 0
  .amdhsa_kernarg_size 104
  .amdhsa_user_sgpr_count 2
  .amdhsa_user_sgpr_kernarg_segment_ptr 1
  .amdhsa_system_sgpr_workgroup_id_x 1
.end_amdhsa_kernel
'''

hdr = open('cdna_kernels/' + NAME + '.s.ref').read().split('; Override launch')[0]
nv2 = gen_main()
npad = A.pad()
out = hdr
out += f'; @launch grid=(256,1,1) block=(256,1,1) lds={LDS_MAIN}\n'
out += '.amdgcn_target "amdgcn-amd-amdhsa--gfx950"\n.text\n'
out += A.text()
out += descriptor(MAIN, nv2)
open(sys.argv[1], 'w').write(out)
print('vgprs', nv2, 'pad states', npad, 'lines', out.count('\n'))
```

```python
import sys, math
sys.path.insert(0, 'work')
from asmlib import *

NAME = 'interleave_layers__spectral_fnet__spectral_fnet__prompt'
MAIN = NAME + '_kernel'
WS_SIZE = 0x2000000
GSH = 21
H0B, FLG, EOFF, SB, XB, FB, DUMPB = 0, 0x60000, 0x68000, 0x70000, 0x80000, 0x100000, 0x2000000
SSTR, XSTR = 0x4000, 0x20000
HWG, HSL = 24576, 384
LDS_W, LDS_Q, LDS_R = 0, 8192, 16384
ROWB = 2176
LDS_MAIN = LDS_R + 4 * 2 * ROWB
BOUND = 20000
OPT = dict(debug=0, stamps=0, xp=0, sl=0, fp=0, hp=0, spin=0, om=0, slow=0, aw=3, mix=0, pt=7, ps=64)
XF = FLG + 0x800
H0S = 0x140000
for a in sys.argv[2:]:
    k, val = a.split('='); OPT[k] = int(val)

if OPT['debug']: WS_SIZE = 0x10000000
A = Asm()

def wg_indices(sK, sL, sN, sT):
    if OPT['mix']:
        A(f'''
        s_lshr_b32 {s(sK)}, s2, 4
        s_and_b32 {s(sL)}, s2, 15
        s_mov_b32 {s(sN)}, s2
        ''')
        return
    A(f'''
    s_and_b32 {s(sK)}, s2, 7
    s_lshl_b32 {s(sK)}, {s(sK)}, 1
    s_bfe_u32 {s(sT)}, s2, 0x10003
    s_or_b32 {s(sK)}, {s(sK)}, {s(sT)}
    s_lshr_b32 {s(sL)}, s2, 4
    s_lshl_b32 {s(sN)}, {s(sK)}, 4
    s_or_b32 {s(sN)}, {s(sN)}, {s(sL)}
    ''')

def rows_scalar(sK, sTau, sR, sM, t0, t1):
    A(f'''
    s_lshr_b32 {s(t0)}, {s(sTau)}, 5
    s_and_b32 {s(t1)}, {s(sTau)}, 31
    s_lshl_b32 {s(sR)}, {s(t1)}, 6
    s_lshl_b32 {s(sM)}, {s(t0)}, 5
    s_add_u32 {s(sM)}, {s(sM)}, {s(sK)}
    s_cmp_ge_u32 {s(t1)}, 16
    s_cselect_b32 {s(t1)}, -992, 0
    s_cmp_eq_u32 {s(t0)}, 1
    s_cselect_b32 {s(t1)}, 16, {s(t1)}
    s_cmp_eq_u32 {s(sK)}, 0
    s_cselect_b32 {s(sM)}, {s(t1)}, {s(sM)}
    s_add_u32 {s(sR)}, {s(sR)}, {s(sM)}
    s_sub_u32 {s(sM)}, 2048, {s(sR)}
    s_cmp_eq_u32 {s(sR)}, 0
    s_cselect_b32 {s(sM)}, 1024, {s(sM)}
    s_lshl_b32 {s(sR)}, {s(sR)}, 11
    s_lshl_b32 {s(sM)}, {s(sM)}, 11
    ''')

def relayout_addrs(vL, sBase, vLin, vRep, vMir, vA0, vC0, vD0, t0, t1, sm):
    def pos(dst, col, tmp):
        A(f'''
        v_lshrrev_b32 {v(tmp)}, 8, {v(col)}
        v_lshlrev_b32 {v(tmp)}, 5, {v(tmp)}
        v_lshl_add_u32 {v(dst)}, {v(col)}, 1, {v(tmp)}
        v_add_u32 {v(dst)}, {s(sBase)}, {v(dst)}
        ''')
    A(f'''
    v_lshrrev_b32 {v(t0)}, 5, {v(vL)}
    v_lshlrev_b32 {v(t0)}, 5, {v(t0)}
    v_lshl_add_u32 {v(vLin)}, {v(vL)}, 4, {v(t0)}
    v_add_u32 {v(vLin)}, {s(sBase)}, {v(vLin)}
    v_and_b32 {v(t0)}, 3, {v(vL)}
    v_lshlrev_b32 {v(t0)}, 8, {v(t0)}
    v_lshrrev_b32 {v(t1)}, 2, {v(vL)}
    v_add_u32 {v(vA0)}, {v(t0)}, {v(t1)}
    v_and_b32 {v(t0)}, 1, {v(vL)}
    v_lshlrev_b32 {v(t0)}, 8, {v(t0)}
    v_and_b32 {v(t1)}, 2, {v(vL)}
    v_lshl_add_u32 {v(t0)}, {v(t1)}, 3, {v(t0)}
    v_cmp_gt_u32 {s(sm,2)}, 4, {v(vL)}
    v_cndmask_b32 {v(vA0)}, {v(vA0)}, {v(t0)}, {s(sm,2)}
    ''')
    pos(vRep, vA0, t0)
    A(f'v_sub_u32 {v(t1)}, {1024-224}, {v(vA0)}')
    pos(vMir, t1, t0)
    A(f'''
    v_sub_u32 {v(t1)}, 1024, {v(vA0)}
    v_and_b32 {v(t1)}, 1023, {v(t1)}
    ''')
    pos(vC0, t1, t0)
    A(f'''
    v_cmp_eq_u32 {s(sm,2)}, 0, {v(vL)}
    v_mov_b32 {v(t0)}, {2*512+64}
    v_cndmask_b32 {v(t0)}, 0, {v(t0)}, {s(sm,2)}
    v_add_u32 {v(vA0)}, {v(vRep)}, {v(t0)}
    v_add_u32 {v(vD0)}, {v(vC0)}, {v(t0)}
    ''')

def slot_addr(k, c, vRep, vMir, vA0, vC0, vD0):
    row = ROWB if k in (1, 3) else 0
    if c == 0:
        return [(vA0, 0), (vRep, ROWB), (vC0, 0), (vD0, ROWB)][k]
    if k < 2: return (vRep, row + 64 * c)
    return (vMir, row + 64 * (7 - c))

def red64x2(a, b, u):
    A(f'''
    v_permlane32_swap_b32 {v(a)}, {v(b)}
    v_add_f32 {v(a)}, {v(a)}, {v(b)}
    v_add_f32_dpp {v(a)}, {v(a)}, {v(a)} row_ror:8 row_mask:0xf bank_mask:0xf
    v_add_f32_dpp {v(a)}, {v(a)}, {v(a)} row_ror:4 row_mask:0xf bank_mask:0xf
    v_add_f32_dpp {v(a)}, {v(a)}, {v(a)} row_ror:2 row_mask:0xf bank_mask:0xf
    v_add_f32_dpp {v(a)}, {v(a)}, {v(a)} row_ror:1 row_mask:0xf bank_mask:0xf
    v_mov_b32 {v(u)}, {v(a)}
    v_permlane16_swap_b32 {v(a)}, {v(u)}
    v_add_f32 {v(a)}, {v(a)}, {v(u)}
    ''')

STB = 0x1c0000
def stamp(idx, base=56):
    if OPT['stamps']: A(f's_memrealtime {s(base+2*idx,2)}')
def stamp_flush(vS, n, lane0, base=56, sLane=None, tmp=None):
    if not OPT['stamps']: return
    A('s_waitcnt lgkmcnt(0)')
    for k in range(n):
        if sLane is None: A(f'v_writelane_b32 {v(vS)}, {s(base+2*k)}, {lane0+k}')
        else:
            A(f's_add_u32 m0, {s(sLane)}, {lane0+k}')
            A(f'v_writelane_b32 {v(vS)}, {s(base+2*k)}, m0')
def stamp_store(vS, vL, sW, which, sWv, t0, t1, vt):
    if not OPT['stamps']: return
    A(f'''
    s_mov_b64 exec, -1
    s_lshl_b32 {s(t0)}, s2, 10
    s_lshl_b32 {s(t1)}, {s(sWv)}, 8
    s_add_u32 {s(t0)}, {s(t0)}, {s(t1)}
    s_add_u32 {s(t0)}, {s(t0)}, {STB}
    v_lshlrev_b32 {v(vt)}, 2, {v(vL)}
    buffer_store_dword {v(vS)}, {v(vt)}, {s(sW,4)}, {s(t0)} offen
    ''')

def kernel_head(name):
    A.raw(f'.globl {name}\n.p2align 8\n.type {name},@function\n{name}:')
    A.raw('.KERNEL')

def gen_main():
    kernel_head(MAIN)
    V = Regs('v', 1, 256)
    sW, sO, sD, sX = 4, 8, 12, 84
    (sK, sL, sN, sWv, sLay, sXb, sXb2, sSb, sCnt, sErr, t0, t1, t2, t3, sSpec, sEA, sEB, sEC, sEnB, sTau, sR, sM,
     sBase, sFo2, sFo3, sT) = range(16, 42)
    sGb, sHa, sHb, sHin = 50, 51, 53, 55
    sFast, sFl, sXcc, sXf, sPm = 92, 93, 94, 95, 3
    sRho = 42
    sm = 44; sm2 = 46; sG0 = 48
    vL = V.alloc(); vI = V.alloc(); vG = V.alloc()
    vXin = V.alloc(); vXout = V.alloc(); vSout = V.alloc(); vSin = V.alloc(); vFout = V.alloc(); vFin = V.alloc()
    vWa1 = V.alloc(); vWa2 = V.alloc(); vWr = V.alloc(); vQw = V.alloc(); vQr = V.alloc()
    vDump = V.alloc(); vFlag = V.alloc(); vFlagD = V.alloc()
    vOne = V.alloc(4, 4)
    X = [V.alloc(8, 4) for _ in range(4)]
    Ga = V.alloc(8, 4); Ga2 = V.alloc(8, 4); Gb = V.alloc(8, 4); Gb2 = V.alloc(8, 4)
    GR = [V.alloc(4, 4) for _ in range(3)]
    Ec = V.alloc(16, 4); Es = V.alloc(16, 4); Hc = V.alloc(8, 4); Hs = V.alloc(8, 4)
    M2 = V.alloc(2, 2); M3 = V.alloc(2, 2); M4 = V.alloc(2, 2)
    St = V.alloc(4, 4)
    Ps = V.alloc(2, 2); Pc = V.alloc(2, 2)
    T = V.alloc(80, 4)

    def poll_tail(lab, code, vt):
        done = A.newlabel('DONE')
        A(f'''
        v_cmp_eq_u32 vcc, -1, {v(vt)}
        s_sub_u32 {s(sCnt)}, {s(sCnt)}, 1
        s_cbranch_vccz {done}
        s_cbranch_scc0 {lab}
        s_or_b32 {s(sErr)}, {s(sErr)}, {code}
        {done}:
        ''')
    def maxall(regs, vt, vt2):
        regs = list(regs)
        accs = [vt, vt2]; first = [True, True]; k = 0
        while regs:
            a = accs[k]
            if first[k]:
                if len(regs) >= 3: A(f'v_max3_u32 {v(a)}, {v(regs[0])}, {v(regs[1])}, {v(regs[2])}'); regs = regs[3:]
                else: raise Exception
                first[k] = False
            elif len(regs) >= 2: A(f'v_max3_u32 {v(a)}, {v(a)}, {v(regs[0])}, {v(regs[1])}'); regs = regs[2:]
            else: A(f'v_max_u32 {v(a)}, {v(a)}, {v(regs[0])}'); regs = regs[1:]
            k ^= 1
        A(f'v_max_u32 {v(vt)}, {v(vt)}, {v(vt2)}')
    sDbg = 52
    def dump(slot, reg, n, lay=0):
        if not OPT['debug']: return
        A(f's_mul_i32 {s(sDbg)}, {s(sLay)}, {lay * 0x400000}')
        A(f's_add_u32 {s(sDbg)}, {s(sDbg)}, {DUMPB + slot * 0x400000}')
        for r in range(0, n, 4):
            A(f'buffer_store_dwordx4 {v(reg+r,4)}, {v(vDump)}, {s(sW,4)}, {s(sDbg)} offen offset:{4*r}')
        A('s_waitcnt vmcnt(0)')
    vStamp = V.alloc()
    vXa = V.alloc(); vH = V.alloc(); vXf = V.alloc(2, 2); vPt = V.alloc(); vDum = V.alloc()

    sLn = 54
    stamp(0)
    if OPT['spin']: A('s_memrealtime s[88:89]')
    tau = T + 1; a0 = T + 2; a1 = T + 3
    vL16 = T + 16; vRow = X[0]
    A(f"""
    s_cmp_ge_u32 s2, 256
    s_cbranch_scc1 MAIN_END
    s_load_dwordx2 {s(sX,2)}, s[0:1], 0
    s_load_dwordx2 {s(sW,2)}, s[0:1], 96
    s_load_dwordx4 {s(sO,4)}, s[0:1], 80
    v_lshrrev_b32 {v(T)}, 6, v0
    v_and_b32 {v(vL)}, 63, v0
    v_readfirstlane_b32 {s(sWv)}, {v(T)}
    s_mov_b32 {s(sX+2)}, 0x400000
    s_mov_b32 {s(sX+3)}, 0x00020000
    s_mov_b32 {s(sW+2)}, {WS_SIZE}
    s_mov_b32 {s(sW+3)}, 0x00020000
    v_lshlrev_b32 {v(vL16)}, 4, {v(vL)}
    """)
    wg_indices(sK, sL, sN, t0)
    A(f"""
    s_lshl_b32 {s(sTau)}, {s(sL)}, 2
    s_add_u32 {s(sTau)}, {s(sTau)}, {s(sWv)}
    """)
    rows_scalar(sK, sTau, sR, sM, t0, t1)
    A(f"""
    v_and_b32 {v(vI)}, 15, v0
    v_lshrrev_b32 {v(vG)}, 4, {v(vL)}
    s_lshl_b32 {s(sGb)}, {s(sK)}, {GSH}
    s_waitcnt lgkmcnt(0)
    buffer_load_dwordx4 {v(vRow,4)}, {v(vL16)}, {s(sX,4)}, {s(sR)} offen
    buffer_load_dwordx4 {v(vRow+4,4)}, {v(vL16)}, {s(sX,4)}, {s(sR)} offen offset:1024
    buffer_load_dwordx4 {v(vRow+8,4)}, {v(vL16)}, {s(sX,4)}, {s(sM)} offen
    buffer_load_dwordx4 {v(vRow+12,4)}, {v(vL16)}, {s(sX,4)}, {s(sM)} offen offset:1024
    s_load_dword {s(sT)}, {s(sW,2)}, {EOFF}
    """)
    A(f"""
    s_mul_i32 {s(sHin)}, {s(sL)}, {HWG}
    s_add_u32 {s(sHin)}, {s(sHin)}, {s(sGb)}
    s_add_u32 {s(sHin)}, {s(sHin)}, {H0B}
    v_lshlrev_b32 {v(vPt)}, 6, {v(vL)}
    """)
    npt = 0
    if OPT['pt'] & 1:
        A(f"""
        s_mul_i32 {s(t0)}, {s(sWv)}, {HWG // 4}
        s_add_u32 {s(t0)}, {s(t0)}, {s(sHin)}
        """)
        if OPT['ps'] == 64:
            npt = 2
            A(f"""
            buffer_load_dword {v(vDum)}, {v(vPt)}, {s(sW,4)}, {s(t0)} offen
            s_mov_b32 exec_hi, 0
            s_add_u32 {s(t0)}, {s(t0)}, 4096
            buffer_load_dword {v(vDum)}, {v(vPt)}, {s(sW,4)}, {s(t0)} offen
            s_mov_b32 exec_hi, -1
            """)
        else:
            npt = 1
            A(f"""
            v_lshlrev_b32 {v(vDum)}, 7, {v(vL)}
            s_mov_b32 exec_hi, 0xffff
            buffer_load_dword {v(vDum)}, {v(vDum)}, {s(sW,4)}, {s(t0)} offen
            s_mov_b32 exec_hi, -1
            """)
    A(f"""
    s_getreg_b32 {s(sXcc)}, hwreg(HW_REG_XCC_ID, 0, 4)
    s_mov_b32 {s(sD)}, {s(sO+2)}
    s_mov_b32 {s(sD+1)}, {s(sO+3)}
    s_mov_b32 {s(sO+2)}, 0x400000
    s_mov_b32 {s(sO+3)}, 0x00020000
    s_mov_b32 {s(sD+2)}, 256
    s_mov_b32 {s(sD+3)}, 0x00020000
    v_mov_b32 {v(vOne)}, -1
    v_mov_b32 {v(vOne+1)}, -1
    v_mov_b32 {v(vOne+2)}, -1
    v_mov_b32 {v(vOne+3)}, -1
    s_lshl_b32 {s(t0)}, {s(sL)}, 13
    s_add_u32 {s(t0)}, {s(t0)}, {s(sGb)}
    s_lshr_b32 {s(t1)}, {s(sWv)}, 1
    s_lshl_b32 {s(t1)}, {s(t1)}, 12
    s_add_u32 {s(t0)}, {s(t0)}, {s(t1)}
    s_and_b32 {s(t1)}, {s(sWv)}, 1
    s_lshl_b32 {s(t2)}, {s(t1)}, 8
    s_add_u32 {s(t0)}, {s(t0)}, {s(t2)}
    v_lshlrev_b32 {v(a0)}, 4, {v(vI)}
    v_lshl_add_u32 {v(vXout)}, {v(vG)}, 10, {v(a0)}
    v_add_u32 {v(vXout)}, {s(t0)}, {v(vXout)}
    s_mov_b32 {s(sXb)}, {XB}
    s_mov_b32 {s(sXb2)}, {XB + (2 << GSH)}
    buffer_store_dwordx4 {v(vOne,4)}, {v(vXout)}, {s(sW,4)}, {s(sXb)} offen sc1
    buffer_store_dwordx4 {v(vOne,4)}, {v(vXout)}, {s(sW,4)}, {s(sXb)} offen offset:512 sc1
    s_lshl_b32 {s(t0)}, {s(sL)}, 10
    s_min_u32 {s(t2)}, {s(sWv)}, 2
    s_mul_i32 {s(t2)}, {s(t2)}, {SSTR}
    s_add_u32 {s(t0)}, {s(t0)}, {s(sGb)}
    s_add_u32 {s(t2)}, {s(t2)}, {s(t0)}
    s_add_u32 {s(t2)}, {s(t2)}, {SB}
    buffer_store_dwordx4 {v(vOne,4)}, {v(vL16)}, {s(sW,4)}, {s(t2)} offen sc1
    s_mov_b32 {s(sErr)}, 0
    s_mov_b32 {s(sLay)}, 0
    s_mov_b32 {s(sSb)}, {SB}
    ; tau = 16 w + i
    s_lshl_b32 {s(t2)}, {s(sWv)}, 4
    v_add_u32 {v(tau)}, {s(t2)}, {v(vI)}
    v_lshlrev_b32 {v(a1)}, 4, {v(tau)}
    v_lshl_add_u32 {v(vSout)}, {v(vG)}, 2, {v(a1)}
    v_add_u32 {v(vSout)}, {s(t0)}, {v(vSout)}
    v_lshl_add_u32 {v(vSin)}, {v(vG)}, 12, {v(a1)}
    v_add_u32 {v(vSin)}, {s(sGb)}, {v(vSin)}
    v_lshrrev_b32 {v(a0)}, 5, {v(vL)}
    v_lshlrev_b32 {v(vXin)}, {GSH}, {v(a0)}
    v_bfe_u32 {v(a0)}, {v(vL)}, 1, 4
    v_lshl_add_u32 {v(vXin)}, {v(a0)}, 13, {v(vXin)}
    v_and_b32 {v(a0)}, 1, {v(vL)}
    v_lshl_add_u32 {v(vXin)}, {v(a0)}, 4, {v(vXin)}
    s_lshl_b32 {s(t2)}, {s(sWv)}, {GSH+2}
    s_lshl_b32 {s(t3)}, {s(sN)}, 5
    s_add_u32 {s(t2)}, {s(t2)}, {s(t3)}
    v_add_u32 {v(vXin)}, {s(t2)}, {v(vXin)}
    s_lshl_b32 {s(t2)}, {s(sWv)}, 11
    s_add_u32 {s(t2)}, {s(t2)}, {LDS_Q}
    v_add_u32 {v(vQw)}, {s(t2)}, {v(vL16)}
    v_lshrrev_b32 {v(a0)}, 2, {v(tau)}
    v_lshlrev_b32 {v(vFout)}, 14, {v(a0)}
    v_and_b32 {v(a0)}, 3, {v(vI)}
    v_lshl_add_u32 {v(vFout)}, {v(a0)}, 6, {v(vFout)}
    v_lshl_add_u32 {v(vFout)}, {v(vG)}, 4, {v(vFout)}
    v_add_u32 {v(vFout)}, {s(t0)}, {v(vFout)}
    v_lshrrev_b32 {v(a0)}, 2, {v(vL)}
    v_lshlrev_b32 {v(vFin)}, 10, {v(a0)}
    v_and_b32 {v(a0)}, 3, {v(vL)}
    v_lshl_add_u32 {v(vFin)}, {v(a0)}, 4, {v(vFin)}
    s_lshl_b32 {s(t2)}, {s(sL)}, 14
    s_add_u32 {s(t2)}, {s(t2)}, {s(sGb)}
    s_lshl_b32 {s(t3)}, {s(sWv)}, 6
    s_add_u32 {s(t2)}, {s(t2)}, {s(t3)}
    v_add_u32 {v(vFin)}, {s(t2)}, {v(vFin)}
    """)
    A(f'''
    v_lshlrev_b32 {v(a0)}, 4, {v(vI)}
    v_lshl_add_u32 {v(vWr)}, {v(vG)}, 8, {v(a0)}
    v_lshl_add_u32 {v(vQr)}, {v(vG)}, 9, {v(a0)}
    s_lshl_b32 {s(t2)}, {s(t1)}, 10
    v_add_u32 {v(vWr)}, {s(t2)}, {v(vWr)}
    v_add_u32 {v(vQr)}, {LDS_Q}, {v(vQr)}
    v_lshrrev_b32 {v(a1)}, 1, {v(vG)}
    v_lshl_add_u32 {v(a0)}, {v(a1)}, 8, {v(a0)}
    v_and_b32 {v(a1)}, 1, {v(vG)}
    v_lshl_add_u32 {v(a0)}, {v(a1)}, 3, {v(a0)}
    s_lshr_b32 {s(t0)}, {s(sWv)}, 1
    s_lshl_b32 {s(t0)}, {s(t0)}, 11
    s_lshl_b32 {s(t2)}, {s(t1)}, 9
    s_add_u32 {s(t0)}, {s(t0)}, {s(t2)}
    s_lshl_b32 {s(t2)}, {s(sWv)}, 12
    s_lshl_b32 {s(t3)}, {s(sK)}, 2
    s_or_b32 {s(sSpec)}, {s(t3)}, {s(sWv)}
    s_cmp_lt_u32 {s(sSpec)}, 2
    s_cselect_b32 {s(t0)}, {s(t2)}, {s(t0)}
    s_cselect_b32 {s(t2)}, 1, 8
    s_lshl_b32 {s(t2)}, {s(t2)}, 9
    s_add_u32 {s(t2)}, {s(t2)}, {s(t0)}
    v_add_u32 {v(vWa1)}, {s(t0)}, {v(a0)}
    v_add_u32 {v(vWa2)}, {s(t2)}, {v(a0)}
    s_cmp_eq_u32 {s(sSpec)}, 0
    s_cselect_b32 {s(sRho)}, 0x00010001, 0
    s_mov_b32 {s(sRho+1)}, {s(sRho)}
    v_mov_b32 {v(M2)}, 1.0
    v_mov_b32 {v(M2+1)}, 1.0
    v_mov_b32 {v(M3)}, 1.0
    v_mov_b32 {v(M3+1)}, 1.0
    v_mov_b32 {v(M4)}, 1.0
    v_mov_b32 {v(M4+1)}, 1.0
    s_cmp_eq_u32 {s(sL)}, 0
    s_cselect_b32 exec_lo, 0xffff, 0
    s_mov_b32 exec_hi, 0
    v_mov_b32 {v(M2)}, 0
    v_mov_b32 {v(M3)}, 0
    s_and_b32 exec_lo, exec_lo, {s(sRho)}
    v_mov_b32 {v(M3)}, 1.0
    v_mov_b32 {v(M4)}, 0
    s_mov_b64 exec, -1
    v_mov_b32 {v(vStamp)}, 0
    ''')
    if OPT['debug']:
        A(f'''
        s_lshl_b32 {s(t0)}, {s(sN)}, 8
        v_add_u32 {v(vDump)}, {s(t0)}, v0
        v_lshlrev_b32 {v(vDump)}, 6, {v(vDump)}
        ''')

    stamp(1)
    fr = T + 4; ph = T + 5; arg = T + 6; c0 = T + 8; stp = T + 7; gf = T + 10; amp = T + 11; voff = T + 12; Z = T + 13; arg2 = T + 14
    def f_ph(x_sgpr_or_imm):
        A(f'''
        v_lshrrev_b32 {v(a0)}, 1, {v(vI)}
        v_cvt_f32_u32 {v(fr)}, {v(a0)}
        v_and_b32 {v(a1)}, 1, {v(vI)}
        v_cvt_f32_u32 {v(ph)}, {v(a1)}
        v_mul_f32 {v(fr)}, {f32(1/32)}, {v(fr)}
        v_mul_f32 {v(ph)}, {f32(0.25)}, {v(ph)}
        v_add_f32 {v(fr)}, {x_sgpr_or_imm}, {v(fr)}
        v_cmp_eq_f32 vcc, 0, {v(fr)}
        v_cndmask_b32 {v(a0)}, 0, {v(ph)}, vcc
        v_fmac_f32 {v(fr)}, 2.0, {v(a0)}
        v_sub_f32 {v(ph)}, {v(ph)}, {v(a0)}
        ''')
    def cos_row(dst, step, scaled=False, first=None):
        for c in range(8):
            src = first if (c == 0 and first is not None) else arg
            A(f'v_cos_f32 {v(c0 + (c & 1))}, {v(src)}')
            if c < 7: A(f'v_add_f32 {v(arg)}, {v(arg)}, {v(step)}')
            if scaled: A(f'v_fma_f32 {v(c0 + (c & 1))}, {v(c0 + (c & 1))}, {v(amp)}, {v(voff)}')
            if c & 1: A(f'v_cvt_pk_f16_f32 {v(dst + c // 2)}, {v(c0)}, {v(c0+1)}')
    A(f'''
    v_cvt_f32_u32 {v(gf)}, {v(vG)}
    v_mul_f32 {v(gf)}, {f32(8.0)}, {v(gf)}
    s_cmp_eq_u32 {s(sL)}, 0
    s_cbranch_scc1 GCOL0
    ''')
    for cb in range(2):
        f_ph('0' if cb == 0 else f32(0.25))
        A(f'v_fma_f32 {v(arg)}, {v(fr)}, {v(gf)}, -{v(ph)}')
        cos_row(Ga + 4 * cb, fr)
    for r in range(0, 8, 2): A(f'v_mov_b64 {v(Ga2+r,2)}, {v(Ga+r,2)}')
    A('GCOL_DONE:')
    A(f'''
    s_lshr_b32 {s(t0)}, {s(sWv)}, 1
    s_mul_i32 {s(t0)}, {s(t0)}, {f32(0.25)}
    ''')
    f_ph(s(t0))
    A(f'v_fma_f32 {v(arg)}, {v(fr)}, {v(gf)}, -{v(ph)}')
    cos_row(GR[1], fr)
    A(f'''
    s_cmp_eq_u32 {s(sK)}, 0
    s_cbranch_scc1 GROW0
    ''')
    for r in range(0, 4, 2):
        A(f'v_mov_b64 {v(GR[0]+r,2)}, {v(GR[1]+r,2)}')
        A(f'v_mov_b64 {v(GR[2]+r,2)}, {v(GR[1]+r,2)}')
    A('GROW_DONE:')
    vLin, vRep0, vA0, vMir0, vC0, vRep1, vMir1 = range(Hc, Hc + 7)
    vE, vEm, q0, q1 = range(Hs, Hs + 4)
    vHin = T + 38; GRN = T + 40; HI = T + 64; vF = Ec
    def dreg(h, j): return GRN + 12 * h + 4 * (j // 3) + 1 + j % 3
    def pos(dst, col, rowoff):
        A(f"""
        v_lshrrev_b32 {v(q1)}, 8, {v(col)}
        v_lshl_add_u32 {v(q1)}, {v(q1)}, 5, {v(rowoff)}
        v_lshl_add_u32 {v(dst)}, {v(col)}, 1, {v(q1)}
        """)
    A(f"""
    s_mul_i32 {s(sBase)}, {s(sWv)}, {2*ROWB}
    s_add_u32 {s(sBase)}, {s(sBase)}, {LDS_R}
    v_lshrrev_b32 {v(q0)}, 5, {v(vL)}
    v_lshlrev_b32 {v(q0)}, 5, {v(q0)}
    v_lshl_add_u32 {v(vLin)}, {v(vL)}, 4, {v(q0)}
    v_add_u32 {v(vLin)}, {s(sBase)}, {v(vLin)}
    s_mov_b32 {s(sm)}, 0xf0f0f0f0
    s_mov_b32 {s(sm+1)}, 0xf0f0f0f0
    s_add_u32 {s(t0)}, {s(sBase)}, {ROWB}
    v_mov_b32 {v(q0)}, {s(sBase)}
    v_mov_b32 {v(q1)}, {s(t0)}
    v_cndmask_b32 {v(vE)}, {v(q0)}, {v(q1)}, {s(sm,2)}
    s_cmp_eq_u32 {s(sR)}, 0
    s_cselect_b32 {s(t1)}, -1, 0
    s_xor_b32 {s(sm2)}, {s(sm)}, {s(t1)}
    s_mov_b32 {s(sm2+1)}, {s(sm2)}
    v_cndmask_b32 {v(vEm)}, {v(q0)}, {v(q1)}, {s(sm2,2)}
    v_and_b32 {v(q0)}, 3, {v(vL)}
    v_lshrrev_b32 {v(vH)}, 3, {v(vL)}
    v_lshl_add_u32 {v(vA0)}, {v(q0)}, 8, {v(vH)}
    v_add_u32 {v(q0)}, 8, {v(vA0)}
    """)
    pos(vRep1, q0, vE)
    A(f'v_sub_u32 {v(q0)}, {1024-224-8}, {v(vA0)}')
    pos(vMir1, q0, vEm)
    A(f"""
    v_and_b32 {v(q0)}, 1, {v(vL)}
    v_lshlrev_b32 {v(q0)}, 8, {v(q0)}
    v_and_b32 {v(q1)}, 2, {v(vL)}
    s_mov_b64 exec, 0xff
    v_lshl_add_u32 {v(vA0)}, {v(q1)}, 3, {v(q0)}
    s_mov_b64 exec, -1
    """)
    pos(vRep0, vA0, vE)
    A(f'v_sub_u32 {v(q0)}, {1024-224}, {v(vA0)}')
    pos(vMir0, q0, vEm)
    A(f"""
    v_sub_u32 {v(q0)}, 1024, {v(vA0)}
    v_and_b32 {v(q0)}, 1023, {v(q0)}
    """)
    pos(vC0, q0, vEm)
    A(f"""
    v_mov_b32 {v(vA0)}, {v(vRep0)}
    s_mov_b64 exec, 1
    v_add_u32 {v(vA0)}, {2*512+64}, {v(vA0)}
    s_and_b32 exec_lo, {s(sm2)}, 0x11
    v_add_u32 {v(vC0)}, {2*512+64}, {v(vC0)}
    s_mov_b64 exec, -1
    s_mov_b32 {s(t0)}, {HWG}
    v_mul_lo_u32 {v(vH)}, {v(vH)}, {s(t0)}
    v_and_b32 {v(q0)}, 7, {v(vL)}
    v_lshl_add_u32 {v(vH)}, {v(q0)}, 4, {v(vH)}
    s_mul_i32 {s(sHa)}, {s(sTau)}, {HSL}
    s_add_u32 {s(sHa)}, {s(sHa)}, {s(sGb)}
    s_add_u32 {s(sHb)}, {s(sHa)}, {H0B + 8*HWG}
    s_add_u32 {s(sHa)}, {s(sHa)}, {H0B}
    v_mul_u32_u24 {v(vHin)}, {HSL}, {v(tau)}
    v_lshl_add_u32 {v(vHin)}, {v(vG)}, 4, {v(vHin)}
    s_waitcnt lgkmcnt(0)
    s_mul_i32 {s(sT)}, {s(sT)}, 0x19660d
    s_add_u32 {s(sT)}, {s(sT)}, 0x3c6ef35f
    s_add_u32 {s(sXf)}, {s(sGb)}, {XF}
    v_lshlrev_b32 {v(vXa)}, 4, {v(vI)}
    v_mov_b32 {v(vXf)}, {s(sT)}
    v_mov_b32 {v(vXf+1)}, {s(sXcc)}
    s_lshl_b32 exec_lo, 1, {s(sL)}
    s_mov_b32 exec_hi, 0
    buffer_store_dwordx2 {v(vXf,2)}, {v(vXa)}, {s(sW,4)}, {s(sXf)} offen sc1
    s_mov_b64 exec, -1
    """)
    for h in range(2):
        for t in range(3): A(f'v_mov_b32 {v(GRN+12*h+4*t)}, {s(sT)}')
    stamp(2)
    A(f's_waitcnt vmcnt({4+npt})')
    stamp(3)
    A(f"""
    ds_write_b128 {v(vLin)}, {v(vRow,4)}
    ds_write_b128 {v(vLin)}, {v(vRow+4,4)} offset:1088
    ds_write_b128 {v(vLin)}, {v(vRow+8,4)} offset:{ROWB}
    ds_write_b128 {v(vLin)}, {v(vRow+12,4)} offset:{ROWB+1088}
    """)
    for r in range(16):
        A(f"""
        v_lshlrev_b32 {v(vF+2*r)}, 16, {v(vRow+r)}
        v_and_b32 {v(vF+2*r+1)}, 0xffff0000, {v(vRow+r)}
        """)
    A('s_waitcnt lgkmcnt(0)')
    for h in range(2):
        for part in range(2):
            for c in range(8):
                if part == 0: ad, off = ((vA0, 0) if (c == 0 and h == 0) else ((vRep0, vRep1)[h], 64 * c))
                else: ad, off = ((vC0, 0) if (c == 0 and h == 0) else ((vMir0, vMir1)[h], 64 * (7 - c)))
                j = 4 * part + c // 2
                A(f'ds_read_u16 {v(HI+8*h+j if c & 1 else dreg(h, j))}, {v(ad)} offset:{off}')
    a, b, u, m = T + 4, T + 6, T + 8, T + 10
    for (acc, base) in ((a, vF), (b, vF + 16)):
        A(f'v_pk_add_f32 {v(acc,2)}, {v(base,2)}, {v(base+2,2)}')
    for p in range(2, 8):
        for (acc, base) in ((a, vF), (b, vF + 16)):
            A(f'v_pk_add_f32 {v(acc,2)}, {v(acc,2)}, {v(base+2*p,2)}')
    A(f"""
    v_add_f32 {v(a)}, {v(a)}, {v(a+1)}
    v_add_f32 {v(b)}, {v(b)}, {v(b+1)}
    """)
    red64x2(a, b, u)
    A(f"""
    v_mul_f32 {v(m)}, {f32(1/1024)}, {v(a)}
    v_mov_b32 {v(u)}, {v(m)}
    v_mov_b32 {v(u+1)}, {v(m)}
    v_permlane32_swap_b32 {v(u)}, {v(u+1)}
    """)
    for p in range(8):
        A(f'v_pk_add_f32 {v(vF+2*p,2)}, {v(vF+2*p,2)}, {v(u,2)} op_sel_hi:[1,0] neg_lo:[0,1] neg_hi:[0,1]')
        A(f'v_pk_add_f32 {v(vF+16+2*p,2)}, {v(vF+16+2*p,2)}, {v(u,2)} op_sel:[0,1] op_sel_hi:[1,1] neg_lo:[0,1] neg_hi:[0,1]')
    for (acc, base) in ((a, vF), (b, vF + 16)):
        A(f'v_pk_mul_f32 {v(acc,2)}, {v(base,2)}, {v(base,2)}')
    for p in range(1, 8):
        for (acc, base) in ((a, vF), (b, vF + 16)):
            A(f'v_pk_fma_f32 {v(acc,2)}, {v(base+2*p,2)}, {v(base+2*p,2)}, {v(acc,2)}')
    A(f"""
    v_add_f32 {v(a)}, {v(a)}, {v(a+1)}
    v_add_f32 {v(b)}, {v(b)}, {v(b+1)}
    s_waitcnt lgkmcnt(0)
    """)
    def hstore(h, t, m=''):
        A(f'buffer_store_dwordx4 {v(GRN+12*h+4*t,4)}, {v(vH)}, {s(sW,4)}, {s((sHa, sHb)[h])} offen offset:{128*t}{m}')
    for h in range(2):
        for j in range(8):
            A(f'v_lshl_or_b32 {v(dreg(h, j))}, {v(HI+8*h+j)}, 16, {v(dreg(h, j))}')
            if j in (2, 5): hstore(h, j // 3)
    red64x2(a, b, u)
    A(f"""
    v_mov_b32 {v(u)}, {f32(1e-5)}
    v_fmac_f32 {v(u)}, {f32(1/1024)}, {v(a)}
    v_rsq_f32 {v(a)}, {v(u)}
    s_mov_b32 {s(sm2)}, 0xaaaaaaaa
    s_mov_b32 {s(sm2+1)}, 0xaaaaaaaa
    v_mul_f32 {v(a+1)}, {v(m)}, {v(a)}
    v_cndmask_b32 {v(a)}, {v(a)}, {v(a+1)}, {s(sm2,2)}
    v_mov_b32 {v(a+1)}, {v(a)}
    v_permlane32_swap_b32 {v(a)}, {v(a+1)}
    v_cndmask_b32 {v(dreg(0, 8))}, {v(a)}, {v(a+1)}, {s(sm,2)}
    v_cndmask_b32 {v(dreg(1, 8))}, {v(a)}, {v(a+1)}, {s(sm,2)}
    """)
    hstore(0, 2); hstore(1, 2)
    A(f"""
    s_mov_b32 {s(t0)}, {XB + XSTR}
    buffer_store_dwordx4 {v(vOne,4)}, {v(vXout)}, {s(sW,4)}, {s(t0)} offen sc1
    buffer_store_dwordx4 {v(vOne,4)}, {v(vXout)}, {s(sW,4)}, {s(t0)} offen offset:512 sc1
    """)
    stamp(4)
    A(f"""
    s_waitcnt vmcnt(9)
    s_barrier
    s_cmp_lg_u32 {s(sWv)}, 0
    s_cbranch_scc1 NOFLAG
    s_lshl_b32 {s(t0)}, {s(sL)}, 4
    s_add_u32 {s(t0)}, {s(t0)}, {s(sGb)}
    v_mov_b32 {v(vFlag)}, {FLG}
    s_mov_b64 exec, 1
    buffer_store_dword {v(GRN)}, {v(vFlag)}, {s(sW,4)}, {s(t0)} offen sc1
    s_mov_b64 exec, -1
    NOFLAG:
    buffer_load_dwordx2 {v(vXf,2)}, {v(vXa)}, {s(sW,4)}, {s(sXf)} offen sc1
    s_branch EHGEN
    EH_DONE:
    """)
    stamp(5)
    vt = T + 68; vt2 = T + 69
    A(f"""
    v_lshlrev_b32 {v(vFlag)}, {GSH}, {v(vG)}
    v_lshl_add_u32 {v(vFlag)}, {v(vI)}, 4, {v(vFlag)}
    s_lshl_b32 {s(sFl)}, {s(sWv)}, {GSH+2}
    s_add_u32 {s(sFl)}, {s(sFl)}, {FLG}
    s_mov_b32 {s(sCnt)}, {BOUND}
    s_waitcnt vmcnt(0)
    """)
    stamp(8)
    A(f"""
    v_cmp_ne_u32 vcc, {s(sT)}, {v(vXf)}
    s_cbranch_vccnz XCHK
    XOK:
    v_cmp_ne_u32 vcc, {s(sXcc)}, {v(vXf+1)}
    s_mov_b32 {s(sFast)}, 1
    s_mov_b32 {s(sPm)}, {(1 if OPT['pt'] & 2 else 0) | (4 if OPT['pt'] & 4 else 0)}
    s_cbranch_vcc{'z' if OPT['slow'] else 'nz'} HSLOW
    """)
    def hload(m):
        for t in range(3):
            for e in range(2):
                A(f'buffer_load_dwordx4 {v(GRN+12*e+4*t,4)}, {v(vHin)}, {s(sW,4)}, {s(sHin)} offen offset:{128*t+64*e}{m}')
    hload('')
    A('s_branch HCHK')
    A('HPOLL:')
    hload(' sc1')
    tg = [GRN + 4 * k for k in range(6)]
    A(f"""
    HCHK:
    s_waitcnt vmcnt(0)
    v_min3_u32 {v(vt)}, {v(tg[0])}, {v(tg[1])}, {v(tg[2])}
    v_max3_u32 {v(vt2)}, {v(tg[0])}, {v(tg[1])}, {v(tg[2])}
    v_min3_u32 {v(vt)}, {v(vt)}, {v(tg[3])}, {v(tg[4])}
    v_max3_u32 {v(vt2)}, {v(vt2)}, {v(tg[3])}, {v(tg[4])}
    v_min_u32 {v(vt)}, {v(vt)}, {v(tg[5])}
    v_max_u32 {v(vt2)}, {v(vt2)}, {v(tg[5])}
    v_cmp_ne_u32 vcc, {s(sT)}, {v(vt)}
    v_cmp_ne_u32 {s(sm,2)}, {s(sT)}, {v(vt2)}
    s_or_b64 {s(sm,2)}, {s(sm,2)}, vcc
    s_cbranch_scc0 HGOT
    s_sub_u32 {s(sCnt)}, {s(sCnt)}, 1
    s_cbranch_scc0 HPOLL
    s_or_b32 {s(sErr)}, {s(sErr)}, 8
    HGOT:
    buffer_load_dword {v(vFlagD)}, {v(vFlag)}, {s(sW,4)}, {s(sFl)} offen sc1
    """)
    stamp(6)
    if OPT['stamps']: A(f's_sub_u32 {s(56+2*7)}, {BOUND}, {s(sCnt)}')
    stamp_flush(vStamp, 8, 0)
    if OPT['stamps']: A(f'v_writelane_b32 {v(vStamp)}, {s(56+16)}, 58')
    A(f"""
    v_mov_b32 {v(St)}, {v(dreg(0, 8))}
    v_mov_b32 {v(St+1)}, {v(dreg(0, 8))}
    v_mov_b32 {v(St+2)}, {v(dreg(1, 8))}
    v_mov_b32 {v(St+3)}, {v(dreg(1, 8))}
    """)
    for k in range(4):
        for r in range(4):
            src = dreg(k & 1, 4 * (k >> 1) + r)
            A(f"""
            v_lshlrev_b32 {v(X[k]+2*r)}, 16, {v(src)}
            v_and_b32 {v(X[k]+2*r+1)}, 0xffff0000, {v(src)}
            """)
        if k == 0:
            A(f"""
            v_permlane16_swap_b32 {v(St)}, {v(St+1)}
            v_permlane16_swap_b32 {v(St+2)}, {v(St+3)}
            """)
    dump(0, X[0], 16); dump(1, X[2], 16)

    rR, cR, rM, cM = St, St + 1, St + 2, St + 3
    pA = T; pB = T + 8; PA = T + 16; PB = T + 20; PC = T + 24; PD = T + 28
    W = T + 32
    Wh = T + 48
    Wb = T + 0
    Dacc = T + 16
    Fr = T + 56
    A('LOOP:')
    stamp(0)
    A(f'''
    v_cndmask_b32 {v(Ps)}, {v(rM)}, {v(rR)}, {s(sRho,2)}
    v_cndmask_b32 {v(Ps+1)}, {v(rR)}, {v(rM)}, {s(sRho,2)}
    v_cndmask_b32 {v(Pc)}, {v(cM)}, {v(cR)}, {s(sRho,2)}
    v_cndmask_b32 {v(Pc+1)}, {v(cR)}, {v(cM)}, {s(sRho,2)}
    v_add_f32 {v(Pc)}, {v(Pc)}, {v(cR)}
    v_add_f32 {v(Pc+1)}, {v(Pc+1)}, {v(cM)}
    ''')
    for p in range(4):
        A(f'v_pk_fma_f32 {v(pA+2*p,2)}, {v(X[0]+2*p,2)}, {v(St,2)}, {v(Pc,2)} op_sel_hi:[1,0,0] neg_lo:[0,0,1] neg_hi:[0,0,1]')
        A(f'v_pk_fma_f32 {v(pB+2*p,2)}, {v(X[1]+2*p,2)}, {v(St+2,2)}, {v(Pc,2)} op_sel:[0,0,1] op_sel_hi:[1,0,1] neg_lo:[0,0,1] neg_hi:[0,0,1]')
    for p in range(4):
        A(f'v_pk_fma_f32 {v(pA+2*p,2)}, {v(X[3]+2*p,2)}, {v(Ps,2)}, {v(pA+2*p,2)} op_sel_hi:[1,0,1]')
        A(f'v_pk_fma_f32 {v(pB+2*p,2)}, {v(X[2]+2*p,2)}, {v(Ps,2)}, {v(pB+2*p,2)} op_sel:[0,1,0] op_sel_hi:[1,1,1]')
    for p in range(4):
        A(f'v_cvt_pk_f16_f32 {v(PA+p)}, {v(pA+2*p)}, {v(pA+2*p+1)}')
    for p in range(4):
        A(f'v_cvt_pk_f16_f32 {v(PB+p)}, {v(pB+2*p)}, {v(pB+2*p+1)}')
    A(f'''
    s_cmp_eq_u32 {s(sL)}, 0
    s_cbranch_scc1 COL0
    ''')
    MF = 'v_mfma_f32_16x16x32_f16'
    for cb in range(2): A(f'{MF} {v(W+4*cb,4)}, {v(PA,4)}, {v(Ga+4*cb,4)}, 0')
    for cb in range(2): A(f'{MF} {v(W+8+4*cb,4)}, {v(PB,4)}, {v(Ga2+4*cb,4)}, 0')
    A('COL_DONE:')
    dump(16, St, 8, 1); dump(20, PA, 16, 1); dump(24, W, 16, 1)
    for j in range(4):
        A(f'''
        v_cvt_pk_f16_f32 {v(Wh+2*j)}, {v(W+4*j)}, {v(W+4*j+1)}
        v_cvt_pk_f16_f32 {v(Wh+2*j+1)}, {v(W+4*j+2)}, {v(W+4*j+3)}
        ds_write_b64 {v(vWa1 if j < 2 else vWa2)}, {v(Wh+2*j,2)} offset:{LDS_W + 1024*(j&1)}
        ''')
    stamp(1)
    A('''
    s_waitcnt lgkmcnt(0)
    s_barrier
    ''')
    for u in range(4): A(f'ds_read_b128 {v(Wb+4*u,4)}, {v(vWr)} offset:{LDS_W + 2048*u}')
    for u in range(4):
        A(f's_waitcnt lgkmcnt({3-u})')
        A(f'{MF} {v(Dacc+4*u,4)}, {v(GR[[0,1,2,1][u]],4)}, {v(Wb+4*u,4)}, 0')
    dump(28, Dacc, 16, 1)
    for j in range(2):
        for u in range(4):
            A(f'v_cvt_pk_f16_f32 {v(Fr+4*j+u)}, {v(Dacc+4*u+2*j)}, {v(Dacc+4*u+2*j+1)}')
        A(f'buffer_store_dwordx4 {v(Fr+4*j,4)}, {v(vXout)}, {s(sW,4)}, {s(sXb)} offen offset:{512*j} sc1')
    stamp(2)
    if OPT['xp'] & 1: A('s_waitcnt vmcnt(0)')
    A(f"""
    s_cmp_ge_u32 {s(sLay)}, 2
    s_cbranch_scc1 CLRF
    s_add_u32 {s(t0)}, {s(sXb)}, {2*XSTR}
    buffer_store_dwordx4 {v(vOne,4)}, {v(vXout)}, {s(sW,4)}, {s(t0)} offen sc1
    buffer_store_dwordx4 {v(vOne,4)}, {v(vXout)}, {s(sW,4)}, {s(t0)} offen offset:512 sc1
    s_cmp_eq_u32 {s(sLay)}, 0
    s_cbranch_scc1 FLAGS
    CLR_DONE:
    s_mov_b32 {s(sCnt)}, {BOUND}
    """)
    if OPT['sl']: A(f's_sleep {OPT["sl"]}')
    else: A('s_waitcnt vmcnt(0)')
    if OPT['xp'] & 2: A('s_barrier')
    stamp(3)
    Qp = T; Q = T + 8; Vc = T + 40; Vs = T + 48; BVc = T + 56; BVs = T + 60; BVo = T + 64; CC = T + 0; SS = T + 8
    A(f"""
    XPOLL:
    buffer_load_dwordx4 {v(Qp,4)}, {v(vXin)}, {s(sW,4)}, {s(sXb)} offen sc1
    buffer_load_dwordx4 {v(Qp+4,4)}, {v(vXin)}, {s(sW,4)}, {s(sXb2)} offen sc1
    s_waitcnt vmcnt(0)
    """)
    maxall(range(Qp, Qp + 8), vt, vt2)
    poll_tail('XPOLL', 1, vt)
    stamp(4)
    if OPT['stamps']: A(f's_sub_u32 {s(56+2*9)}, {BOUND}, {s(sCnt)}')
    A(f"""
    ds_write_b128 {v(vQw)}, {v(Qp,4)}
    ds_write_b128 {v(vQw)}, {v(Qp+4,4)} offset:1024
    s_bitcmp1_b32 {s(sPm)}, {s(sLay)}
    s_cbranch_scc1 PTOUCH
    PT_DONE:
    s_waitcnt lgkmcnt(0)
    s_barrier
    """)
    stamp(5)
    for q in range(4):
        for blk in range(2):
            A(f'ds_read_b128 {v(Q+8*q+4*blk,4)}, {v(vQr)} offset:{2048*q+256*blk}')
    for q in range(4):
        for blk in range(2):
            A(f's_waitcnt lgkmcnt({7-2*q-blk})')
            for (acc, E) in ((Vc, Ec), (Vs, Es)):
                cin = '0' if q == 0 else v(acc+4*blk,4)
                A(f'{MF} {v(acc+4*blk,4)}, {v(Q+8*q+4*blk,4)}, {v(E+4*q,4)}, {cin}')
    dump(32, Vc, 16, 1)
    for (acc, B) in ((Vc, BVc), (Vs, BVs)):
        for r in range(4):
            A(f'v_cvt_pk_f16_f32 {v(B+r)}, {v(acc+2*r)}, {v(acc+2*r+1)}')
    A(f'''
    s_cmp_eq_u32 {s(sSpec)}, 0
    s_cbranch_scc1 HSPEC
    ''')
    for mb in range(2): A(f'{MF} {v(CC+4*mb,4)}, {v(Hc+4*mb,4)}, {v(BVc,4)}, 0')
    for mb in range(2): A(f'{MF} {v(SS+4*mb,4)}, {v(Hs+4*mb,4)}, {v(BVs,4)}, 0')
    A('H_DONE:')
    dump(36, CC, 16, 1)
    U1 = T + 16; U2 = T + 24
    for p in range(4):
        A(f'v_pk_add_f32 {v(U1+2*p,2)}, {v(CC+2*p,2)}, {v(SS+2*p,2)} neg_lo:[0,1] neg_hi:[0,1]')
        A(f'v_pk_add_f32 {v(U2+2*p,2)}, {v(CC+2*p,2)}, {v(SS+2*p,2)}')
    for p in range(4):
        for k, U, M in ((0, U1, None), (1, U2, M2), (2, U2, M3), (3, U1, M4)):
            if p == 0 and M is not None:
                A(f'v_pk_fma_f32 {v(X[k],2)}, {v(U,2)}, {v(M,2)}, {v(X[k],2)}')
            else:
                A(f'v_pk_add_f32 {v(X[k]+2*p,2)}, {v(X[k]+2*p,2)}, {v(U+2*p,2)}')
    dump(2, X[0], 16, 2); dump(3, X[2], 16, 2)
    stamp(6)
    A(f'''
    s_cmp_eq_u32 {s(sLay)}, 3
    s_cbranch_scc1 FINAL
    ''')
    Sa = [T + 2 * k for k in range(4)]; Qa = [T + 8 + 2 * k for k in range(4)]
    for k in range(4):
        A(f'v_pk_add_f32 {v(Sa[k],2)}, {v(X[k],2)}, {v(X[k]+2,2)}')
        A(f'v_pk_mul_f32 {v(Qa[k],2)}, {v(X[k],2)}, {v(X[k],2)}')
    for p in range(1, 4):
        for k in range(4):
            if p > 1: A(f'v_pk_add_f32 {v(Sa[k],2)}, {v(Sa[k],2)}, {v(X[k]+2*p,2)}')
            A(f'v_pk_fma_f32 {v(Qa[k],2)}, {v(X[k]+2*p,2)}, {v(X[k]+2*p,2)}, {v(Qa[k],2)}')
    A(f'''
    s_cmp_lg_u32 {s(sSpec)}, 0
    s_cbranch_scc1 NOSWAP
    s_mov_b64 exec, {s(sRho,2)}
    v_swap_b32 {v(Sa[2])}, {v(Sa[3])}
    v_swap_b32 {v(Sa[2]+1)}, {v(Sa[3]+1)}
    v_swap_b32 {v(Qa[2])}, {v(Qa[3])}
    v_swap_b32 {v(Qa[2]+1)}, {v(Qa[3]+1)}
    s_mov_b64 exec, -1
    NOSWAP:
    v_pk_add_f32 {v(Sa[0],2)}, {v(Sa[0],2)}, {v(Sa[2],2)}
    v_pk_add_f32 {v(Sa[1],2)}, {v(Sa[1],2)}, {v(Sa[3],2)}
    v_pk_add_f32 {v(Qa[0],2)}, {v(Qa[0],2)}, {v(Qa[2],2)}
    v_pk_add_f32 {v(Qa[1],2)}, {v(Qa[1],2)}, {v(Qa[3],2)}
    v_add_f32 {v(Sa[0])}, {v(Sa[0])}, {v(Sa[0]+1)}
    v_add_f32 {v(Sa[1])}, {v(Sa[1])}, {v(Sa[1]+1)}
    v_add_f32 {v(Qa[0])}, {v(Qa[0])}, {v(Qa[0]+1)}
    v_add_f32 {v(Qa[1])}, {v(Qa[1])}, {v(Qa[1]+1)}
    v_permlane32_swap_b32 {v(Sa[0])}, {v(Sa[1])}
    v_permlane32_swap_b32 {v(Qa[0])}, {v(Qa[1])}
    v_add_f32 {v(Sa[0])}, {v(Sa[0])}, {v(Sa[1])}
    v_add_f32 {v(Qa[0])}, {v(Qa[0])}, {v(Qa[1])}
    v_permlane16_swap_b32 {v(Sa[0])}, {v(Qa[0])}
    s_cmp_eq_u32 {s(sFast)}, 0
    s_mov_b32 {s(sCnt)}, {BOUND}
    v_add_f32 {v(Sa[0])}, {v(Sa[0])}, {v(Qa[0])}
    s_cbranch_scc1 SSLOW
    buffer_store_dword {v(Sa[0])}, {v(vSout)}, {s(sW,4)}, {s(sSb)} offen
    ''')
    stamp(7)
    if OPT['aw'] & 1: A('s_waitcnt vmcnt(0)')
    A('SPOLL:')
    G4 = T + 16
    for j in range(4):
        A(f'buffer_load_dwordx4 {v(G4+4*j,4)}, {v(vSin)}, {s(sW,4)}, {s(sSb)} offen offset:{1024*j} sc1')
    A('s_waitcnt vmcnt(0)')
    maxall(range(G4, G4 + 16), vt, vt2)
    poll_tail('SPOLL', 2, vt)
    stamp(8)
    if OPT['stamps']:
        A(f's_sub_u32 {s(56+2*10)}, {BOUND}, {s(sCnt)}')
        A(f's_mul_i32 {s(sLn)}, {s(sLay)}, 12')
    stamp_flush(vStamp, 11, 8, sLane=sLn)
    e, f_, u1, u2 = G4, G4 + 1, G4 + 4, G4 + 5
    A(f'''
    v_pk_add_f32 {v(G4,2)}, {v(G4,2)}, {v(G4+4,2)}
    v_pk_add_f32 {v(G4+2,2)}, {v(G4+2,2)}, {v(G4+6,2)}
    v_pk_add_f32 {v(G4+8,2)}, {v(G4+8,2)}, {v(G4+12,2)}
    v_pk_add_f32 {v(G4+10,2)}, {v(G4+10,2)}, {v(G4+14,2)}
    v_pk_add_f32 {v(G4,2)}, {v(G4,2)}, {v(G4+8,2)}
    v_pk_add_f32 {v(G4+2,2)}, {v(G4+2,2)}, {v(G4+10,2)}
    v_permlane32_swap_b32 {v(G4)}, {v(G4+2)}
    v_permlane32_swap_b32 {v(G4+1)}, {v(G4+3)}
    v_pk_add_f32 {v(G4,2)}, {v(G4,2)}, {v(G4+2,2)}
    v_mov_b64 {v(u1,2)}, {v(G4,2)}
    v_permlane16_swap_b32 {v(e)}, {v(u1)}
    v_permlane16_swap_b32 {v(f_)}, {v(u2)}
    v_pk_add_f32 {v(G4,2)}, {v(G4,2)}, {v(u1,2)}
    v_mul_f32 {v(e)}, {f32(1/1024)}, {v(e)}
    v_mul_f32 {v(f_)}, {f32(1/1024)}, {v(f_)}
    v_fma_f32 {v(f_)}, -{v(e)}, {v(e)}, {v(f_)}
    v_max_f32 {v(f_)}, 0, {v(f_)}
    v_add_f32 {v(f_)}, {f32(1e-5)}, {v(f_)}
    v_rsq_f32 {v(rR)}, {v(f_)}
    v_mul_f32 {v(cR)}, {v(e)}, {v(rR)}
    v_mov_b32 {v(rM)}, {v(rR)}
    v_mov_b32 {v(cM)}, {v(cR)}
    v_permlane32_swap_b32 {v(rR)}, {v(rM)}
    v_permlane32_swap_b32 {v(cR)}, {v(cM)}
    s_add_u32 {s(sLay)}, {s(sLay)}, 1
    s_add_u32 {s(sXb)}, {s(sXb)}, {XSTR}
    s_add_u32 {s(sXb2)}, {s(sXb2)}, {XSTR}
    s_add_u32 {s(sSb)}, {s(sSb)}, {SSTR}
    s_branch LOOP
    ''')

    A('FINAL:')
    Pk = T
    A(f'''
    s_mov_b32 {s(t3)}, {FB}
    s_cmp_eq_u32 {s(sFast)}, 0
    s_cbranch_scc1 FSLOW
    ''')
    def fstore(m):
        for k in range(4):
            for r in range(4):
                A(f'v_cvt_pk_bf16_f32 {v(Pk+4*k+r)}, {v(X[k]+2*r)}, {v(X[k]+2*r+1)}')
            A(f'buffer_store_dwordx4 {v(Pk+4*k,4)}, {v(vFout)}, {s(sW,4)}, {s(t3)} offen offset:{256*k}{m}')
    fstore('')
    A('F_DONE:')
    vLin, vRep, vMir, vA0, vC0, vD0 = [T + 32 + j for j in range(6)]
    relayout_addrs(vL, sBase, vLin, vRep, vMir, vA0, vC0, vD0, vt, vt2, sm)
    stamp(7)
    Fd = T + 16
    A(f"""
    s_cmp_eq_u32 {s(sR)}, 0
    s_cselect_b32 {s(t0)}, 256, 0
    s_add_u32 {s(sFo2)}, {s(t0)}, {FB+512}
    s_sub_u32 {s(sFo3)}, {FB+768}, {s(t0)}
    v_lshlrev_b32 {v(vXin)}, 4, {v(vL)}
    s_mov_b32 {s(sCnt)}, {BOUND}
    """)
    if OPT['aw'] & 2: A('s_waitcnt vmcnt(0)')
    if OPT['fp']: A(f's_sleep {OPT["fp"]}')
    stamp(13)
    A(f"""
    FPOLL:
    buffer_load_dwordx4 {v(Fd,4)}, {v(vFin)}, {s(sW,4)}, {s(t3)} offen sc1
    buffer_load_dwordx4 {v(Fd+4,4)}, {v(vFin)}, {s(sW,4)}, {s(t3)} offen offset:256 sc1
    buffer_load_dwordx4 {v(Fd+8,4)}, {v(vFin)}, {s(sW,4)}, {s(sFo2)} offen sc1
    buffer_load_dwordx4 {v(Fd+12,4)}, {v(vFin)}, {s(sW,4)}, {s(sFo3)} offen sc1
    s_waitcnt vmcnt(0)
    """)
    maxall(range(Fd, Fd + 16), vt, vt2)
    poll_tail('FPOLL', 4, vt)
    stamp(8)
    if OPT['stamps']: A(f's_sub_u32 {s(56+2*10)}, {BOUND}, {s(sCnt)}')
    for k in range(4):
        for c in range(8):
            ad, off = slot_addr(k, c, vRep, vMir, vA0, vC0, vD0)
            A(f'ds_write_b16{"_d16_hi" if c & 1 else ""} {v(ad)}, {v(Fd+4*k+c//2)} offset:{off}')
    A('s_waitcnt lgkmcnt(0)')
    for j, off in enumerate((0, 1088, ROWB, ROWB + 1088)):
        A(f'ds_read_b128 {v(Pk+4*j,4)}, {v(vLin)} offset:{off}')
    for j in range(4):
        A(f's_waitcnt lgkmcnt({3-j})')
        A(f'buffer_store_dwordx4 {v(Pk+4*j,4)}, {v(vXin)}, {s(sO,4)}, {s(sR if j < 2 else sM)} offen offset:{1024*(j&1)}' + ['', ' sc1', ' nt', ' sc0 sc1'][OPT['om']])
    stamp(11)
    if OPT['stamps']: A('s_waitcnt vmcnt(0)')
    stamp(12)
    stamp_flush(vStamp, 14, 44)
    stamp_store(vStamp, vL, sW, 1, sWv, t0, t1, vt)
    if OPT['spin']:
        A(f"""
        SPIN:
        s_memrealtime s[90:91]
        s_waitcnt lgkmcnt(0)
        s_sub_u32 {s(t0)}, s90, s88
        s_cmp_lt_u32 {s(t0)}, {OPT['spin']}
        s_cbranch_scc1 SPIN
        """)
    if OPT['stamps'] == 2:
        sel = [None, 0, 0, 2, 3, 4, 6, 8+2, 8+4, 8+8, 20+4, 20+8, 32+8, 44+4, 44+8, 44+12]
        A(f'v_mov_b32 {v(vt)}, 0')
        for k, src in enumerate(sel):
            if src is None: continue
            A(f'v_readlane_b32 {s(t0)}, {v(vStamp)}, {src}')
            if k == 1: A(f's_not_b32 {s(t0)}, {s(t0)}')
            A(f'v_writelane_b32 {v(vt)}, {s(t0)}, {k}')
        A(f"""
        v_lshlrev_b32 {v(vt2)}, 2, {v(vL)}
        s_mov_b64 exec, 0xffff
        buffer_atomic_umax {v(vt)}, {v(vt2)}, {s(sD,4)}, 0 offen
        s_mov_b64 exec, -1
        """)
    A(f'''
    s_lshl_b32 {s(t0)}, {s(sN)}, 2
    s_or_b32 {s(t0)}, {s(t0)}, {s(sWv)}
    s_cmp_lg_u32 {s(t0)}, 0
    s_cbranch_scc1 NOTAG
    v_mov_b32 {v(vt)}, {s(sT)}
    v_mov_b32 {v(vt2)}, {EOFF}
    s_mov_b64 exec, 1
    buffer_store_dword {v(vt)}, {v(vt2)}, {s(sW,4)}, 0 offen sc1
    NOTAG:
    s_cmp_eq_u32 {s(sErr)}, 0
    s_cbranch_scc1 MAIN_END
    v_mov_b32 {v(vt)}, {s(sErr)}
    v_mov_b32 {v(vt2)}, 0
    s_mov_b64 exec, 1
    buffer_atomic_or {v(vt)}, {v(vt2)}, {s(sD,4)}, 0 offen
    MAIN_END:
    s_endpgm
    ''')

    A('GCOL0:')
    cls = T + 15
    B0 = T + 32
    for cb in range(2):
        A(f'''
        v_lshrrev_b32 {v(a0)}, 1, {v(vI)}
        v_cvt_f32_u32 {v(fr)}, {v(a0)}
        v_mul_f32 {v(fr)}, {f32(1/32)}, {v(fr)}
        v_add_f32 {v(fr)}, {'0' if cb == 0 else f32(0.25)}, {v(fr)}
        v_and_b32 {v(a1)}, 1, {v(vI)}
        v_lshrrev_b32 {v(cls)}, 1, {v(vG)}
        v_cmp_eq_u32 vcc, {v(a1)}, {v(cls)}
        v_mov_b32 {v(a0)}, {f32(math.sqrt(0.5))}
        v_cndmask_b32 {v(amp)}, 0, {v(a0)}, vcc
        v_mov_b32 {v(ph)}, {f32(0.125)}
        v_mov_b32 {v(voff)}, 0
        ''')
        if cb == 0:
            A(f'''
            s_mov_b32 exec_lo, 0x00030003
            s_mov_b32 exec_hi, 0x00030003
            v_mov_b32 {v(fr)}, 0.5
            v_cndmask_b32 {v(amp)}, 0.5, 0, vcc
            v_cvt_f32_u32 {v(ph)}, {v(cls)}
            v_mul_f32 {v(voff)}, {v(ph)}, {v(amp)}
            v_mul_f32 {v(ph)}, {f32(0.25)}, {v(ph)}
            s_mov_b64 exec, -1
            ''')
        A(f'''
        ; d0/32 = 8 (g&1) + 0.5 (g>>1)
        v_and_b32 {v(a0)}, 1, {v(vG)}
        v_lshl_add_u32 {v(a0)}, {v(a0)}, 4, {v(cls)}
        v_cvt_f32_u32 {v(a0)}, {v(a0)}
        v_mul_f32 {v(a0)}, 0.5, {v(a0)}
        v_mul_f32 {v(a0)}, {v(a0)}, {v(fr)}
        v_cmp_eq_u32 {s(sG0,2)}, 0, {v(vG)}
        v_mul_f32 {v(Z)}, {f32(16.0)}, {v(fr)}
        v_cndmask_b32 {v(Z)}, 0, {v(Z)}, {s(sG0,2)}
        v_sub_f32 {v(arg)}, {v(a0)}, {v(ph)}
        v_add_f32 {v(arg2)}, {v(arg)}, {v(Z)}
        v_cos_f32 {v(B0)}, {v(arg)}
        ''')
        cos_row(Ga + 4 * cb, fr, scaled=True, first=arg2)
        A(f'''
        v_fma_f32 {v(B0)}, {v(B0)}, {v(amp)}, {v(voff)}
        v_cvt_pk_f16_f32 {v(B0)}, {v(B0)}, {v(B0)}
        s_mov_b32 {s(t0)}, 0xffff
        v_bfi_b32 {v(Ga2+4*cb)}, {s(t0)}, {v(B0)}, {v(Ga+4*cb)}
        v_mov_b32 {v(Ga2+4*cb+1)}, {v(Ga+4*cb+1)}
        v_mov_b64 {v(Ga2+4*cb+2,2)}, {v(Ga+4*cb+2,2)}
        v_sub_f32 {v(arg)}, 0, {v(a0)}
        v_sub_f32 {v(arg)}, {v(arg)}, {v(ph)}
        v_sub_f32 {v(stp)}, 0, {v(fr)}
        v_add_f32 {v(arg2)}, {v(arg)}, {v(Z)}
        v_cos_f32 {v(B0)}, {v(arg2)}
        ''')
        cos_row(Gb + 4 * cb, stp, scaled=True)
        A(f'''
        v_fma_f32 {v(B0)}, {v(B0)}, {v(amp)}, {v(voff)}
        v_cvt_pk_f16_f32 {v(B0)}, {v(B0)}, {v(B0)}
        v_bfi_b32 {v(Gb2+4*cb)}, {s(t0)}, {v(B0)}, {v(Gb+4*cb)}
        v_mov_b32 {v(Gb2+4*cb+1)}, {v(Gb+4*cb+1)}
        v_mov_b64 {v(Gb2+4*cb+2,2)}, {v(Gb+4*cb+2,2)}
        ''')
    A('s_branch GCOL_DONE')
    A(f'''
    GROW0:
    v_cmp_le_u32 vcc, 2, {v(vG)}
    v_sub_f32 {v(stp)}, 0, {v(fr)}
    v_cndmask_b32 {v(stp)}, {v(fr)}, {v(stp)}, vcc
    v_sub_f32 {v(a0)}, {f32(48.0)}, {v(gf)}
    v_cndmask_b32 {v(a0)}, {v(gf)}, {v(a0)}, vcc
    v_fma_f32 {v(arg)}, {v(fr)}, {v(a0)}, -{v(ph)}
    v_cmp_eq_u32 {s(sG0,2)}, 2, {v(vG)}
    v_mul_f32 {v(Z)}, {f32(16.0)}, {v(fr)}
    v_cndmask_b32 {v(Z)}, 0, {v(Z)}, {s(sG0,2)}
    v_sub_f32 {v(arg2)}, {v(arg)}, {v(Z)}
    ''')
    cos_row(GR[0], stp, first=arg2)
    A(f'''
    v_sub_f32 {v(a0)}, {f32(47.0)}, {v(gf)}
    v_cndmask_b32 {v(a0)}, {v(gf)}, {v(a0)}, vcc
    v_fma_f32 {v(arg)}, {v(fr)}, {v(a0)}, -{v(ph)}
    ''')
    cos_row(GR[2], stp)
    A('s_branch GROW_DONE')
    A('COL0:')
    for r in range(4):
        A(f'v_cndmask_b32 {v(PC+r)}, {v(PB+r)}, {v(PA+r)}, {s(sRho,2)}')
        A(f'v_cndmask_b32 {v(PD+r)}, {v(PA+r)}, {v(PB+r)}, {s(sRho,2)}')
    z = T + 64
    A(f'''
    s_cmp_lg_u32 {s(sSpec)}, 0
    s_cbranch_scc1 COL0B
    s_mov_b64 exec, 1
    v_fma_f32 {v(z)}, {v(X[0])}, {v(rR)}, -{v(cR)}
    v_fma_f32 {v(z+1)}, {v(X[3])}, {v(rR)}, -{v(cR)}
    v_fma_f32 {v(z+2)}, {v(X[1])}, {v(rM)}, -{v(cM)}
    v_fma_f32 {v(z+3)}, {v(X[2])}, {v(rM)}, -{v(cM)}
    v_add_f32 {v(z)}, {v(z)}, {v(z)}
    v_add_f32 {v(z+1)}, {v(z+1)}, {v(z+1)}
    v_add_f32 {v(z+2)}, {v(z+2)}, {v(z+2)}
    v_add_f32 {v(z+3)}, {v(z+3)}, {v(z+3)}
    v_cvt_pk_f16_f32 {v(PA)}, {v(z)}, {v(pA+1)}
    v_cvt_pk_f16_f32 {v(PC)}, {v(z+1)}, {v(pA+1)}
    v_cvt_pk_f16_f32 {v(PB)}, {v(z+2)}, {v(pB+1)}
    v_cvt_pk_f16_f32 {v(PD)}, {v(z+3)}, {v(pB+1)}
    s_mov_b64 exec, -1
    COL0B:
    ''')
    for cb in range(2): A(f'{MF} {v(W+4*cb,4)}, {v(PA,4)}, {v(Ga+4*cb,4)}, 0')
    for cb in range(2): A(f'{MF} {v(W+8+4*cb,4)}, {v(PB,4)}, {v(Ga2+4*cb,4)}, 0')
    for cb in range(2): A(f'{MF} {v(W+4*cb,4)}, {v(PC,4)}, {v(Gb+4*cb,4)}, {v(W+4*cb,4)}')
    for cb in range(2): A(f'{MF} {v(W+8+4*cb,4)}, {v(PD,4)}, {v(Gb2+4*cb,4)}, {v(W+8+4*cb,4)}')
    A('s_branch COL_DONE')
    A(f"""
    CLRF:
    s_cmp_eq_u32 {s(sLay)}, 3
    s_cbranch_scc1 CLR_DONE
    s_lshl_b32 {s(t0)}, {s(sTau)}, 12
    s_add_u32 {s(t0)}, {s(t0)}, {s(sGb)}
    s_add_u32 {s(t0)}, {s(t0)}, {FB}
    v_lshlrev_b32 {v(vt)}, 4, {v(vL)}
    """)
    for k in range(4):
        A(f'buffer_store_dwordx4 {v(vOne,4)}, {v(vt)}, {s(sW,4)}, {s(t0)} offen offset:{1024*k} sc1')
    A('s_branch CLR_DONE')
    A(f'''
    PTOUCH:
    s_lshl_b32 {s(t0)}, {s(sL)}, 10
    s_min_u32 {s(t2)}, {s(sWv)}, 2
    s_mul_i32 {s(t2)}, {s(t2)}, {SSTR}
    s_add_u32 {s(t2)}, {s(t2)}, {s(t0)}
    s_add_u32 {s(t2)}, {s(t2)}, {SB}
    s_lshl_b32 {s(t0)}, {s(sTau)}, 12
    s_add_u32 {s(t0)}, {s(t0)}, {FB}
    s_cmp_eq_u32 {s(sLay)}, 0
    s_cselect_b32 {s(t0)}, {s(t2)}, {s(t0)}
    s_cselect_b32 exec_lo, 0xffff, -1
    s_cselect_b32 exec_hi, 0, -1
    s_add_u32 {s(t0)}, {s(t0)}, {s(sGb)}
    buffer_load_dword {v(vDum)}, {v(vPt)}, {s(sW,4)}, {s(t0)} offen
    s_mov_b64 exec, -1
    s_branch PT_DONE
    ''')
    A(f'''
    XCHK:
    buffer_load_dwordx2 {v(vXf,2)}, {v(vXa)}, {s(sW,4)}, {s(sXf)} offen sc1
    s_waitcnt vmcnt(0)
    v_cmp_ne_u32 vcc, {s(sT)}, {v(vXf)}
    s_cbranch_vccz XOK
    s_sub_u32 {s(sCnt)}, {s(sCnt)}, 1
    s_cbranch_scc0 XCHK
    s_or_b32 {s(sErr)}, {s(sErr)}, 32
    HSLOW:
    s_mov_b32 {s(sFast)}, 0
    s_mov_b32 {s(sPm)}, 0
    s_add_u32 {s(sHa)}, {s(sHa)}, {H0S - H0B}
    s_add_u32 {s(sHb)}, {s(sHb)}, {H0S - H0B}
    s_add_u32 {s(sHin)}, {s(sHin)}, {H0S - H0B}
    s_mov_b32 {s(sCnt)}, {BOUND}
    ''')
    for h in range(2):
        for t in range(3): hstore(h, t, ' sc1')
    A(f'''
    s_waitcnt vmcnt(0)
    s_branch HPOLL
    SSLOW:
    buffer_store_dword {v(Sa[0])}, {v(vSout)}, {s(sW,4)}, {s(sSb)} offen sc1
    s_waitcnt vmcnt(0)
    s_branch SPOLL
    FSLOW:
    ''')
    fstore(' sc1')
    A('''
    s_waitcnt vmcnt(0)
    s_branch F_DONE
    ''')
    A(f"""
    FLAGS:
    s_mov_b32 {s(sCnt)}, {BOUND}
    s_waitcnt vmcnt(4)
    FLPOLL:
    v_cmp_ne_u32 vcc, {s(sT)}, {v(vFlagD)}
    s_cbranch_vccz CLR_DONE
    buffer_load_dword {v(vFlagD)}, {v(vFlag)}, {s(sW,4)}, {s(sFl)} offen sc1
    s_sub_u32 {s(sCnt)}, {s(sCnt)}, 1
    s_waitcnt vmcnt(0)
    s_cbranch_scc0 FLPOLL
    s_or_b32 {s(sErr)}, {s(sErr)}, 16
    s_branch CLR_DONE
    """)
    A('HSPEC:')
    for r in range(4):
        A(f'v_cndmask_b32 {v(BVo+r)}, 0, {v(BVs+r)}, {s(sRho,2)}')
        A(f'v_cndmask_b32 {v(BVs+r)}, {v(BVs+r)}, 0, {s(sRho,2)}')
    for mb in range(2): A(f'{MF} {v(CC+4*mb,4)}, {v(Hc+4*mb,4)}, {v(BVc,4)}, 0')
    for mb in range(2): A(f'{MF} {v(SS+4*mb,4)}, {v(Hs+4*mb,4)}, {v(BVs,4)}, 0')
    for mb in range(2): A(f'{MF} {v(SS+4*mb,4)}, {v(Hc+4*mb,4)}, {v(BVo,4)}, {v(SS+4*mb,4)}')
    A('s_branch H_DONE')
    A('EHGEN:')
    tf = T + 0; t32 = T + 1; an = T + 2; cs = T + 4; sn = T + 5; e0 = T + 6; e1 = T + 7; gfl = T + 8; an1 = T + 9; an2 = T + 10
    sgn = T + 11
    A(f'''
    s_lshr_b32 {s(t0)}, {s(sWv)}, 1
    s_and_b32 {s(t1)}, {s(sWv)}, 1
    s_lshl_b32 {s(t2)}, {s(t0)}, 5
    s_add_u32 {s(t2)}, {s(t2)}, {s(sK)}
    s_lshl_b32 {s(t3)}, {s(t1)}, 10
    s_add_u32 {s(t2)}, {s(t2)}, {s(t3)}
    s_add_u32 {s(t3)}, {s(t3)}, 16
    s_lshl_b32 {s(t1)}, {s(t1)}, 5
    s_cmp_eq_u32 {s(t0)}, 1
    s_cselect_b32 {s(t1)}, {s(t3)}, {s(t1)}
    s_cselect_b32 {s(sEA)}, 0, {f32(1/16)}
    s_cselect_b32 {s(sEC)}, {f32(1/16)}, 0
    s_cmp_eq_u32 {s(sK)}, 0
    s_cselect_b32 {s(t2)}, {s(t1)}, {s(t2)}
    s_cselect_b32 {s(sEA)}, {s(sEA)}, {f32(1/16)}
    s_cselect_b32 {s(sEC)}, {s(sEC)}, 0
    s_cselect_b32 {s(sEB)}, 0, {f32(-1/16)}
    s_cselect_b32 {s(sEnB)}, 0, {f32(1/16)}
    v_lshlrev_b32 {v(tf)}, 6, {v(vI)}
    v_add_u32 {v(tf)}, {s(t2)}, {v(tf)}
    v_cvt_f32_u32 {v(tf)}, {v(tf)}
    v_cvt_f32_u32 {v(gfl)}, {v(vG)}
    v_mul_f32 {v(tf)}, {f32(1/2048)}, {v(tf)}
    v_mul_f32 {v(t32)}, {f32(32.0)}, {v(tf)}
    v_cmp_eq_u32 {s(sG0,2)}, 0, {v(vG)}
    s_mov_b32 {s(t0)}, 0x80008000
    ''')
    def e_pair(ang, dc, ds_):
        A(f'''
        v_cos_f32 {v(cs)}, {v(ang)}
        v_sin_f32 {v(sn)}, {v(ang)}
        v_mul_f32 {v(e0)}, {s(sEA)}, {v(cs)}
        v_mul_f32 {v(e1)}, {s(sEC)}, {v(cs)}
        v_fmac_f32 {v(e1)}, {s(sEB)}, {v(sn)}
        v_cvt_pk_f16_f32 {v(dc)}, {v(e0)}, {v(e1)}
        v_mul_f32 {v(e0)}, {s(sEA)}, {v(sn)}
        v_mul_f32 {v(e1)}, {s(sEC)}, {v(sn)}
        v_fmac_f32 {v(e1)}, {s(sEnB)}, {v(cs)}
        v_cvt_pk_f16_f32 {v(ds_)}, {v(e0)}, {v(e1)}
        ''')
    for q in range(4):
        if q == 0:
            A(f'''
            v_mul_f32 {v(an)}, {v(tf)}, {v(gfl)}
            v_mul_f32 {v(an1)}, 0.5, {v(t32)}
            v_cndmask_b32 {v(an1)}, {v(t32)}, {v(an1)}, {s(sG0,2)}
            v_add_f32 {v(an1)}, {v(an1)}, {v(an)}
            v_cndmask_b32 {v(an2)}, {v(an)}, {v(t32)}, {s(sG0,2)}
            v_mov_b32 {v(sgn)}, {s(t0)}
            v_cndmask_b32 {v(sgn)}, {v(sgn)}, 0, {s(sG0,2)}
            ''')
            e_pair(an, Ec, Es); e_pair(an1, Ec + 1, Es + 1); e_pair(an2, Ec + 2, Es + 2)
            A(f'''
            v_xor_b32 {v(Es+2)}, {v(sgn)}, {v(Es+2)}
            v_mov_b32 {v(Ec+3)}, {v(Ec+1)}
            v_xor_b32 {v(Es+3)}, {s(t0)}, {v(Es+1)}
            ''')
        else:
            A(f'''
            v_fmac_f32 {v(an)}, 4.0, {v(tf)}
            v_add_f32 {v(an1)}, {v(an)}, {v(t32)}
            ''')
            e_pair(an, Ec + 4 * q, Es + 4 * q); e_pair(an1, Ec + 4 * q + 1, Es + 4 * q + 1)
            A(f'''
            v_mov_b64 {v(Ec+4*q+2,2)}, {v(Ec+4*q,2)}
            v_xor_b32 {v(Es+4*q+2)}, {s(t0)}, {v(Es+4*q)}
            v_xor_b32 {v(Es+4*q+3)}, {s(t0)}, {v(Es+4*q+1)}
            ''')
    A(f'''
    s_and_b32 exec_lo, {s(sRho)}, 0x00010000
    s_mov_b32 exec_hi, exec_lo
    ''')
    for r in range(16):
        A(f'v_mov_b32 {v(Ec+r)}, 0')
        A(f'v_mov_b32 {v(Es+r)}, 0xac00')
    A('s_mov_b64 exec, -1')
    hA = T + 12; hB = T + 13; hC = T + 14; hO = T + 15; ef = T + 16; ls = T + 18; mu = T + 22; sg = T + 23; hnB = T + 24
    A(f'''
    v_lshrrev_b32 {v(mu)}, 2, {v(vI)}
    v_lshlrev_b32 {v(mu)}, 3, {v(mu)}
    v_and_b32 {v(e0)}, 3, {v(vI)}
    v_add_u32 {v(mu)}, {v(mu)}, {v(e0)}
    v_lshlrev_b32 {v(ef)}, 5, {v(mu)}
    v_add_u32 {v(ef)}, {s(sL)}, {v(ef)}
    v_add_u32 {v(ef+1)}, 128, {v(ef)}
    v_mov_b32 {v(hA)}, {f32(16.0)}
    v_mov_b32 {v(hB)}, {f32(-16.0)}
    v_mov_b32 {v(hC)}, 0
    v_mov_b32 {v(hO)}, 0
    s_cmp_eq_u32 {s(sL)}, 0
    s_cselect_b32 exec_lo, 0xff00ff00, 0
    s_mov_b32 exec_hi, exec_lo
    v_subrev_u32 {v(ef)}, {512-16}, {v(ef)}
    v_subrev_u32 {v(ef+1)}, {512-16}, {v(ef+1)}
    v_mov_b32 {v(hA)}, 0
    v_mov_b32 {v(hB)}, 0
    v_mov_b32 {v(hC)}, {f32(16.0)}
    s_cselect_b32 exec_lo, 0x00ff00ff, 0
    s_mov_b32 exec_hi, exec_lo
    v_mov_b32 {v(hB)}, 0
    v_mov_b32 {v(hO)}, {f32(-16.0)}
    s_cselect_b32 exec_lo, 0x00010001, 0
    s_mov_b32 exec_hi, exec_lo
    v_mov_b32 {v(ef)}, 512
    s_mov_b64 exec, -1
    v_cvt_f32_u32 {v(ef)}, {v(ef)}
    v_cvt_f32_u32 {v(ef+1)}, {v(ef+1)}
    v_sub_f32 {v(hnB)}, 0, {v(hB)}
    v_mul_f32 {v(ef)}, {f32(1/1024)}, {v(ef)}
    v_mul_f32 {v(ef+1)}, {f32(1/1024)}, {v(ef+1)}
    v_add_f32 {v(ls)}, {v(gfl)}, {v(gfl)}
    v_add_f32 {v(ls+1)}, 1.0, {v(ls)}
    v_add_f32 {v(ls+2)}, {f32(8.0)}, {v(ls)}
    v_add_f32 {v(ls+3)}, {f32(9.0)}, {v(ls)}
    ''')
    for mb in range(2):
        for d in range(4):
            A(f'''
            v_mul_f32 {v(an)}, {v(ef+mb)}, {v(ls+d)}
            v_cos_f32 {v(cs)}, {v(an)}
            v_sin_f32 {v(sn)}, {v(an)}
            v_fma_f32 {v(e0)}, {v(hA)}, {v(cs)}, {v(hO)}
            v_mul_f32 {v(e1)}, {v(hC)}, {v(cs)}
            v_fmac_f32 {v(e1)}, {v(hB)}, {v(sn)}
            v_cvt_pk_f16_f32 {v(Hc+4*mb+d)}, {v(e0)}, {v(e1)}
            v_mul_f32 {v(e0)}, {v(hA)}, {v(sn)}
            v_mul_f32 {v(e1)}, {v(hC)}, {v(sn)}
            v_fmac_f32 {v(e1)}, {v(hnB)}, {v(cs)}
            v_cvt_pk_f16_f32 {v(Hs+4*mb+d)}, {v(e0)}, {v(e1)}
            ''')
    A(f'''
    v_and_b32 {v(sg)}, 1, {v(vI)}
    v_cvt_f32_u32 {v(sg)}, {v(sg)}
    v_fma_f32 {v(sg)}, {v(sg)}, -2.0, 1.0
    v_add_f32 {v(e0)}, {v(hnB)}, {v(hO)}
    v_fma_f32 {v(e0)}, -{v(hO)}, {v(sg)}, {v(e0)}
    v_fma_f32 {v(e1)}, {v(hnB)}, {v(sg)}, {v(hC)}
    v_fma_f32 {v(cs)}, {v(hC)}, {v(sg)}, {v(hnB)}
    v_mul_f32 {v(sn)}, {v(hnB)}, {v(sg)}
    s_mov_b64 exec, 0xffff
    v_cvt_pk_f16_f32 {v(Hc)}, {v(e0)}, {v(e1)}
    v_cvt_pk_f16_f32 {v(Hc+4)}, {v(e0)}, {v(e1)}
    v_cvt_pk_f16_f32 {v(Hs)}, {v(cs)}, {v(sn)}
    v_cvt_pk_f16_f32 {v(Hs+4)}, {v(cs)}, {v(sn)}
    s_mov_b64 exec, -1
    ''')
    if OPT['debug'] >= 2:
        dump(10, Ga, 16); dump(11, Gb, 16); dump(12, GR[0], 12); dump(13, Ec, 16); dump(14, Es, 16); dump(15, Hc, 16)
    A('s_branch EH_DONE')
    return V.hi

def descriptor(name, nv):
    nv = (nv + 7) // 8 * 8
    return f'''.section .rodata,"a"
.p2align 6
.amdhsa_kernel {name}
  .amdhsa_next_free_vgpr {nv}
  .amdhsa_next_free_sgpr 96
  .amdhsa_accum_offset {nv}
  .amdhsa_group_segment_fixed_size 0
  .amdhsa_kernarg_size 104
  .amdhsa_user_sgpr_count 2
  .amdhsa_user_sgpr_kernarg_segment_ptr 1
  .amdhsa_system_sgpr_workgroup_id_x 1
.end_amdhsa_kernel
'''

hdr = open('cdna_kernels/' + NAME + '.s.ref').read().split('; Override launch')[0]
nv2 = gen_main()
npad = A.pad()
out = hdr
out += f'; @launch grid=(256,1,1) block=(256,1,1) lds={LDS_MAIN}\n'
out += '.amdgcn_target "amdgcn-amd-amdhsa--gfx950"\n.text\n'
out += A.text()
out += descriptor(MAIN, nv2)
open(sys.argv[1], 'w').write(out)
print('vgprs', nv2, 'pad states', npad, 'lines', out.count('\n'))
```

```python
import sys, math
sys.path.insert(0, 'work')
from asmlib import *

NAME = 'interleave_layers__spectral_fnet__spectral_fnet__prompt'
MAIN = NAME + '_kernel'
WS_SIZE = 0x2000000
GSH = 21
H0B, FLG, EOFF, SB, XB, FB, DUMPB = 0, 0x60000, 0x68000, 0x70000, 0x80000, 0x100000, 0x2000000
SSTR, XSTR = 0x4000, 0x20000
HWG, HSL = 24576, 384
LDS_W, LDS_Q, LDS_R = 0, 8192, 16384
ROWB = 2176
LDS_MAIN = LDS_R + 4 * 2 * ROWB
BOUND = 20000
OPT = dict(debug=0, stamps=0, xp=0, sl=0, fp=0, hp=0, spin=0, om=0, slow=0, aw=3, mix=0, pt=22, ps=64, xw=0, hs=128, px=1, rb=0)
XF = FLG + 0x800
H0S = 0x140000
for a in sys.argv[2:]:
    k, val = a.split('='); OPT[k] = int(val)

if OPT['debug']: WS_SIZE = 0x10000000
A = Asm()

def wg_indices(sK, sL, sN, sT):
    if OPT['mix']:
        A(f'''
        s_lshr_b32 {s(sK)}, s2, 4
        s_and_b32 {s(sL)}, s2, 15
        s_mov_b32 {s(sN)}, s2
        ''')
        return
    A(f'''
    s_and_b32 {s(sK)}, s2, 7
    s_lshl_b32 {s(sK)}, {s(sK)}, 1
    s_bfe_u32 {s(sT)}, s2, 0x10003
    s_or_b32 {s(sK)}, {s(sK)}, {s(sT)}
    s_lshr_b32 {s(sL)}, s2, 4
    s_lshl_b32 {s(sN)}, {s(sK)}, 4
    s_or_b32 {s(sN)}, {s(sN)}, {s(sL)}
    ''')

def rows_scalar(sK, sTau, sR, sM, t0, t1):
    A(f'''
    s_lshr_b32 {s(t0)}, {s(sTau)}, 5
    s_and_b32 {s(t1)}, {s(sTau)}, 31
    s_lshl_b32 {s(sR)}, {s(t1)}, 6
    s_lshl_b32 {s(sM)}, {s(t0)}, 5
    s_add_u32 {s(sM)}, {s(sM)}, {s(sK)}
    s_cmp_ge_u32 {s(t1)}, 16
    s_cselect_b32 {s(t1)}, -992, 0
    s_cmp_eq_u32 {s(t0)}, 1
    s_cselect_b32 {s(t1)}, 16, {s(t1)}
    s_cmp_eq_u32 {s(sK)}, 0
    s_cselect_b32 {s(sM)}, {s(t1)}, {s(sM)}
    s_add_u32 {s(sR)}, {s(sR)}, {s(sM)}
    s_sub_u32 {s(sM)}, 2048, {s(sR)}
    s_cmp_eq_u32 {s(sR)}, 0
    s_cselect_b32 {s(sM)}, 1024, {s(sM)}
    s_lshl_b32 {s(sR)}, {s(sR)}, 11
    s_lshl_b32 {s(sM)}, {s(sM)}, 11
    ''')

def relayout_addrs(vL, sBase, vLin, vRep, vMir, vA0, vC0, vD0, t0, t1, sm):
    def pos(dst, col, tmp):
        A(f'''
        v_lshrrev_b32 {v(tmp)}, 8, {v(col)}
        v_lshlrev_b32 {v(tmp)}, 5, {v(tmp)}
        v_lshl_add_u32 {v(dst)}, {v(col)}, 1, {v(tmp)}
        v_add_u32 {v(dst)}, {s(sBase)}, {v(dst)}
        ''')
    A(f'''
    v_lshrrev_b32 {v(t0)}, 5, {v(vL)}
    v_lshlrev_b32 {v(t0)}, 5, {v(t0)}
    v_lshl_add_u32 {v(vLin)}, {v(vL)}, 4, {v(t0)}
    v_add_u32 {v(vLin)}, {s(sBase)}, {v(vLin)}
    v_and_b32 {v(t0)}, 3, {v(vL)}
    v_lshlrev_b32 {v(t0)}, 8, {v(t0)}
    v_lshrrev_b32 {v(t1)}, 2, {v(vL)}
    v_add_u32 {v(vA0)}, {v(t0)}, {v(t1)}
    v_and_b32 {v(t0)}, 1, {v(vL)}
    v_lshlrev_b32 {v(t0)}, 8, {v(t0)}
    v_and_b32 {v(t1)}, 2, {v(vL)}
    v_lshl_add_u32 {v(t0)}, {v(t1)}, 3, {v(t0)}
    v_cmp_gt_u32 {s(sm,2)}, 4, {v(vL)}
    v_cndmask_b32 {v(vA0)}, {v(vA0)}, {v(t0)}, {s(sm,2)}
    ''')
    pos(vRep, vA0, t0)
    A(f'v_sub_u32 {v(t1)}, {1024-224}, {v(vA0)}')
    pos(vMir, t1, t0)
    A(f'''
    v_sub_u32 {v(t1)}, 1024, {v(vA0)}
    v_and_b32 {v(t1)}, 1023, {v(t1)}
    ''')
    pos(vC0, t1, t0)
    A(f'''
    v_cmp_eq_u32 {s(sm,2)}, 0, {v(vL)}
    v_mov_b32 {v(t0)}, {2*512+64}
    v_cndmask_b32 {v(t0)}, 0, {v(t0)}, {s(sm,2)}
    v_add_u32 {v(vA0)}, {v(vRep)}, {v(t0)}
    v_add_u32 {v(vD0)}, {v(vC0)}, {v(t0)}
    ''')

def slot_addr(k, c, vRep, vMir, vA0, vC0, vD0):
    row = ROWB if k in (1, 3) else 0
    if c == 0:
        return [(vA0, 0), (vRep, ROWB), (vC0, 0), (vD0, ROWB)][k]
    if k < 2: return (vRep, row + 64 * c)
    return (vMir, row + 64 * (7 - c))

def red64x2(a, b, u):
    A(f'''
    v_permlane32_swap_b32 {v(a)}, {v(b)}
    v_add_f32 {v(a)}, {v(a)}, {v(b)}
    v_add_f32_dpp {v(a)}, {v(a)}, {v(a)} row_ror:8 row_mask:0xf bank_mask:0xf
    v_add_f32_dpp {v(a)}, {v(a)}, {v(a)} row_ror:4 row_mask:0xf bank_mask:0xf
    v_add_f32_dpp {v(a)}, {v(a)}, {v(a)} row_ror:2 row_mask:0xf bank_mask:0xf
    v_add_f32_dpp {v(a)}, {v(a)}, {v(a)} row_ror:1 row_mask:0xf bank_mask:0xf
    v_mov_b32 {v(u)}, {v(a)}
    v_permlane16_swap_b32 {v(a)}, {v(u)}
    v_add_f32 {v(a)}, {v(a)}, {v(u)}
    ''')

STB = 0x1c0000
def stamp(idx, base=56):
    if OPT['stamps']: A(f's_memrealtime {s(base+2*idx,2)}')
def stamp_flush(vS, n, lane0, base=56, sLane=None, tmp=None):
    if not OPT['stamps']: return
    A('s_waitcnt lgkmcnt(0)')
    for k in range(n):
        if sLane is None: A(f'v_writelane_b32 {v(vS)}, {s(base+2*k)}, {lane0+k}')
        else:
            A(f's_add_u32 m0, {s(sLane)}, {lane0+k}')
            A(f'v_writelane_b32 {v(vS)}, {s(base+2*k)}, m0')
def stamp_store(vS, vL, sW, which, sWv, t0, t1, vt):
    if not OPT['stamps']: return
    A(f'''
    s_mov_b64 exec, -1
    s_lshl_b32 {s(t0)}, s2, 10
    s_lshl_b32 {s(t1)}, {s(sWv)}, 8
    s_add_u32 {s(t0)}, {s(t0)}, {s(t1)}
    s_add_u32 {s(t0)}, {s(t0)}, {STB}
    v_lshlrev_b32 {v(vt)}, 2, {v(vL)}
    buffer_store_dword {v(vS)}, {v(vt)}, {s(sW,4)}, {s(t0)} offen
    ''')

def kernel_head(name):
    A.raw(f'.globl {name}\n.p2align 8\n.type {name},@function\n{name}:')
    A.raw('.KERNEL')

def gen_main():
    kernel_head(MAIN)
    V = Regs('v', 1, 256)
    sW, sO, sD, sX = 4, 8, 12, 84
    (sK, sL, sN, sWv, sLay, sXb, sXb2, sSb, sCnt, sErr, t0, t1, t2, t3, sSpec, sEA, sEB, sEC, sEnB, sTau, sR, sM,
     sBase, sFo2, sFo3, sT) = range(16, 42)
    sGb, sHa, sHb, sHin = 50, 51, 53, 55
    sFast, sFl, sXcc, sXf, sPm = 92, 93, 94, 95, 3
    sRho = 42
    sm = 44; sm2 = 46; sG0 = 48
    vL = V.alloc(); vI = V.alloc(); vG = V.alloc()
    vXin = V.alloc(); vXout = V.alloc(); vSout = V.alloc(); vSin = V.alloc(); vFout = V.alloc(); vFin = V.alloc()
    vWa1 = V.alloc(); vWa2 = V.alloc(); vWr = V.alloc(); vQw = V.alloc(); vQr = V.alloc()
    vDump = V.alloc(); vFlag = V.alloc(); vFlagD = V.alloc()
    vOne = V.alloc(4, 4)
    X = [V.alloc(8, 4) for _ in range(4)]
    Ga = V.alloc(8, 4); Ga2 = V.alloc(8, 4); Gb = V.alloc(8, 4); Gb2 = V.alloc(8, 4)
    GR = [V.alloc(4, 4) for _ in range(3)]
    Ec = V.alloc(16, 4); Es = V.alloc(16, 4); Hc = V.alloc(8, 4); Hs = V.alloc(8, 4)
    M2 = V.alloc(2, 2); M3 = V.alloc(2, 2); M4 = V.alloc(2, 2)
    St = V.alloc(4, 4)
    Ps = V.alloc(2, 2); Pc = V.alloc(2, 2)
    T = V.alloc(80, 4)

    def poll_tail(lab, code, vt):
        done = A.newlabel('DONE')
        A(f'''
        v_cmp_eq_u32 vcc, -1, {v(vt)}
        s_sub_u32 {s(sCnt)}, {s(sCnt)}, 1
        s_cbranch_vccz {done}
        s_cbranch_scc0 {lab}
        s_or_b32 {s(sErr)}, {s(sErr)}, {code}
        {done}:
        ''')
    def maxall(regs, vt, vt2):
        regs = list(regs)
        accs = [vt, vt2]; first = [True, True]; k = 0
        while regs:
            a = accs[k]
            if first[k]:
                if len(regs) >= 3: A(f'v_max3_u32 {v(a)}, {v(regs[0])}, {v(regs[1])}, {v(regs[2])}'); regs = regs[3:]
                else: raise Exception
                first[k] = False
            elif len(regs) >= 2: A(f'v_max3_u32 {v(a)}, {v(a)}, {v(regs[0])}, {v(regs[1])}'); regs = regs[2:]
            else: A(f'v_max_u32 {v(a)}, {v(a)}, {v(regs[0])}'); regs = regs[1:]
            k ^= 1
        A(f'v_max_u32 {v(vt)}, {v(vt)}, {v(vt2)}')
    sDbg = 52
    def dump(slot, reg, n, lay=0):
        if not OPT['debug']: return
        A(f's_mul_i32 {s(sDbg)}, {s(sLay)}, {lay * 0x400000}')
        A(f's_add_u32 {s(sDbg)}, {s(sDbg)}, {DUMPB + slot * 0x400000}')
        for r in range(0, n, 4):
            A(f'buffer_store_dwordx4 {v(reg+r,4)}, {v(vDump)}, {s(sW,4)}, {s(sDbg)} offen offset:{4*r}')
        A('s_waitcnt vmcnt(0)')
    vStamp = V.alloc()
    vXa = V.alloc(); vH = V.alloc(); vXf = V.alloc(2, 2); vPt = V.alloc(); vDum = V.alloc()

    sLn = 54
    stamp(0)
    if OPT['spin']: A('s_memrealtime s[88:89]')
    tau = T + 1; a0 = T + 2; a1 = T + 3
    vL16 = T + 16; vRow = X[0]
    A(f"""
    s_cmp_ge_u32 s2, 256
    s_cbranch_scc1 MAIN_END
    s_load_dwordx2 {s(sX,2)}, s[0:1], 0
    s_load_dwordx2 {s(sW,2)}, s[0:1], 96
    s_load_dwordx4 {s(sO,4)}, s[0:1], 80
    v_lshrrev_b32 {v(T)}, 6, v0
    v_and_b32 {v(vL)}, 63, v0
    v_readfirstlane_b32 {s(sWv)}, {v(T)}
    s_mov_b32 {s(sX+2)}, 0x400000
    s_mov_b32 {s(sX+3)}, 0x00020000
    s_mov_b32 {s(sW+2)}, {WS_SIZE}
    s_mov_b32 {s(sW+3)}, 0x00020000
    v_lshlrev_b32 {v(vL16)}, 4, {v(vL)}
    """)
    wg_indices(sK, sL, sN, t0)
    A(f"""
    s_lshl_b32 {s(sTau)}, {s(sL)}, 2
    s_add_u32 {s(sTau)}, {s(sTau)}, {s(sWv)}
    """)
    rows_scalar(sK, sTau, sR, sM, t0, t1)
    A(f"""
    v_and_b32 {v(vI)}, 15, v0
    v_lshrrev_b32 {v(vG)}, 4, {v(vL)}
    s_lshl_b32 {s(sGb)}, {s(sK)}, {GSH}
    s_waitcnt lgkmcnt(0)
    buffer_load_dwordx4 {v(vRow,4)}, {v(vL16)}, {s(sX,4)}, {s(sR)} offen
    buffer_load_dwordx4 {v(vRow+4,4)}, {v(vL16)}, {s(sX,4)}, {s(sR)} offen offset:1024
    buffer_load_dwordx4 {v(vRow+8,4)}, {v(vL16)}, {s(sX,4)}, {s(sM)} offen
    buffer_load_dwordx4 {v(vRow+12,4)}, {v(vL16)}, {s(sX,4)}, {s(sM)} offen offset:1024
    s_load_dword {s(sT)}, {s(sW,2)}, {EOFF}
    """)
    A(f"""
    s_mul_i32 {s(sHin)}, {s(sL)}, {HWG}
    s_add_u32 {s(sHin)}, {s(sHin)}, {s(sGb)}
    s_add_u32 {s(sHin)}, {s(sHin)}, {H0B}
    v_lshlrev_b32 {v(vPt)}, 6, {v(vL)}
    """)
    npt = 0
    if OPT['pt'] & 1:
        A(f"""
        s_mul_i32 {s(t0)}, {s(sWv)}, {HWG // 4}
        s_add_u32 {s(t0)}, {s(t0)}, {s(sHin)}
        """)
        if OPT['ps'] == 64:
            npt = 2
            A(f"""
            buffer_load_dword {v(vDum)}, {v(vPt)}, {s(sW,4)}, {s(t0)} offen
            s_mov_b32 exec_hi, 0
            s_add_u32 {s(t0)}, {s(t0)}, 4096
            buffer_load_dword {v(vDum)}, {v(vPt)}, {s(sW,4)}, {s(t0)} offen
            s_mov_b32 exec_hi, -1
            """)
        else:
            npt = 1
            A(f"""
            v_lshlrev_b32 {v(vDum)}, 7, {v(vL)}
            s_mov_b32 exec_hi, 0xffff
            buffer_load_dword {v(vDum)}, {v(vDum)}, {s(sW,4)}, {s(t0)} offen
            s_mov_b32 exec_hi, -1
            """)
    A(f"""
    s_getreg_b32 {s(sXcc)}, hwreg(HW_REG_XCC_ID, 0, 4)
    s_mov_b32 {s(sD)}, {s(sO+2)}
    s_mov_b32 {s(sD+1)}, {s(sO+3)}
    s_mov_b32 {s(sO+2)}, 0x400000
    s_mov_b32 {s(sO+3)}, 0x00020000
    s_mov_b32 {s(sD+2)}, 256
    s_mov_b32 {s(sD+3)}, 0x00020000
    v_mov_b32 {v(vOne)}, -1
    v_mov_b32 {v(vOne+1)}, -1
    v_mov_b32 {v(vOne+2)}, -1
    v_mov_b32 {v(vOne+3)}, -1
    s_lshl_b32 {s(t0)}, {s(sL)}, 13
    s_add_u32 {s(t0)}, {s(t0)}, {s(sGb)}
    s_lshr_b32 {s(t1)}, {s(sWv)}, 1
    s_lshl_b32 {s(t1)}, {s(t1)}, 12
    s_add_u32 {s(t0)}, {s(t0)}, {s(t1)}
    s_and_b32 {s(t1)}, {s(sWv)}, 1
    s_lshl_b32 {s(t2)}, {s(t1)}, 8
    s_add_u32 {s(t0)}, {s(t0)}, {s(t2)}
    v_lshlrev_b32 {v(a0)}, 4, {v(vI)}
    v_lshl_add_u32 {v(vXout)}, {v(vG)}, 10, {v(a0)}
    v_add_u32 {v(vXout)}, {s(t0)}, {v(vXout)}
    s_mov_b32 {s(sXb)}, {XB}
    s_mov_b32 {s(sXb2)}, {XB + (2 << GSH)}
    buffer_store_dwordx4 {v(vOne,4)}, {v(vXout)}, {s(sW,4)}, {s(sXb)} offen sc1
    buffer_store_dwordx4 {v(vOne,4)}, {v(vXout)}, {s(sW,4)}, {s(sXb)} offen offset:512 sc1
    s_lshl_b32 {s(t0)}, {s(sL)}, 10
    s_min_u32 {s(t2)}, {s(sWv)}, 2
    s_mul_i32 {s(t2)}, {s(t2)}, {SSTR}
    s_add_u32 {s(t0)}, {s(t0)}, {s(sGb)}
    s_add_u32 {s(t2)}, {s(t2)}, {s(t0)}
    s_add_u32 {s(t2)}, {s(t2)}, {SB}
    buffer_store_dwordx4 {v(vOne,4)}, {v(vL16)}, {s(sW,4)}, {s(t2)} offen sc1
    s_mov_b32 {s(sErr)}, 0
    s_mov_b32 {s(sLay)}, 0
    s_mov_b32 {s(sSb)}, {SB}
    ; tau = 16 w + i
    s_lshl_b32 {s(t2)}, {s(sWv)}, 4
    v_add_u32 {v(tau)}, {s(t2)}, {v(vI)}
    v_lshlrev_b32 {v(a1)}, 4, {v(tau)}
    v_lshl_add_u32 {v(vSout)}, {v(vG)}, 2, {v(a1)}
    v_add_u32 {v(vSout)}, {s(t0)}, {v(vSout)}
    v_lshl_add_u32 {v(vSin)}, {v(vG)}, 12, {v(a1)}
    v_add_u32 {v(vSin)}, {s(sGb)}, {v(vSin)}
    v_lshrrev_b32 {v(a0)}, 5, {v(vL)}
    v_lshlrev_b32 {v(vXin)}, {GSH}, {v(a0)}
    v_bfe_u32 {v(a0)}, {v(vL)}, 1, 4
    v_lshl_add_u32 {v(vXin)}, {v(a0)}, 13, {v(vXin)}
    v_and_b32 {v(a0)}, 1, {v(vL)}
    v_lshl_add_u32 {v(vXin)}, {v(a0)}, 4, {v(vXin)}
    s_lshl_b32 {s(t2)}, {s(sWv)}, {GSH+2}
    s_lshl_b32 {s(t3)}, {s(sN)}, 5
    s_add_u32 {s(t2)}, {s(t2)}, {s(t3)}
    v_add_u32 {v(vXin)}, {s(t2)}, {v(vXin)}
    s_lshl_b32 {s(t2)}, {s(sWv)}, 11
    s_add_u32 {s(t2)}, {s(t2)}, {LDS_Q}
    v_add_u32 {v(vQw)}, {s(t2)}, {v(vL16)}
    v_lshrrev_b32 {v(a0)}, 2, {v(tau)}
    v_lshlrev_b32 {v(vFout)}, 14, {v(a0)}
    v_and_b32 {v(a0)}, 3, {v(vI)}
    v_lshl_add_u32 {v(vFout)}, {v(a0)}, 6, {v(vFout)}
    v_lshl_add_u32 {v(vFout)}, {v(vG)}, 4, {v(vFout)}
    v_add_u32 {v(vFout)}, {s(t0)}, {v(vFout)}
    v_lshrrev_b32 {v(a0)}, 2, {v(vL)}
    v_lshlrev_b32 {v(vFin)}, 10, {v(a0)}
    v_and_b32 {v(a0)}, 3, {v(vL)}
    v_lshl_add_u32 {v(vFin)}, {v(a0)}, 4, {v(vFin)}
    s_lshl_b32 {s(t2)}, {s(sL)}, 14
    s_add_u32 {s(t2)}, {s(t2)}, {s(sGb)}
    s_lshl_b32 {s(t3)}, {s(sWv)}, 6
    s_add_u32 {s(t2)}, {s(t2)}, {s(t3)}
    v_add_u32 {v(vFin)}, {s(t2)}, {v(vFin)}
    """)
    A(f'''
    v_lshlrev_b32 {v(a0)}, 4, {v(vI)}
    v_lshl_add_u32 {v(vWr)}, {v(vG)}, 8, {v(a0)}
    v_lshl_add_u32 {v(vQr)}, {v(vG)}, 9, {v(a0)}
    s_lshl_b32 {s(t2)}, {s(t1)}, 10
    v_add_u32 {v(vWr)}, {s(t2)}, {v(vWr)}
    v_add_u32 {v(vQr)}, {LDS_Q}, {v(vQr)}
    v_lshrrev_b32 {v(a1)}, 1, {v(vG)}
    v_lshl_add_u32 {v(a0)}, {v(a1)}, 8, {v(a0)}
    v_and_b32 {v(a1)}, 1, {v(vG)}
    v_lshl_add_u32 {v(a0)}, {v(a1)}, 3, {v(a0)}
    s_lshr_b32 {s(t0)}, {s(sWv)}, 1
    s_lshl_b32 {s(t0)}, {s(t0)}, 11
    s_lshl_b32 {s(t2)}, {s(t1)}, 9
    s_add_u32 {s(t0)}, {s(t0)}, {s(t2)}
    s_lshl_b32 {s(t2)}, {s(sWv)}, 12
    s_lshl_b32 {s(t3)}, {s(sK)}, 2
    s_or_b32 {s(sSpec)}, {s(t3)}, {s(sWv)}
    s_cmp_lt_u32 {s(sSpec)}, 2
    s_cselect_b32 {s(t0)}, {s(t2)}, {s(t0)}
    s_cselect_b32 {s(t2)}, 1, 8
    s_lshl_b32 {s(t2)}, {s(t2)}, 9
    s_add_u32 {s(t2)}, {s(t2)}, {s(t0)}
    v_add_u32 {v(vWa1)}, {s(t0)}, {v(a0)}
    v_add_u32 {v(vWa2)}, {s(t2)}, {v(a0)}
    s_cmp_eq_u32 {s(sSpec)}, 0
    s_cselect_b32 {s(sRho)}, 0x00010001, 0
    s_mov_b32 {s(sRho+1)}, {s(sRho)}
    v_mov_b32 {v(M2)}, 1.0
    v_mov_b32 {v(M2+1)}, 1.0
    v_mov_b32 {v(M3)}, 1.0
    v_mov_b32 {v(M3+1)}, 1.0
    v_mov_b32 {v(M4)}, 1.0
    v_mov_b32 {v(M4+1)}, 1.0
    s_cmp_eq_u32 {s(sL)}, 0
    s_cselect_b32 exec_lo, 0xffff, 0
    s_mov_b32 exec_hi, 0
    v_mov_b32 {v(M2)}, 0
    v_mov_b32 {v(M3)}, 0
    s_and_b32 exec_lo, exec_lo, {s(sRho)}
    v_mov_b32 {v(M3)}, 1.0
    v_mov_b32 {v(M4)}, 0
    s_mov_b64 exec, -1
    v_mov_b32 {v(vStamp)}, 0
    ''')
    if OPT['debug']:
        A(f'''
        s_lshl_b32 {s(t0)}, {s(sN)}, 8
        v_add_u32 {v(vDump)}, {s(t0)}, v0
        v_lshlrev_b32 {v(vDump)}, 6, {v(vDump)}
        ''')

    stamp(1)
    fr = T + 4; ph = T + 5; arg = T + 6; c0 = T + 8; stp = T + 7; gf = T + 10; amp = T + 11; voff = T + 12; Z = T + 13; arg2 = T + 14
    def f_ph(x_sgpr_or_imm):
        A(f'''
        v_lshrrev_b32 {v(a0)}, 1, {v(vI)}
        v_cvt_f32_u32 {v(fr)}, {v(a0)}
        v_and_b32 {v(a1)}, 1, {v(vI)}
        v_cvt_f32_u32 {v(ph)}, {v(a1)}
        v_mul_f32 {v(fr)}, {f32(1/32)}, {v(fr)}
        v_mul_f32 {v(ph)}, {f32(0.25)}, {v(ph)}
        v_add_f32 {v(fr)}, {x_sgpr_or_imm}, {v(fr)}
        v_cmp_eq_f32 vcc, 0, {v(fr)}
        v_cndmask_b32 {v(a0)}, 0, {v(ph)}, vcc
        v_fmac_f32 {v(fr)}, 2.0, {v(a0)}
        v_sub_f32 {v(ph)}, {v(ph)}, {v(a0)}
        ''')
    def cos_row(dst, step, scaled=False, first=None):
        for c in range(8):
            src = first if (c == 0 and first is not None) else arg
            A(f'v_cos_f32 {v(c0 + (c & 1))}, {v(src)}')
            if c < 7: A(f'v_add_f32 {v(arg)}, {v(arg)}, {v(step)}')
            if scaled: A(f'v_fma_f32 {v(c0 + (c & 1))}, {v(c0 + (c & 1))}, {v(amp)}, {v(voff)}')
            if c & 1: A(f'v_cvt_pk_f16_f32 {v(dst + c // 2)}, {v(c0)}, {v(c0+1)}')
    A(f'''
    v_cvt_f32_u32 {v(gf)}, {v(vG)}
    v_mul_f32 {v(gf)}, {f32(8.0)}, {v(gf)}
    s_cmp_eq_u32 {s(sL)}, 0
    s_cbranch_scc1 GCOL0
    ''')
    for cb in range(2):
        f_ph('0' if cb == 0 else f32(0.25))
        A(f'v_fma_f32 {v(arg)}, {v(fr)}, {v(gf)}, -{v(ph)}')
        cos_row(Ga + 4 * cb, fr)
    for r in range(0, 8, 2): A(f'v_mov_b64 {v(Ga2+r,2)}, {v(Ga+r,2)}')
    A('GCOL_DONE:')
    A(f'''
    s_lshr_b32 {s(t0)}, {s(sWv)}, 1
    s_mul_i32 {s(t0)}, {s(t0)}, {f32(0.25)}
    ''')
    f_ph(s(t0))
    A(f'v_fma_f32 {v(arg)}, {v(fr)}, {v(gf)}, -{v(ph)}')
    cos_row(GR[1], fr)
    A(f'''
    s_cmp_eq_u32 {s(sK)}, 0
    s_cbranch_scc1 GROW0
    ''')
    for r in range(0, 4, 2):
        A(f'v_mov_b64 {v(GR[0]+r,2)}, {v(GR[1]+r,2)}')
        A(f'v_mov_b64 {v(GR[2]+r,2)}, {v(GR[1]+r,2)}')
    A('GROW_DONE:')
    vLin, vRep0, vA0, vMir0, vC0, vRep1, vMir1 = range(Hc, Hc + 7)
    vE, vEm, q0, q1 = range(Hs, Hs + 4)
    vHin = T + 38; GRN = T + 40; HI = T + 64; vF = Ec
    GRS = X[0]
    assert X[3] == X[0] + 24
    def dreg(h, j, b=GRN): return b + 12 * h + 4 * (j // 3) + 1 + j % 3
    def pos(dst, col, rowoff):
        A(f"""
        v_lshrrev_b32 {v(q1)}, 8, {v(col)}
        v_lshl_add_u32 {v(q1)}, {v(q1)}, 5, {v(rowoff)}
        v_lshl_add_u32 {v(dst)}, {v(col)}, 1, {v(q1)}
        """)
    A(f"""
    s_mul_i32 {s(sBase)}, {s(sWv)}, {2*ROWB}
    s_add_u32 {s(sBase)}, {s(sBase)}, {LDS_R}
    v_lshrrev_b32 {v(q0)}, 5, {v(vL)}
    v_lshlrev_b32 {v(q0)}, 5, {v(q0)}
    v_lshl_add_u32 {v(vLin)}, {v(vL)}, 4, {v(q0)}
    v_add_u32 {v(vLin)}, {s(sBase)}, {v(vLin)}
    s_mov_b32 {s(sm)}, 0xf0f0f0f0
    s_mov_b32 {s(sm+1)}, 0xf0f0f0f0
    s_add_u32 {s(t0)}, {s(sBase)}, {ROWB}
    v_mov_b32 {v(q0)}, {s(sBase)}
    v_mov_b32 {v(q1)}, {s(t0)}
    v_cndmask_b32 {v(vE)}, {v(q0)}, {v(q1)}, {s(sm,2)}
    s_cmp_eq_u32 {s(sR)}, 0
    s_cselect_b32 {s(t1)}, -1, 0
    s_xor_b32 {s(sm2)}, {s(sm)}, {s(t1)}
    s_mov_b32 {s(sm2+1)}, {s(sm2)}
    v_cndmask_b32 {v(vEm)}, {v(q0)}, {v(q1)}, {s(sm2,2)}
    v_and_b32 {v(q0)}, 3, {v(vL)}
    v_lshrrev_b32 {v(vH)}, 3, {v(vL)}
    v_lshl_add_u32 {v(vA0)}, {v(q0)}, 8, {v(vH)}
    v_add_u32 {v(q0)}, 8, {v(vA0)}
    """)
    pos(vRep1, q0, vE)
    A(f'v_sub_u32 {v(q0)}, {1024-224-8}, {v(vA0)}')
    pos(vMir1, q0, vEm)
    A(f"""
    v_and_b32 {v(q0)}, 1, {v(vL)}
    v_lshlrev_b32 {v(q0)}, 8, {v(q0)}
    v_and_b32 {v(q1)}, 2, {v(vL)}
    s_mov_b64 exec, 0xff
    v_lshl_add_u32 {v(vA0)}, {v(q1)}, 3, {v(q0)}
    s_mov_b64 exec, -1
    """)
    pos(vRep0, vA0, vE)
    A(f'v_sub_u32 {v(q0)}, {1024-224}, {v(vA0)}')
    pos(vMir0, q0, vEm)
    A(f"""
    v_sub_u32 {v(q0)}, 1024, {v(vA0)}
    v_and_b32 {v(q0)}, 1023, {v(q0)}
    """)
    pos(vC0, q0, vEm)
    A(f"""
    v_mov_b32 {v(vA0)}, {v(vRep0)}
    s_mov_b64 exec, 1
    v_add_u32 {v(vA0)}, {2*512+64}, {v(vA0)}
    s_and_b32 exec_lo, {s(sm2)}, 0x11
    v_add_u32 {v(vC0)}, {2*512+64}, {v(vC0)}
    s_mov_b64 exec, -1
    s_mov_b32 {s(t0)}, {HWG}
    v_mul_lo_u32 {v(vH)}, {v(vH)}, {s(t0)}
    v_and_b32 {v(q0)}, 7, {v(vL)}
    v_lshl_add_u32 {v(vH)}, {v(q0)}, 4, {v(vH)}
    s_mul_i32 {s(sHa)}, {s(sTau)}, {HSL}
    s_add_u32 {s(sHa)}, {s(sHa)}, {s(sGb)}
    s_add_u32 {s(sHb)}, {s(sHa)}, {H0B + 8*HWG}
    s_add_u32 {s(sHa)}, {s(sHa)}, {H0B}
    v_mul_u32_u24 {v(vHin)}, {HSL}, {v(tau)}
    v_lshl_add_u32 {v(vHin)}, {v(vG)}, 4, {v(vHin)}
    s_waitcnt lgkmcnt(0)
    s_mul_i32 {s(sT)}, {s(sT)}, 0x19660d
    s_add_u32 {s(sT)}, {s(sT)}, 0x3c6ef35f
    s_add_u32 {s(sXf)}, {s(sGb)}, {XF}
    v_lshlrev_b32 {v(vXa)}, 4, {v(vI)}
    v_mov_b32 {v(vXf)}, {s(sT)}
    v_mov_b32 {v(vXf+1)}, {s(sXcc)}
    s_lshl_b32 exec_lo, 1, {s(sL)}
    s_mov_b32 exec_hi, 0
    buffer_store_dwordx2 {v(vXf,2)}, {v(vXa)}, {s(sW,4)}, {s(sXf)} offen sc1
    s_mov_b64 exec, -1
    """)
    stamp(2)
    A(f's_waitcnt vmcnt({4+npt})')
    stamp(3)
    nh = 0
    if OPT['pt'] & 8:
        A(f"""
        s_mul_i32 {s(t0)}, {s(sWv)}, {HWG // 4}
        s_add_u32 {s(t0)}, {s(t0)}, {s(sHin)}
        """)
        if OPT['hs'] == 64:
            nh = 2
            A(f"""
            buffer_load_dword {v(vDum)}, {v(vPt)}, {s(sW,4)}, {s(t0)} offen
            s_mov_b32 exec_hi, 0
            s_add_u32 {s(t0)}, {s(t0)}, 4096
            buffer_load_dword {v(vFlagD)}, {v(vPt)}, {s(sW,4)}, {s(t0)} offen
            s_mov_b32 exec_hi, -1
            """)
        else:
            nh = 1
            A(f"""
            v_lshlrev_b32 {v(vDum)}, 7, {v(vL)}
            s_mov_b32 exec_hi, 0xffff
            buffer_load_dword {v(vDum)}, {v(vDum)}, {s(sW,4)}, {s(t0)} offen
            s_mov_b32 exec_hi, -1
            """)
    A(f"""
    ds_write_b128 {v(vLin)}, {v(vRow,4)}
    ds_write_b128 {v(vLin)}, {v(vRow+4,4)} offset:1088
    ds_write_b128 {v(vLin)}, {v(vRow+8,4)} offset:{ROWB}
    ds_write_b128 {v(vLin)}, {v(vRow+12,4)} offset:{ROWB+1088}
    """)
    for r in range(16):
        A(f"""
        v_lshlrev_b32 {v(vF+2*r)}, 16, {v(vRow+r)}
        v_and_b32 {v(vF+2*r+1)}, 0xffff0000, {v(vRow+r)}
        """)
    A('s_waitcnt lgkmcnt(0)')
    for h in range(2):
        for t in range(3): A(f'v_mov_b32 {v(GRS+12*h+4*t)}, {s(sT)}')
    for h in range(2):
        for part in range(2):
            for c in range(8):
                if part == 0: ad, off = ((vA0, 0) if (c == 0 and h == 0) else ((vRep0, vRep1)[h], 64 * c))
                else: ad, off = ((vC0, 0) if (c == 0 and h == 0) else ((vMir0, vMir1)[h], 64 * (7 - c)))
                j = 4 * part + c // 2
                A(f'ds_read_u16 {v(HI+8*h+j if c & 1 else dreg(h, j, GRS))}, {v(ad)} offset:{off}')
    a, b, u, m = T + 4, T + 6, T + 8, T + 10
    for (acc, base) in ((a, vF), (b, vF + 16)):
        A(f'v_pk_add_f32 {v(acc,2)}, {v(base,2)}, {v(base+2,2)}')
    for p in range(2, 8):
        for (acc, base) in ((a, vF), (b, vF + 16)):
            A(f'v_pk_add_f32 {v(acc,2)}, {v(acc,2)}, {v(base+2*p,2)}')
    A(f"""
    v_add_f32 {v(a)}, {v(a)}, {v(a+1)}
    v_add_f32 {v(b)}, {v(b)}, {v(b+1)}
    """)
    red64x2(a, b, u)
    A(f"""
    v_mul_f32 {v(m)}, {f32(1/1024)}, {v(a)}
    v_mov_b32 {v(u)}, {v(m)}
    v_mov_b32 {v(u+1)}, {v(m)}
    v_permlane32_swap_b32 {v(u)}, {v(u+1)}
    """)
    for p in range(8):
        A(f'v_pk_add_f32 {v(vF+2*p,2)}, {v(vF+2*p,2)}, {v(u,2)} op_sel_hi:[1,0] neg_lo:[0,1] neg_hi:[0,1]')
        A(f'v_pk_add_f32 {v(vF+16+2*p,2)}, {v(vF+16+2*p,2)}, {v(u,2)} op_sel:[0,1] op_sel_hi:[1,1] neg_lo:[0,1] neg_hi:[0,1]')
    for (acc, base) in ((a, vF), (b, vF + 16)):
        A(f'v_pk_mul_f32 {v(acc,2)}, {v(base,2)}, {v(base,2)}')
    for p in range(1, 8):
        for (acc, base) in ((a, vF), (b, vF + 16)):
            A(f'v_pk_fma_f32 {v(acc,2)}, {v(base+2*p,2)}, {v(base+2*p,2)}, {v(acc,2)}')
    A(f"""
    v_add_f32 {v(a)}, {v(a)}, {v(a+1)}
    v_add_f32 {v(b)}, {v(b)}, {v(b+1)}
    s_waitcnt lgkmcnt(0)
    """)
    def hstore(h, t, m=''):
        A(f'buffer_store_dwordx4 {v(GRS+12*h+4*t,4)}, {v(vH)}, {s(sW,4)}, {s((sHa, sHb)[h])} offen offset:{128*t}{m}')
    for h in range(2):
        for j in range(8):
            A(f'v_lshl_or_b32 {v(dreg(h, j, GRS))}, {v(HI+8*h+j)}, 16, {v(dreg(h, j, GRS))}')
            if j in (2, 5): hstore(h, j // 3)
    red64x2(a, b, u)
    A(f"""
    v_mov_b32 {v(u)}, {f32(1e-5)}
    v_fmac_f32 {v(u)}, {f32(1/1024)}, {v(a)}
    v_rsq_f32 {v(a)}, {v(u)}
    s_mov_b32 {s(sm2)}, 0xaaaaaaaa
    s_mov_b32 {s(sm2+1)}, 0xaaaaaaaa
    v_mul_f32 {v(a+1)}, {v(m)}, {v(a)}
    v_cndmask_b32 {v(a)}, {v(a)}, {v(a+1)}, {s(sm2,2)}
    v_mov_b32 {v(a+1)}, {v(a)}
    v_permlane32_swap_b32 {v(a)}, {v(a+1)}
    v_cndmask_b32 {v(dreg(0, 8, GRS))}, {v(a)}, {v(a+1)}, {s(sm,2)}
    v_cndmask_b32 {v(dreg(1, 8, GRS))}, {v(a)}, {v(a+1)}, {s(sm,2)}
    """)
    hstore(0, 2); hstore(1, 2)
    A(f"""
    s_mov_b32 {s(t0)}, {XB + XSTR}
    buffer_store_dwordx4 {v(vOne,4)}, {v(vXout)}, {s(sW,4)}, {s(t0)} offen sc1
    buffer_store_dwordx4 {v(vOne,4)}, {v(vXout)}, {s(sW,4)}, {s(t0)} offen offset:512 sc1
    """)
    stamp(4)
    A(f"""
    s_waitcnt vmcnt({9+nh})
    s_barrier
    s_cmp_lg_u32 {s(sWv)}, 0
    s_cbranch_scc1 NOFLAG
    s_lshl_b32 {s(t0)}, {s(sL)}, 4
    s_add_u32 {s(t0)}, {s(t0)}, {s(sGb)}
    v_mov_b32 {v(vFlag)}, {FLG}
    s_mov_b64 exec, 1
    buffer_store_dword {v(GRS)}, {v(vFlag)}, {s(sW,4)}, {s(t0)} offen sc1
    s_mov_b64 exec, -1
    NOFLAG:
    buffer_load_dwordx2 {v(vXf,2)}, {v(vXa)}, {s(sW,4)}, {s(sXf)} offen sc1
    """)
    def hload(m):
        for t in range(3):
            for e in range(2):
                A(f'buffer_load_dwordx4 {v(GRN+12*e+4*t,4)}, {v(vHin)}, {s(sW,4)}, {s(sHin)} offen offset:{128*t+64*e}{m}')
    if OPT['pt'] & 16: hload('')
    if OPT['rb']:
        A(f"""
        v_lshrrev_b32 {v(vDum)}, 3, {v(vL)}
        v_mul_u32_u24 {v(vDum)}, {HWG}, {v(vDum)}
        v_and_b32 {v(vFlagD)}, 7, {v(vL)}
        v_cmp_lt_u32 vcc, 2, {v(vFlagD)}
        v_lshl_add_u32 {v(vDum)}, {v(vFlagD)}, 7, {v(vDum)}
        v_add_u32 {v(vFlagD)}, {8*HWG - 3*128}, {v(vDum)}
        v_cndmask_b32 {v(vDum)}, {v(vDum)}, {v(vFlagD)}, vcc
        s_mov_b32 exec_lo, 0x3f3f3f3f
        s_mov_b32 exec_hi, 0x3f3f3f3f
        buffer_load_dword {v(vDum)}, {v(vDum)}, {s(sW,4)}, {s(sHa)} offen
        s_mov_b64 exec, -1
        """)
    A(f"""
    s_branch EHGEN
    EH_DONE:
    """)
    stamp(5)
    vt = T + 68; vt2 = T + 69
    A(f"""
    v_lshlrev_b32 {v(vFlag)}, {GSH}, {v(vG)}
    v_lshl_add_u32 {v(vFlag)}, {v(vI)}, 4, {v(vFlag)}
    s_lshl_b32 {s(sFl)}, {s(sWv)}, {GSH+2}
    s_add_u32 {s(sFl)}, {s(sFl)}, {FLG}
    s_mov_b32 {s(sCnt)}, {BOUND}
    s_waitcnt vmcnt(0)
    """)
    stamp(8)
    A(f"""
    v_cmp_ne_u32 vcc, {s(sT)}, {v(vXf)}
    s_cbranch_vccnz XCHK
    XOK:
    v_cmp_ne_u32 vcc, {s(sXcc)}, {v(vXf+1)}
    s_mov_b32 {s(sFast)}, 1
    s_mov_b32 {s(sPm)}, {11 | (4 if (OPT['pt'] & 4 or OPT['px']) else 0)}
    {'s_branch' if OPT['slow'] else 's_cbranch_vccnz'} HSLOW
    """)
    if OPT['pt'] & 16: A('s_branch HCHK')
    elif not OPT['pt'] & 8:
        hload('')
        A('s_branch HCHK')
    A('HPOLL:')
    hload(' sc1')
    tg = [GRN + 4 * k for k in range(6)]
    A(f"""
    HCHK:
    s_waitcnt vmcnt(0)
    v_min3_u32 {v(vt)}, {v(tg[0])}, {v(tg[1])}, {v(tg[2])}
    v_max3_u32 {v(vt2)}, {v(tg[0])}, {v(tg[1])}, {v(tg[2])}
    v_min3_u32 {v(vt)}, {v(vt)}, {v(tg[3])}, {v(tg[4])}
    v_max3_u32 {v(vt2)}, {v(vt2)}, {v(tg[3])}, {v(tg[4])}
    v_min_u32 {v(vt)}, {v(vt)}, {v(tg[5])}
    v_max_u32 {v(vt2)}, {v(vt2)}, {v(tg[5])}
    v_cmp_ne_u32 vcc, {s(sT)}, {v(vt)}
    v_cmp_ne_u32 {s(sm,2)}, {s(sT)}, {v(vt2)}
    s_or_b64 {s(sm,2)}, {s(sm,2)}, vcc
    s_cbranch_scc0 HGOT
    s_sub_u32 {s(sCnt)}, {s(sCnt)}, 1
    s_cbranch_scc0 HPOLL
    s_or_b32 {s(sErr)}, {s(sErr)}, 8
    HGOT:
    buffer_load_dword {v(vFlagD)}, {v(vFlag)}, {s(sW,4)}, {s(sFl)} offen sc1
    """)
    stamp(6)
    if OPT['stamps']: A(f's_sub_u32 {s(56+2*7)}, {BOUND}, {s(sCnt)}')
    stamp_flush(vStamp, 8, 0)
    if OPT['stamps']: A(f'v_writelane_b32 {v(vStamp)}, {s(56+16)}, 58')
    A(f"""
    v_mov_b32 {v(St)}, {v(dreg(0, 8))}
    v_mov_b32 {v(St+1)}, {v(dreg(0, 8))}
    v_mov_b32 {v(St+2)}, {v(dreg(1, 8))}
    v_mov_b32 {v(St+3)}, {v(dreg(1, 8))}
    """)
    for k in range(4):
        for r in range(4):
            src = dreg(k & 1, 4 * (k >> 1) + r)
            A(f"""
            v_lshlrev_b32 {v(X[k]+2*r)}, 16, {v(src)}
            v_and_b32 {v(X[k]+2*r+1)}, 0xffff0000, {v(src)}
            """)
        if k == 0:
            A(f"""
            v_permlane16_swap_b32 {v(St)}, {v(St+1)}
            v_permlane16_swap_b32 {v(St+2)}, {v(St+3)}
            """)
    dump(0, X[0], 16); dump(1, X[2], 16)

    rR, cR, rM, cM = St, St + 1, St + 2, St + 3
    pA = T; pB = T + 8; PA = T + 16; PB = T + 20; PC = T + 24; PD = T + 28
    W = T + 32
    Wh = T + 48
    Wb = T + 0
    Dacc = T + 16
    Fr = T + 56
    A('LOOP:')
    stamp(0)
    A(f'''
    v_cndmask_b32 {v(Ps)}, {v(rM)}, {v(rR)}, {s(sRho,2)}
    v_cndmask_b32 {v(Ps+1)}, {v(rR)}, {v(rM)}, {s(sRho,2)}
    v_cndmask_b32 {v(Pc)}, {v(cM)}, {v(cR)}, {s(sRho,2)}
    v_cndmask_b32 {v(Pc+1)}, {v(cR)}, {v(cM)}, {s(sRho,2)}
    v_add_f32 {v(Pc)}, {v(Pc)}, {v(cR)}
    v_add_f32 {v(Pc+1)}, {v(Pc+1)}, {v(cM)}
    ''')
    for p in range(4):
        A(f'v_pk_fma_f32 {v(pA+2*p,2)}, {v(X[0]+2*p,2)}, {v(St,2)}, {v(Pc,2)} op_sel_hi:[1,0,0] neg_lo:[0,0,1] neg_hi:[0,0,1]')
        A(f'v_pk_fma_f32 {v(pB+2*p,2)}, {v(X[1]+2*p,2)}, {v(St+2,2)}, {v(Pc,2)} op_sel:[0,0,1] op_sel_hi:[1,0,1] neg_lo:[0,0,1] neg_hi:[0,0,1]')
    for p in range(4):
        A(f'v_pk_fma_f32 {v(pA+2*p,2)}, {v(X[3]+2*p,2)}, {v(Ps,2)}, {v(pA+2*p,2)} op_sel_hi:[1,0,1]')
        A(f'v_pk_fma_f32 {v(pB+2*p,2)}, {v(X[2]+2*p,2)}, {v(Ps,2)}, {v(pB+2*p,2)} op_sel:[0,1,0] op_sel_hi:[1,1,1]')
    for p in range(4):
        A(f'v_cvt_pk_f16_f32 {v(PA+p)}, {v(pA+2*p)}, {v(pA+2*p+1)}')
    for p in range(4):
        A(f'v_cvt_pk_f16_f32 {v(PB+p)}, {v(pB+2*p)}, {v(pB+2*p+1)}')
    A(f'''
    s_cmp_eq_u32 {s(sL)}, 0
    s_cbranch_scc1 COL0
    ''')
    MF = 'v_mfma_f32_16x16x32_f16'
    for cb in range(2): A(f'{MF} {v(W+4*cb,4)}, {v(PA,4)}, {v(Ga+4*cb,4)}, 0')
    for cb in range(2): A(f'{MF} {v(W+8+4*cb,4)}, {v(PB,4)}, {v(Ga2+4*cb,4)}, 0')
    A('COL_DONE:')
    dump(16, St, 8, 1); dump(20, PA, 16, 1); dump(24, W, 16, 1)
    for j in range(4):
        A(f'''
        v_cvt_pk_f16_f32 {v(Wh+2*j)}, {v(W+4*j)}, {v(W+4*j+1)}
        v_cvt_pk_f16_f32 {v(Wh+2*j+1)}, {v(W+4*j+2)}, {v(W+4*j+3)}
        ds_write_b64 {v(vWa1 if j < 2 else vWa2)}, {v(Wh+2*j,2)} offset:{LDS_W + 1024*(j&1)}
        ''')
    stamp(1)
    A('''
    s_waitcnt lgkmcnt(0)
    s_barrier
    ''')
    for u in range(4): A(f'ds_read_b128 {v(Wb+4*u,4)}, {v(vWr)} offset:{LDS_W + 2048*u}')
    for u in range(4):
        A(f's_waitcnt lgkmcnt({3-u})')
        A(f'{MF} {v(Dacc+4*u,4)}, {v(GR[[0,1,2,1][u]],4)}, {v(Wb+4*u,4)}, 0')
    dump(28, Dacc, 16, 1)
    for j in range(2):
        for u in range(4):
            A(f'v_cvt_pk_f16_f32 {v(Fr+4*j+u)}, {v(Dacc+4*u+2*j)}, {v(Dacc+4*u+2*j+1)}')
        A(f'buffer_store_dwordx4 {v(Fr+4*j,4)}, {v(vXout)}, {s(sW,4)}, {s(sXb)} offen offset:{512*j} sc1')
    stamp(2)
    A(f"""
    s_cmp_eq_u32 {s(sLay)}, 0
    s_cbranch_scc1 FLAGS
    CLR_DONE:
    s_mov_b32 {s(sCnt)}, {BOUND}
    s_waitcnt vmcnt({OPT['xw']})
    """)
    stamp(3)
    Qp = T; Q = T + 8; Vc = T + 40; Vs = T + 48; BVc = T + 56; BVs = T + 60; BVo = T + 64; CC = T + 0; SS = T + 8
    A(f"""
    XPOLL:
    buffer_load_dwordx4 {v(Qp,4)}, {v(vXin)}, {s(sW,4)}, {s(sXb)} offen sc1
    buffer_load_dwordx4 {v(Qp+4,4)}, {v(vXin)}, {s(sW,4)}, {s(sXb2)} offen sc1
    """)
    if OPT['px']:
        A(f"""
        s_cmp_eq_u32 {s(sPm)}, 8
        s_cbranch_scc1 XT3
        XGO3:
        s_waitcnt vmcnt(0)
        """)
    else:
        A(f"""
        s_bitcmp1_b32 {s(sPm)}, {s(sLay)}
        s_cbranch_scc1 XTRA
        s_waitcnt vmcnt(0)
        XGO:
        """)
    maxall(range(Qp, Qp + 8), vt, vt2)
    poll_tail('XPOLL', 1, vt)
    stamp(4)
    if OPT['stamps']: A(f's_sub_u32 {s(56+2*9)}, {BOUND}, {s(sCnt)}')
    A(f"""
    ds_write_b128 {v(vQw)}, {v(Qp,4)}
    ds_write_b128 {v(vQw)}, {v(Qp+4,4)} offset:1024
    """)
    if OPT['px']:
        A(f"""
        s_cmp_lt_u32 {s(sLay)}, 3
        s_cbranch_scc1 XTRA
        XGO:
        """)
    A(f"""
    s_waitcnt lgkmcnt(0)
    s_barrier
    """)
    stamp(5)
    for q in range(4):
        for blk in range(2):
            A(f'ds_read_b128 {v(Q+8*q+4*blk,4)}, {v(vQr)} offset:{2048*q+256*blk}')
    for q in range(4):
        for blk in range(2):
            A(f's_waitcnt lgkmcnt({7-2*q-blk})')
            for (acc, E) in ((Vc, Ec), (Vs, Es)):
                cin = '0' if q == 0 else v(acc+4*blk,4)
                A(f'{MF} {v(acc+4*blk,4)}, {v(Q+8*q+4*blk,4)}, {v(E+4*q,4)}, {cin}')
    dump(32, Vc, 16, 1)
    for (acc, B) in ((Vc, BVc), (Vs, BVs)):
        for r in range(4):
            A(f'v_cvt_pk_f16_f32 {v(B+r)}, {v(acc+2*r)}, {v(acc+2*r+1)}')
    A(f'''
    s_cmp_eq_u32 {s(sSpec)}, 0
    s_cbranch_scc1 HSPEC
    ''')
    for mb in range(2): A(f'{MF} {v(CC+4*mb,4)}, {v(Hc+4*mb,4)}, {v(BVc,4)}, 0')
    for mb in range(2): A(f'{MF} {v(SS+4*mb,4)}, {v(Hs+4*mb,4)}, {v(BVs,4)}, 0')
    A('H_DONE:')
    dump(36, CC, 16, 1)
    U1 = T + 16; U2 = T + 24
    for p in range(4):
        A(f'v_pk_add_f32 {v(U1+2*p,2)}, {v(CC+2*p,2)}, {v(SS+2*p,2)} neg_lo:[0,1] neg_hi:[0,1]')
        A(f'v_pk_add_f32 {v(U2+2*p,2)}, {v(CC+2*p,2)}, {v(SS+2*p,2)}')
    for p in range(4):
        for k, U, M in ((0, U1, None), (1, U2, M2), (2, U2, M3), (3, U1, M4)):
            if p == 0 and M is not None:
                A(f'v_pk_fma_f32 {v(X[k],2)}, {v(U,2)}, {v(M,2)}, {v(X[k],2)}')
            else:
                A(f'v_pk_add_f32 {v(X[k]+2*p,2)}, {v(X[k]+2*p,2)}, {v(U+2*p,2)}')
    dump(2, X[0], 16, 2); dump(3, X[2], 16, 2)
    stamp(6)
    A(f'''
    s_cmp_eq_u32 {s(sLay)}, 3
    s_cbranch_scc1 FINAL
    ''')
    Sa = [T + 2 * k for k in range(4)]; Qa = [T + 8 + 2 * k for k in range(4)]
    for k in range(4):
        A(f'v_pk_add_f32 {v(Sa[k],2)}, {v(X[k],2)}, {v(X[k]+2,2)}')
        A(f'v_pk_mul_f32 {v(Qa[k],2)}, {v(X[k],2)}, {v(X[k],2)}')
    for p in range(1, 4):
        for k in range(4):
            if p > 1: A(f'v_pk_add_f32 {v(Sa[k],2)}, {v(Sa[k],2)}, {v(X[k]+2*p,2)}')
            A(f'v_pk_fma_f32 {v(Qa[k],2)}, {v(X[k]+2*p,2)}, {v(X[k]+2*p,2)}, {v(Qa[k],2)}')
    A(f'''
    s_cmp_lg_u32 {s(sSpec)}, 0
    s_cbranch_scc1 NOSWAP
    s_mov_b64 exec, {s(sRho,2)}
    v_swap_b32 {v(Sa[2])}, {v(Sa[3])}
    v_swap_b32 {v(Sa[2]+1)}, {v(Sa[3]+1)}
    v_swap_b32 {v(Qa[2])}, {v(Qa[3])}
    v_swap_b32 {v(Qa[2]+1)}, {v(Qa[3]+1)}
    s_mov_b64 exec, -1
    NOSWAP:
    v_pk_add_f32 {v(Sa[0],2)}, {v(Sa[0],2)}, {v(Sa[2],2)}
    v_pk_add_f32 {v(Sa[1],2)}, {v(Sa[1],2)}, {v(Sa[3],2)}
    v_pk_add_f32 {v(Qa[0],2)}, {v(Qa[0],2)}, {v(Qa[2],2)}
    v_pk_add_f32 {v(Qa[1],2)}, {v(Qa[1],2)}, {v(Qa[3],2)}
    v_add_f32 {v(Sa[0])}, {v(Sa[0])}, {v(Sa[0]+1)}
    v_add_f32 {v(Sa[1])}, {v(Sa[1])}, {v(Sa[1]+1)}
    v_add_f32 {v(Qa[0])}, {v(Qa[0])}, {v(Qa[0]+1)}
    v_add_f32 {v(Qa[1])}, {v(Qa[1])}, {v(Qa[1]+1)}
    v_permlane32_swap_b32 {v(Sa[0])}, {v(Sa[1])}
    v_permlane32_swap_b32 {v(Qa[0])}, {v(Qa[1])}
    v_add_f32 {v(Sa[0])}, {v(Sa[0])}, {v(Sa[1])}
    v_add_f32 {v(Qa[0])}, {v(Qa[0])}, {v(Qa[1])}
    v_permlane16_swap_b32 {v(Sa[0])}, {v(Qa[0])}
    s_cmp_eq_u32 {s(sFast)}, 0
    s_mov_b32 {s(sCnt)}, {BOUND}
    v_add_f32 {v(Sa[0])}, {v(Sa[0])}, {v(Qa[0])}
    s_cbranch_scc1 SSLOW
    buffer_store_dword {v(Sa[0])}, {v(vSout)}, {s(sW,4)}, {s(sSb)} offen
    ''')
    stamp(7)
    if OPT['aw'] & 1: A('s_waitcnt vmcnt(0)')
    A('SPOLL:')
    G4 = T + 16
    for j in range(4):
        A(f'buffer_load_dwordx4 {v(G4+4*j,4)}, {v(vSin)}, {s(sW,4)}, {s(sSb)} offen offset:{1024*j} sc1')
    A('s_waitcnt vmcnt(0)')
    maxall(range(G4, G4 + 16), vt, vt2)
    poll_tail('SPOLL', 2, vt)
    stamp(8)
    if OPT['stamps']:
        A(f's_sub_u32 {s(56+2*10)}, {BOUND}, {s(sCnt)}')
        A(f's_mul_i32 {s(sLn)}, {s(sLay)}, 12')
    stamp_flush(vStamp, 11, 8, sLane=sLn)
    e, f_, u1, u2 = G4, G4 + 1, G4 + 4, G4 + 5
    A(f'''
    v_pk_add_f32 {v(G4,2)}, {v(G4,2)}, {v(G4+4,2)}
    v_pk_add_f32 {v(G4+2,2)}, {v(G4+2,2)}, {v(G4+6,2)}
    v_pk_add_f32 {v(G4+8,2)}, {v(G4+8,2)}, {v(G4+12,2)}
    v_pk_add_f32 {v(G4+10,2)}, {v(G4+10,2)}, {v(G4+14,2)}
    v_pk_add_f32 {v(G4,2)}, {v(G4,2)}, {v(G4+8,2)}
    v_pk_add_f32 {v(G4+2,2)}, {v(G4+2,2)}, {v(G4+10,2)}
    v_permlane32_swap_b32 {v(G4)}, {v(G4+2)}
    v_permlane32_swap_b32 {v(G4+1)}, {v(G4+3)}
    v_pk_add_f32 {v(G4,2)}, {v(G4,2)}, {v(G4+2,2)}
    v_mov_b64 {v(u1,2)}, {v(G4,2)}
    v_permlane16_swap_b32 {v(e)}, {v(u1)}
    v_permlane16_swap_b32 {v(f_)}, {v(u2)}
    v_pk_add_f32 {v(G4,2)}, {v(G4,2)}, {v(u1,2)}
    v_mul_f32 {v(e)}, {f32(1/1024)}, {v(e)}
    v_mul_f32 {v(f_)}, {f32(1/1024)}, {v(f_)}
    v_fma_f32 {v(f_)}, -{v(e)}, {v(e)}, {v(f_)}
    v_max_f32 {v(f_)}, 0, {v(f_)}
    v_add_f32 {v(f_)}, {f32(1e-5)}, {v(f_)}
    v_rsq_f32 {v(rR)}, {v(f_)}
    v_mul_f32 {v(cR)}, {v(e)}, {v(rR)}
    v_mov_b32 {v(rM)}, {v(rR)}
    v_mov_b32 {v(cM)}, {v(cR)}
    v_permlane32_swap_b32 {v(rR)}, {v(rM)}
    v_permlane32_swap_b32 {v(cR)}, {v(cM)}
    s_add_u32 {s(sLay)}, {s(sLay)}, 1
    s_add_u32 {s(sXb)}, {s(sXb)}, {XSTR}
    s_add_u32 {s(sXb2)}, {s(sXb2)}, {XSTR}
    s_add_u32 {s(sSb)}, {s(sSb)}, {SSTR}
    s_branch LOOP
    ''')

    A('FINAL:')
    Pk = T
    A(f'''
    s_mov_b32 {s(t3)}, {FB}
    s_cmp_eq_u32 {s(sFast)}, 0
    s_cbranch_scc1 FSLOW
    ''')
    def fstore(m):
        for k in range(4):
            for r in range(4):
                A(f'v_cvt_pk_bf16_f32 {v(Pk+4*k+r)}, {v(X[k]+2*r)}, {v(X[k]+2*r+1)}')
            A(f'buffer_store_dwordx4 {v(Pk+4*k,4)}, {v(vFout)}, {s(sW,4)}, {s(t3)} offen offset:{256*k}{m}')
    fstore('')
    A('F_DONE:')
    vLin, vRep, vMir, vA0, vC0, vD0, vOa = [Ga + j for j in range(7)]
    stamp(7)
    Fd = T + 16
    A(f's_mov_b32 {s(sCnt)}, {BOUND}')
    if OPT['aw'] & 2: A('s_waitcnt vmcnt(0)')
    if OPT['fp']: A(f's_sleep {OPT["fp"]}')
    stamp(13)
    A(f"""
    FPOLL:
    buffer_load_dwordx4 {v(Fd,4)}, {v(vFin)}, {s(sW,4)}, {s(t3)} offen sc1
    buffer_load_dwordx4 {v(Fd+4,4)}, {v(vFin)}, {s(sW,4)}, {s(t3)} offen offset:256 sc1
    buffer_load_dwordx4 {v(Fd+8,4)}, {v(vFin)}, {s(sW,4)}, {s(sFo2)} offen sc1
    buffer_load_dwordx4 {v(Fd+12,4)}, {v(vFin)}, {s(sW,4)}, {s(sFo3)} offen sc1
    s_waitcnt vmcnt(0)
    """)
    maxall(range(Fd, Fd + 16), vt, vt2)
    poll_tail('FPOLL', 4, vt)
    stamp(8)
    if OPT['stamps']: A(f's_sub_u32 {s(56+2*10)}, {BOUND}, {s(sCnt)}')
    for k in range(4):
        for c in range(8):
            ad, off = slot_addr(k, c, vRep, vMir, vA0, vC0, vD0)
            A(f'ds_write_b16{"_d16_hi" if c & 1 else ""} {v(ad)}, {v(Fd+4*k+c//2)} offset:{off}')
    A('s_waitcnt lgkmcnt(0)')
    for j, off in enumerate((0, 1088, ROWB, ROWB + 1088)):
        A(f'ds_read_b128 {v(Pk+4*j,4)}, {v(vLin)} offset:{off}')
    for j in range(4):
        A(f's_waitcnt lgkmcnt({3-j})')
        A(f'buffer_store_dwordx4 {v(Pk+4*j,4)}, {v(vOa)}, {s(sO,4)}, {s(sR if j < 2 else sM)} offen offset:{1024*(j&1)}' + ['', ' sc1', ' nt', ' sc0 sc1'][OPT['om']])
    stamp(11)
    if OPT['stamps']: A('s_waitcnt vmcnt(0)')
    stamp(12)
    stamp_flush(vStamp, 14, 44)
    stamp_store(vStamp, vL, sW, 1, sWv, t0, t1, vt)
    if OPT['spin']:
        A(f"""
        SPIN:
        s_memrealtime s[90:91]
        s_waitcnt lgkmcnt(0)
        s_sub_u32 {s(t0)}, s90, s88
        s_cmp_lt_u32 {s(t0)}, {OPT['spin']}
        s_cbranch_scc1 SPIN
        """)
    if OPT['stamps'] == 2:
        sel = [None, 0, 0, 2, 3, 4, 6, 8+2, 8+4, 8+8, 20+4, 20+8, 32+8, 44+4, 44+8, 44+12]
        A(f'v_mov_b32 {v(vt)}, 0')
        for k, src in enumerate(sel):
            if src is None: continue
            A(f'v_readlane_b32 {s(t0)}, {v(vStamp)}, {src}')
            if k == 1: A(f's_not_b32 {s(t0)}, {s(t0)}')
            A(f'v_writelane_b32 {v(vt)}, {s(t0)}, {k}')
        A(f"""
        v_lshlrev_b32 {v(vt2)}, 2, {v(vL)}
        s_mov_b64 exec, 0xffff
        buffer_atomic_umax {v(vt)}, {v(vt2)}, {s(sD,4)}, 0 offen
        s_mov_b64 exec, -1
        """)
    A(f'''
    s_lshl_b32 {s(t0)}, {s(sN)}, 2
    s_or_b32 {s(t0)}, {s(t0)}, {s(sWv)}
    s_cmp_lg_u32 {s(t0)}, 0
    s_cbranch_scc1 NOTAG
    v_mov_b32 {v(vt)}, {s(sT)}
    v_mov_b32 {v(vt2)}, {EOFF}
    s_mov_b64 exec, 1
    buffer_store_dword {v(vt)}, {v(vt2)}, {s(sW,4)}, 0 offen sc1
    NOTAG:
    s_cmp_eq_u32 {s(sErr)}, 0
    s_cbranch_scc1 MAIN_END
    v_mov_b32 {v(vt)}, {s(sErr)}
    v_mov_b32 {v(vt2)}, 0
    s_mov_b64 exec, 1
    buffer_atomic_or {v(vt)}, {v(vt2)}, {s(sD,4)}, 0 offen
    MAIN_END:
    s_endpgm
    ''')

    A('GCOL0:')
    cls = T + 15
    B0 = T + 32
    for cb in range(2):
        A(f'''
        v_lshrrev_b32 {v(a0)}, 1, {v(vI)}
        v_cvt_f32_u32 {v(fr)}, {v(a0)}
        v_mul_f32 {v(fr)}, {f32(1/32)}, {v(fr)}
        v_add_f32 {v(fr)}, {'0' if cb == 0 else f32(0.25)}, {v(fr)}
        v_and_b32 {v(a1)}, 1, {v(vI)}
        v_lshrrev_b32 {v(cls)}, 1, {v(vG)}
        v_cmp_eq_u32 vcc, {v(a1)}, {v(cls)}
        v_mov_b32 {v(a0)}, {f32(math.sqrt(0.5))}
        v_cndmask_b32 {v(amp)}, 0, {v(a0)}, vcc
        v_mov_b32 {v(ph)}, {f32(0.125)}
        v_mov_b32 {v(voff)}, 0
        ''')
        if cb == 0:
            A(f'''
            s_mov_b32 exec_lo, 0x00030003
            s_mov_b32 exec_hi, 0x00030003
            v_mov_b32 {v(fr)}, 0.5
            v_cndmask_b32 {v(amp)}, 0.5, 0, vcc
            v_cvt_f32_u32 {v(ph)}, {v(cls)}
            v_mul_f32 {v(voff)}, {v(ph)}, {v(amp)}
            v_mul_f32 {v(ph)}, {f32(0.25)}, {v(ph)}
            s_mov_b64 exec, -1
            ''')
        A(f'''
        ; d0/32 = 8 (g&1) + 0.5 (g>>1)
        v_and_b32 {v(a0)}, 1, {v(vG)}
        v_lshl_add_u32 {v(a0)}, {v(a0)}, 4, {v(cls)}
        v_cvt_f32_u32 {v(a0)}, {v(a0)}
        v_mul_f32 {v(a0)}, 0.5, {v(a0)}
        v_mul_f32 {v(a0)}, {v(a0)}, {v(fr)}
        v_cmp_eq_u32 {s(sG0,2)}, 0, {v(vG)}
        v_mul_f32 {v(Z)}, {f32(16.0)}, {v(fr)}
        v_cndmask_b32 {v(Z)}, 0, {v(Z)}, {s(sG0,2)}
        v_sub_f32 {v(arg)}, {v(a0)}, {v(ph)}
        v_add_f32 {v(arg2)}, {v(arg)}, {v(Z)}
        v_cos_f32 {v(B0)}, {v(arg)}
        ''')
        cos_row(Ga + 4 * cb, fr, scaled=True, first=arg2)
        A(f'''
        v_fma_f32 {v(B0)}, {v(B0)}, {v(amp)}, {v(voff)}
        v_cvt_pk_f16_f32 {v(B0)}, {v(B0)}, {v(B0)}
        s_mov_b32 {s(t0)}, 0xffff
        v_bfi_b32 {v(Ga2+4*cb)}, {s(t0)}, {v(B0)}, {v(Ga+4*cb)}
        v_mov_b32 {v(Ga2+4*cb+1)}, {v(Ga+4*cb+1)}
        v_mov_b64 {v(Ga2+4*cb+2,2)}, {v(Ga+4*cb+2,2)}
        v_sub_f32 {v(arg)}, 0, {v(a0)}
        v_sub_f32 {v(arg)}, {v(arg)}, {v(ph)}
        v_sub_f32 {v(stp)}, 0, {v(fr)}
        v_add_f32 {v(arg2)}, {v(arg)}, {v(Z)}
        v_cos_f32 {v(B0)}, {v(arg2)}
        ''')
        cos_row(Gb + 4 * cb, stp, scaled=True)
        A(f'''
        v_fma_f32 {v(B0)}, {v(B0)}, {v(amp)}, {v(voff)}
        v_cvt_pk_f16_f32 {v(B0)}, {v(B0)}, {v(B0)}
        v_bfi_b32 {v(Gb2+4*cb)}, {s(t0)}, {v(B0)}, {v(Gb+4*cb)}
        v_mov_b32 {v(Gb2+4*cb+1)}, {v(Gb+4*cb+1)}
        v_mov_b64 {v(Gb2+4*cb+2,2)}, {v(Gb+4*cb+2,2)}
        ''')
    A('s_branch GCOL_DONE')
    A(f'''
    GROW0:
    v_cmp_le_u32 vcc, 2, {v(vG)}
    v_sub_f32 {v(stp)}, 0, {v(fr)}
    v_cndmask_b32 {v(stp)}, {v(fr)}, {v(stp)}, vcc
    v_sub_f32 {v(a0)}, {f32(48.0)}, {v(gf)}
    v_cndmask_b32 {v(a0)}, {v(gf)}, {v(a0)}, vcc
    v_fma_f32 {v(arg)}, {v(fr)}, {v(a0)}, -{v(ph)}
    v_cmp_eq_u32 {s(sG0,2)}, 2, {v(vG)}
    v_mul_f32 {v(Z)}, {f32(16.0)}, {v(fr)}
    v_cndmask_b32 {v(Z)}, 0, {v(Z)}, {s(sG0,2)}
    v_sub_f32 {v(arg2)}, {v(arg)}, {v(Z)}
    ''')
    cos_row(GR[0], stp, first=arg2)
    A(f'''
    v_sub_f32 {v(a0)}, {f32(47.0)}, {v(gf)}
    v_cndmask_b32 {v(a0)}, {v(gf)}, {v(a0)}, vcc
    v_fma_f32 {v(arg)}, {v(fr)}, {v(a0)}, -{v(ph)}
    ''')
    cos_row(GR[2], stp)
    A('s_branch GROW_DONE')
    A('COL0:')
    for r in range(4):
        A(f'v_cndmask_b32 {v(PC+r)}, {v(PB+r)}, {v(PA+r)}, {s(sRho,2)}')
        A(f'v_cndmask_b32 {v(PD+r)}, {v(PA+r)}, {v(PB+r)}, {s(sRho,2)}')
    z = T + 64
    A(f'''
    s_cmp_lg_u32 {s(sSpec)}, 0
    s_cbranch_scc1 COL0B
    s_mov_b64 exec, 1
    v_fma_f32 {v(z)}, {v(X[0])}, {v(rR)}, -{v(cR)}
    v_fma_f32 {v(z+1)}, {v(X[3])}, {v(rR)}, -{v(cR)}
    v_fma_f32 {v(z+2)}, {v(X[1])}, {v(rM)}, -{v(cM)}
    v_fma_f32 {v(z+3)}, {v(X[2])}, {v(rM)}, -{v(cM)}
    v_add_f32 {v(z)}, {v(z)}, {v(z)}
    v_add_f32 {v(z+1)}, {v(z+1)}, {v(z+1)}
    v_add_f32 {v(z+2)}, {v(z+2)}, {v(z+2)}
    v_add_f32 {v(z+3)}, {v(z+3)}, {v(z+3)}
    v_cvt_pk_f16_f32 {v(PA)}, {v(z)}, {v(pA+1)}
    v_cvt_pk_f16_f32 {v(PC)}, {v(z+1)}, {v(pA+1)}
    v_cvt_pk_f16_f32 {v(PB)}, {v(z+2)}, {v(pB+1)}
    v_cvt_pk_f16_f32 {v(PD)}, {v(z+3)}, {v(pB+1)}
    s_mov_b64 exec, -1
    COL0B:
    ''')
    for cb in range(2): A(f'{MF} {v(W+4*cb,4)}, {v(PA,4)}, {v(Ga+4*cb,4)}, 0')
    for cb in range(2): A(f'{MF} {v(W+8+4*cb,4)}, {v(PB,4)}, {v(Ga2+4*cb,4)}, 0')
    for cb in range(2): A(f'{MF} {v(W+4*cb,4)}, {v(PC,4)}, {v(Gb+4*cb,4)}, {v(W+4*cb,4)}')
    for cb in range(2): A(f'{MF} {v(W+8+4*cb,4)}, {v(PD,4)}, {v(Gb2+4*cb,4)}, {v(W+8+4*cb,4)}')
    A('s_branch COL_DONE')
    A(f"""
    XTRA:
    s_bitset0_b32 {s(sPm)}, {s(sLay)}
    s_cmp_ge_u32 {s(sLay)}, 2
    s_cbranch_scc1 XT23
    s_add_u32 {s(t0)}, {s(sXb)}, {2*XSTR}
    buffer_store_dwordx4 {v(vOne,4)}, {v(vXout)}, {s(sW,4)}, {s(t0)} offen sc1
    buffer_store_dwordx4 {v(vOne,4)}, {v(vXout)}, {s(sW,4)}, {s(t0)} offen offset:512 sc1
    s_cmp_eq_u32 {s(sLay)}, 1
    s_cbranch_scc1 XT1
    s_cmp_eq_u32 {s(sFast)}, {0 if OPT['pt'] & 2 else s(sFast)}
    s_cbranch_scc1 XT0S
    s_lshl_b32 {s(t0)}, {s(sL)}, 10
    s_min_u32 {s(t2)}, {s(sWv)}, 2
    s_mul_i32 {s(t2)}, {s(t2)}, {SSTR}
    s_add_u32 {s(t2)}, {s(t2)}, {s(t0)}
    s_add_u32 {s(t2)}, {s(t2)}, {SB}
    s_add_u32 {s(t2)}, {s(t2)}, {s(sGb)}
    s_mov_b64 exec, 0xffff
    buffer_load_dword {v(vDum)}, {v(vPt)}, {s(sW,4)}, {s(t2)} offen
    s_mov_b64 exec, -1
    {'' if OPT['px'] else 's_waitcnt vmcnt(3)'}
    s_branch XGO
    XT0S:
    {'' if OPT['px'] else 's_waitcnt vmcnt(2)'}
    s_branch XGO
    XT1:
    s_lshl_b32 {s(t0)}, {s(sTau)}, 12
    s_add_u32 {s(t0)}, {s(t0)}, {s(sGb)}
    s_add_u32 {s(t0)}, {s(t0)}, {FB}
    v_lshlrev_b32 {v(vt)}, 4, {v(vL)}
    """)
    for k in range(4):
        A(f'buffer_store_dwordx4 {v(vOne,4)}, {v(vt)}, {s(sW,4)}, {s(t0)} offen offset:{1024*k} sc1')
    A(f"""
    {'' if OPT['px'] else 's_waitcnt vmcnt(6)'}
    s_branch XGO
    XT23:
    s_cmp_eq_u32 {s(sLay)}, 3
    s_cbranch_scc1 XT3
    s_cmp_eq_u32 {s(sFast)}, {0 if OPT['pt'] & 4 else s(sFast)}
    s_cbranch_scc1 XGO
    s_lshl_b32 {s(t0)}, {s(sTau)}, 12
    s_add_u32 {s(t0)}, {s(t0)}, {FB}
    s_add_u32 {s(t0)}, {s(t0)}, {s(sGb)}
    buffer_load_dword {v(vDum)}, {v(vPt)}, {s(sW,4)}, {s(t0)} offen
    {'' if OPT['px'] else 's_waitcnt vmcnt(1)'}
    s_branch XGO
    XT3:
    s_mov_b32 {s(sPm)}, 0
    """)
    relayout_addrs(vL, sBase, vLin, vRep, vMir, vA0, vC0, vD0, vt, vt2, sm)
    A(f"""
    s_cmp_eq_u32 {s(sR)}, 0
    s_cselect_b32 {s(t0)}, 256, 0
    s_add_u32 {s(sFo2)}, {s(t0)}, {FB+512}
    s_sub_u32 {s(sFo3)}, {FB+768}, {s(t0)}
    v_lshlrev_b32 {v(vOa)}, 4, {v(vL)}
    {'s_branch XGO3' if OPT['px'] else 's_waitcnt vmcnt(0)'}
    s_branch XGO
    """)
    A(f'''
    XCHK:
    buffer_load_dwordx2 {v(vXf,2)}, {v(vXa)}, {s(sW,4)}, {s(sXf)} offen sc1
    s_waitcnt vmcnt(0)
    v_cmp_ne_u32 vcc, {s(sT)}, {v(vXf)}
    s_cbranch_vccz XOK
    s_sub_u32 {s(sCnt)}, {s(sCnt)}, 1
    s_cbranch_scc0 XCHK
    s_or_b32 {s(sErr)}, {s(sErr)}, 32
    HSLOW:
    s_mov_b32 {s(sFast)}, 0
    s_mov_b32 {s(sPm)}, {15 if OPT['px'] else 11}
    s_add_u32 {s(sHa)}, {s(sHa)}, {H0S - H0B}
    s_add_u32 {s(sHb)}, {s(sHb)}, {H0S - H0B}
    s_add_u32 {s(sHin)}, {s(sHin)}, {H0S - H0B}
    s_mov_b32 {s(sCnt)}, {BOUND}
    ''')
    for h in range(2):
        for t in range(3): hstore(h, t, ' sc1')
    A(f'''
    s_waitcnt vmcnt(0)
    s_branch HPOLL
    SSLOW:
    buffer_store_dword {v(Sa[0])}, {v(vSout)}, {s(sW,4)}, {s(sSb)} offen sc1
    s_waitcnt vmcnt(0)
    s_branch SPOLL
    FSLOW:
    ''')
    fstore(' sc1')
    A('''
    s_waitcnt vmcnt(0)
    s_branch F_DONE
    ''')
    A(f"""
    FLAGS:
    s_mov_b32 {s(sCnt)}, {BOUND}
    s_waitcnt vmcnt(2)
    FLPOLL:
    v_cmp_ne_u32 vcc, {s(sT)}, {v(vFlagD)}
    s_cbranch_vccz CLR_DONE
    buffer_load_dword {v(vFlagD)}, {v(vFlag)}, {s(sW,4)}, {s(sFl)} offen sc1
    s_sub_u32 {s(sCnt)}, {s(sCnt)}, 1
    s_waitcnt vmcnt(0)
    s_cbranch_scc0 FLPOLL
    s_or_b32 {s(sErr)}, {s(sErr)}, 16
    s_branch CLR_DONE
    """)
    A('HSPEC:')
    for r in range(4):
        A(f'v_cndmask_b32 {v(BVo+r)}, 0, {v(BVs+r)}, {s(sRho,2)}')
        A(f'v_cndmask_b32 {v(BVs+r)}, {v(BVs+r)}, 0, {s(sRho,2)}')
    for mb in range(2): A(f'{MF} {v(CC+4*mb,4)}, {v(Hc+4*mb,4)}, {v(BVc,4)}, 0')
    for mb in range(2): A(f'{MF} {v(SS+4*mb,4)}, {v(Hs+4*mb,4)}, {v(BVs,4)}, 0')
    for mb in range(2): A(f'{MF} {v(SS+4*mb,4)}, {v(Hc+4*mb,4)}, {v(BVo,4)}, {v(SS+4*mb,4)}')
    A('s_branch H_DONE')
    A('EHGEN:')
    tf = T + 0; t32 = T + 1; an = T + 2; cs = T + 4; sn = T + 5; e0 = T + 6; e1 = T + 7; gfl = T + 8; an1 = T + 9; an2 = T + 10
    sgn = T + 11
    A(f'''
    s_lshr_b32 {s(t0)}, {s(sWv)}, 1
    s_and_b32 {s(t1)}, {s(sWv)}, 1
    s_lshl_b32 {s(t2)}, {s(t0)}, 5
    s_add_u32 {s(t2)}, {s(t2)}, {s(sK)}
    s_lshl_b32 {s(t3)}, {s(t1)}, 10
    s_add_u32 {s(t2)}, {s(t2)}, {s(t3)}
    s_add_u32 {s(t3)}, {s(t3)}, 16
    s_lshl_b32 {s(t1)}, {s(t1)}, 5
    s_cmp_eq_u32 {s(t0)}, 1
    s_cselect_b32 {s(t1)}, {s(t3)}, {s(t1)}
    s_cselect_b32 {s(sEA)}, 0, {f32(1/16)}
    s_cselect_b32 {s(sEC)}, {f32(1/16)}, 0
    s_cmp_eq_u32 {s(sK)}, 0
    s_cselect_b32 {s(t2)}, {s(t1)}, {s(t2)}
    s_cselect_b32 {s(sEA)}, {s(sEA)}, {f32(1/16)}
    s_cselect_b32 {s(sEC)}, {s(sEC)}, 0
    s_cselect_b32 {s(sEB)}, 0, {f32(-1/16)}
    s_cselect_b32 {s(sEnB)}, 0, {f32(1/16)}
    v_lshlrev_b32 {v(tf)}, 6, {v(vI)}
    v_add_u32 {v(tf)}, {s(t2)}, {v(tf)}
    v_cvt_f32_u32 {v(tf)}, {v(tf)}
    v_cvt_f32_u32 {v(gfl)}, {v(vG)}
    v_mul_f32 {v(tf)}, {f32(1/2048)}, {v(tf)}
    v_mul_f32 {v(t32)}, {f32(32.0)}, {v(tf)}
    v_cmp_eq_u32 {s(sG0,2)}, 0, {v(vG)}
    s_mov_b32 {s(t0)}, 0x80008000
    ''')
    def e_pair(ang, dc, ds_):
        A(f'''
        v_cos_f32 {v(cs)}, {v(ang)}
        v_sin_f32 {v(sn)}, {v(ang)}
        v_mul_f32 {v(e0)}, {s(sEA)}, {v(cs)}
        v_mul_f32 {v(e1)}, {s(sEC)}, {v(cs)}
        v_fmac_f32 {v(e1)}, {s(sEB)}, {v(sn)}
        v_cvt_pk_f16_f32 {v(dc)}, {v(e0)}, {v(e1)}
        v_mul_f32 {v(e0)}, {s(sEA)}, {v(sn)}
        v_mul_f32 {v(e1)}, {s(sEC)}, {v(sn)}
        v_fmac_f32 {v(e1)}, {s(sEnB)}, {v(cs)}
        v_cvt_pk_f16_f32 {v(ds_)}, {v(e0)}, {v(e1)}
        ''')
    for q in range(4):
        if q == 0:
            A(f'''
            v_mul_f32 {v(an)}, {v(tf)}, {v(gfl)}
            v_mul_f32 {v(an1)}, 0.5, {v(t32)}
            v_cndmask_b32 {v(an1)}, {v(t32)}, {v(an1)}, {s(sG0,2)}
            v_add_f32 {v(an1)}, {v(an1)}, {v(an)}
            v_cndmask_b32 {v(an2)}, {v(an)}, {v(t32)}, {s(sG0,2)}
            v_mov_b32 {v(sgn)}, {s(t0)}
            v_cndmask_b32 {v(sgn)}, {v(sgn)}, 0, {s(sG0,2)}
            ''')
            e_pair(an, Ec, Es); e_pair(an1, Ec + 1, Es + 1); e_pair(an2, Ec + 2, Es + 2)
            A(f'''
            v_xor_b32 {v(Es+2)}, {v(sgn)}, {v(Es+2)}
            v_mov_b32 {v(Ec+3)}, {v(Ec+1)}
            v_xor_b32 {v(Es+3)}, {s(t0)}, {v(Es+1)}
            ''')
        else:
            A(f'''
            v_fmac_f32 {v(an)}, 4.0, {v(tf)}
            v_add_f32 {v(an1)}, {v(an)}, {v(t32)}
            ''')
            e_pair(an, Ec + 4 * q, Es + 4 * q); e_pair(an1, Ec + 4 * q + 1, Es + 4 * q + 1)
            A(f'''
            v_mov_b64 {v(Ec+4*q+2,2)}, {v(Ec+4*q,2)}
            v_xor_b32 {v(Es+4*q+2)}, {s(t0)}, {v(Es+4*q)}
            v_xor_b32 {v(Es+4*q+3)}, {s(t0)}, {v(Es+4*q+1)}
            ''')
    A(f'''
    s_and_b32 exec_lo, {s(sRho)}, 0x00010000
    s_mov_b32 exec_hi, exec_lo
    ''')
    for r in range(16):
        A(f'v_mov_b32 {v(Ec+r)}, 0')
        A(f'v_mov_b32 {v(Es+r)}, 0xac00')
    A('s_mov_b64 exec, -1')
    hA = T + 12; hB = T + 13; hC = T + 14; hO = T + 15; ef = T + 16; ls = T + 18; mu = T + 22; sg = T + 23; hnB = T + 24
    A(f'''
    v_lshrrev_b32 {v(mu)}, 2, {v(vI)}
    v_lshlrev_b32 {v(mu)}, 3, {v(mu)}
    v_and_b32 {v(e0)}, 3, {v(vI)}
    v_add_u32 {v(mu)}, {v(mu)}, {v(e0)}
    v_lshlrev_b32 {v(ef)}, 5, {v(mu)}
    v_add_u32 {v(ef)}, {s(sL)}, {v(ef)}
    v_add_u32 {v(ef+1)}, 128, {v(ef)}
    v_mov_b32 {v(hA)}, {f32(16.0)}
    v_mov_b32 {v(hB)}, {f32(-16.0)}
    v_mov_b32 {v(hC)}, 0
    v_mov_b32 {v(hO)}, 0
    s_cmp_eq_u32 {s(sL)}, 0
    s_cselect_b32 exec_lo, 0xff00ff00, 0
    s_mov_b32 exec_hi, exec_lo
    v_subrev_u32 {v(ef)}, {512-16}, {v(ef)}
    v_subrev_u32 {v(ef+1)}, {512-16}, {v(ef+1)}
    v_mov_b32 {v(hA)}, 0
    v_mov_b32 {v(hB)}, 0
    v_mov_b32 {v(hC)}, {f32(16.0)}
    s_cselect_b32 exec_lo, 0x00ff00ff, 0
    s_mov_b32 exec_hi, exec_lo
    v_mov_b32 {v(hB)}, 0
    v_mov_b32 {v(hO)}, {f32(-16.0)}
    s_cselect_b32 exec_lo, 0x00010001, 0
    s_mov_b32 exec_hi, exec_lo
    v_mov_b32 {v(ef)}, 512
    s_mov_b64 exec, -1
    v_cvt_f32_u32 {v(ef)}, {v(ef)}
    v_cvt_f32_u32 {v(ef+1)}, {v(ef+1)}
    v_sub_f32 {v(hnB)}, 0, {v(hB)}
    v_mul_f32 {v(ef)}, {f32(1/1024)}, {v(ef)}
    v_mul_f32 {v(ef+1)}, {f32(1/1024)}, {v(ef+1)}
    v_add_f32 {v(ls)}, {v(gfl)}, {v(gfl)}
    v_add_f32 {v(ls+1)}, 1.0, {v(ls)}
    v_add_f32 {v(ls+2)}, {f32(8.0)}, {v(ls)}
    v_add_f32 {v(ls+3)}, {f32(9.0)}, {v(ls)}
    ''')
    for mb in range(2):
        for d in range(4):
            A(f'''
            v_mul_f32 {v(an)}, {v(ef+mb)}, {v(ls+d)}
            v_cos_f32 {v(cs)}, {v(an)}
            v_sin_f32 {v(sn)}, {v(an)}
            v_fma_f32 {v(e0)}, {v(hA)}, {v(cs)}, {v(hO)}
            v_mul_f32 {v(e1)}, {v(hC)}, {v(cs)}
            v_fmac_f32 {v(e1)}, {v(hB)}, {v(sn)}
            v_cvt_pk_f16_f32 {v(Hc+4*mb+d)}, {v(e0)}, {v(e1)}
            v_mul_f32 {v(e0)}, {v(hA)}, {v(sn)}
            v_mul_f32 {v(e1)}, {v(hC)}, {v(sn)}
            v_fmac_f32 {v(e1)}, {v(hnB)}, {v(cs)}
            v_cvt_pk_f16_f32 {v(Hs+4*mb+d)}, {v(e0)}, {v(e1)}
            ''')
    A(f'''
    v_and_b32 {v(sg)}, 1, {v(vI)}
    v_cvt_f32_u32 {v(sg)}, {v(sg)}
    v_fma_f32 {v(sg)}, {v(sg)}, -2.0, 1.0
    v_add_f32 {v(e0)}, {v(hnB)}, {v(hO)}
    v_fma_f32 {v(e0)}, -{v(hO)}, {v(sg)}, {v(e0)}
    v_fma_f32 {v(e1)}, {v(hnB)}, {v(sg)}, {v(hC)}
    v_fma_f32 {v(cs)}, {v(hC)}, {v(sg)}, {v(hnB)}
    v_mul_f32 {v(sn)}, {v(hnB)}, {v(sg)}
    s_mov_b64 exec, 0xffff
    v_cvt_pk_f16_f32 {v(Hc)}, {v(e0)}, {v(e1)}
    v_cvt_pk_f16_f32 {v(Hc+4)}, {v(e0)}, {v(e1)}
    v_cvt_pk_f16_f32 {v(Hs)}, {v(cs)}, {v(sn)}
    v_cvt_pk_f16_f32 {v(Hs+4)}, {v(cs)}, {v(sn)}
    s_mov_b64 exec, -1
    ''')
    if OPT['debug'] >= 2:
        dump(10, Ga, 16); dump(11, Gb, 16); dump(12, GR[0], 12); dump(13, Ec, 16); dump(14, Es, 16); dump(15, Hc, 16)
    A('s_branch EH_DONE')
    return V.hi

def descriptor(name, nv):
    nv = (nv + 7) // 8 * 8
    return f'''.section .rodata,"a"
.p2align 6
.amdhsa_kernel {name}
  .amdhsa_next_free_vgpr {nv}
  .amdhsa_next_free_sgpr 96
  .amdhsa_accum_offset {nv}
  .amdhsa_group_segment_fixed_size 0
  .amdhsa_kernarg_size 104
  .amdhsa_user_sgpr_count 2
  .amdhsa_user_sgpr_kernarg_segment_ptr 1
  .amdhsa_system_sgpr_workgroup_id_x 1
.end_amdhsa_kernel
'''

hdr = open('cdna_kernels/' + NAME + '.s.ref').read().split('; Override launch')[0]
nv2 = gen_main()
npad = A.pad()
out = hdr
out += f'; @launch grid=(256,1,1) block=(256,1,1) lds={LDS_MAIN}\n'
out += '.amdgcn_target "amdgcn-amd-amdhsa--gfx950"\n.text\n'
out += A.text()
out += descriptor(MAIN, nv2)
open(sys.argv[1], 'w').write(out)
print('vgprs', nv2, 'pad states', npad, 'lines', out.count('\n'))
```

```python
import sys, math
sys.path.insert(0, 'work')
from asmlib import *

NAME = 'interleave_layers__spectral_fnet__spectral_fnet__prompt'
MAIN = NAME + '_kernel'
WS_SIZE = 0x2000000
GSH = 21
H0B, FLG, EOFF, SB, XB, FB, DUMPB = 0, 0x60000, 0x68000, 0x70000, 0x80000, 0x100000, 0x2000000
SSTR, XSTR = 0x4000, 0x20000
HWG, HSL = 24576, 384
LDS_W, LDS_Q, LDS_R = 0, 8192, 16384
ROWB = 2176
LDS_MAIN = LDS_R + 4 * 2 * ROWB
BOUND = 20000
OPT = dict(fa=0, debug=0, stamps=0, xp=0, sl=0, fp=0, hp=0, spin=0, om=0, slow=0, aw=3, mix=0, pt=22, ps=64, xw=0, hs=128, px=1, rb=0, xm=0, xo=0, hm=0, hl=0)
XF = FLG + 0x800
H0S = 0x140000
for a in sys.argv[2:]:
    k, val = a.split('='); OPT[k] = int(val)

if OPT['debug']: WS_SIZE = 0x10000000
A = Asm()

def wg_indices(sK, sL, sN, sT):
    if OPT['mix']:
        A(f'''
        s_lshr_b32 {s(sK)}, s2, 4
        s_and_b32 {s(sL)}, s2, 15
        s_mov_b32 {s(sN)}, s2
        ''')
        return
    A(f'''
    s_and_b32 {s(sK)}, s2, 7
    s_lshl_b32 {s(sK)}, {s(sK)}, 1
    s_bfe_u32 {s(sT)}, s2, 0x10003
    s_or_b32 {s(sK)}, {s(sK)}, {s(sT)}
    s_lshr_b32 {s(sL)}, s2, 4
    s_lshl_b32 {s(sN)}, {s(sK)}, 4
    s_or_b32 {s(sN)}, {s(sN)}, {s(sL)}
    ''')

def rows_scalar(sK, sTau, sR, sM, t0, t1):
    A(f'''
    s_lshr_b32 {s(t0)}, {s(sTau)}, 5
    s_and_b32 {s(t1)}, {s(sTau)}, 31
    s_lshl_b32 {s(sR)}, {s(t1)}, 6
    s_lshl_b32 {s(sM)}, {s(t0)}, 5
    s_add_u32 {s(sM)}, {s(sM)}, {s(sK)}
    s_cmp_ge_u32 {s(t1)}, 16
    s_cselect_b32 {s(t1)}, -992, 0
    s_cmp_eq_u32 {s(t0)}, 1
    s_cselect_b32 {s(t1)}, 16, {s(t1)}
    s_cmp_eq_u32 {s(sK)}, 0
    s_cselect_b32 {s(sM)}, {s(t1)}, {s(sM)}
    s_add_u32 {s(sR)}, {s(sR)}, {s(sM)}
    s_sub_u32 {s(sM)}, 2048, {s(sR)}
    s_cmp_eq_u32 {s(sR)}, 0
    s_cselect_b32 {s(sM)}, 1024, {s(sM)}
    s_lshl_b32 {s(sR)}, {s(sR)}, 11
    s_lshl_b32 {s(sM)}, {s(sM)}, 11
    ''')

def relayout_addrs(vL, sBase, vLin, vRep, vMir, vA0, vC0, vD0, t0, t1, sm):
    def pos(dst, col, tmp):
        A(f'''
        v_lshrrev_b32 {v(tmp)}, 8, {v(col)}
        v_lshlrev_b32 {v(tmp)}, 5, {v(tmp)}
        v_lshl_add_u32 {v(dst)}, {v(col)}, 1, {v(tmp)}
        v_add_u32 {v(dst)}, {s(sBase)}, {v(dst)}
        ''')
    A(f'''
    v_lshrrev_b32 {v(t0)}, 5, {v(vL)}
    v_lshlrev_b32 {v(t0)}, 5, {v(t0)}
    v_lshl_add_u32 {v(vLin)}, {v(vL)}, 4, {v(t0)}
    v_add_u32 {v(vLin)}, {s(sBase)}, {v(vLin)}
    v_and_b32 {v(t0)}, 3, {v(vL)}
    v_lshlrev_b32 {v(t0)}, 8, {v(t0)}
    v_lshrrev_b32 {v(t1)}, 2, {v(vL)}
    v_add_u32 {v(vA0)}, {v(t0)}, {v(t1)}
    v_and_b32 {v(t0)}, 1, {v(vL)}
    v_lshlrev_b32 {v(t0)}, 8, {v(t0)}
    v_and_b32 {v(t1)}, 2, {v(vL)}
    v_lshl_add_u32 {v(t0)}, {v(t1)}, 3, {v(t0)}
    v_cmp_gt_u32 {s(sm,2)}, 4, {v(vL)}
    v_cndmask_b32 {v(vA0)}, {v(vA0)}, {v(t0)}, {s(sm,2)}
    ''')
    pos(vRep, vA0, t0)
    A(f'v_sub_u32 {v(t1)}, {1024-224}, {v(vA0)}')
    pos(vMir, t1, t0)
    A(f'''
    v_sub_u32 {v(t1)}, 1024, {v(vA0)}
    v_and_b32 {v(t1)}, 1023, {v(t1)}
    ''')
    pos(vC0, t1, t0)
    A(f'''
    v_cmp_eq_u32 {s(sm,2)}, 0, {v(vL)}
    v_mov_b32 {v(t0)}, {2*512+64}
    v_cndmask_b32 {v(t0)}, 0, {v(t0)}, {s(sm,2)}
    v_add_u32 {v(vA0)}, {v(vRep)}, {v(t0)}
    v_add_u32 {v(vD0)}, {v(vC0)}, {v(t0)}
    ''')

def slot_addr(k, c, vRep, vMir, vA0, vC0, vD0):
    row = ROWB if k in (1, 3) else 0
    if c == 0:
        return [(vA0, 0), (vRep, ROWB), (vC0, 0), (vD0, ROWB)][k]
    if k < 2: return (vRep, row + 64 * c)
    return (vMir, row + 64 * (7 - c))

def red64x2(a, b, u):
    A(f'''
    v_permlane32_swap_b32 {v(a)}, {v(b)}
    v_add_f32 {v(a)}, {v(a)}, {v(b)}
    v_add_f32_dpp {v(a)}, {v(a)}, {v(a)} row_ror:8 row_mask:0xf bank_mask:0xf
    v_add_f32_dpp {v(a)}, {v(a)}, {v(a)} row_ror:4 row_mask:0xf bank_mask:0xf
    v_add_f32_dpp {v(a)}, {v(a)}, {v(a)} row_ror:2 row_mask:0xf bank_mask:0xf
    v_add_f32_dpp {v(a)}, {v(a)}, {v(a)} row_ror:1 row_mask:0xf bank_mask:0xf
    v_mov_b32 {v(u)}, {v(a)}
    v_permlane16_swap_b32 {v(a)}, {v(u)}
    v_add_f32 {v(a)}, {v(a)}, {v(u)}
    ''')

STB = 0x1c0000
def stamp(idx, base=56):
    if OPT['stamps']: A(f's_memrealtime {s(base+2*idx,2)}')
def stamp_flush(vS, n, lane0, base=56, sLane=None, tmp=None):
    if not OPT['stamps']: return
    A('s_waitcnt lgkmcnt(0)')
    for k in range(n):
        if sLane is None: A(f'v_writelane_b32 {v(vS)}, {s(base+2*k)}, {lane0+k}')
        else:
            A(f's_add_u32 m0, {s(sLane)}, {lane0+k}')
            A(f'v_writelane_b32 {v(vS)}, {s(base+2*k)}, m0')
def stamp_store(vS, vL, sW, which, sWv, t0, t1, vt):
    if not OPT['stamps']: return
    A(f'''
    s_mov_b64 exec, -1
    s_lshl_b32 {s(t0)}, s2, 10
    s_lshl_b32 {s(t1)}, {s(sWv)}, 8
    s_add_u32 {s(t0)}, {s(t0)}, {s(t1)}
    s_add_u32 {s(t0)}, {s(t0)}, {STB}
    v_lshlrev_b32 {v(vt)}, 2, {v(vL)}
    buffer_store_dword {v(vS)}, {v(vt)}, {s(sW,4)}, {s(t0)} offen
    ''')

def kernel_head(name):
    A.raw(f'.globl {name}\n.p2align 8\n.type {name},@function\n{name}:')
    A.raw('.KERNEL')

def gen_main():
    kernel_head(MAIN)
    V = Regs('v', 1, 256)
    sW, sO, sD, sX = 4, 8, 12, 84
    (sK, sL, sN, sWv, sLay, sXb, sXb2, sSb, sCnt, sErr, t0, t1, t2, t3, sSpec, sEA, sEB, sEC, sEnB, sTau, sR, sM,
     sBase, sFo2, sFo3, sT) = range(16, 42)
    sGb, sHa, sHb, sHin = 50, 51, 53, 55
    sFast, sFl, sXcc, sXf, sPm = 92, 93, 94, 95, 3
    sRho = 42
    sm = 44; sm2 = 46; sG0 = 48
    vL = V.alloc(); vI = V.alloc(); vG = V.alloc()
    vXin = V.alloc(); vXout = V.alloc(); vSout = V.alloc(); vSin = V.alloc(); vFout = V.alloc(); vFin = V.alloc()
    vWa1 = V.alloc(); vWa2 = V.alloc(); vWr = V.alloc(); vQw = V.alloc(); vQr = V.alloc()
    vDump = V.alloc(); vFlag = V.alloc(); vFlagD = V.alloc()
    vOne = V.alloc(4, 4)
    X = [V.alloc(8, 4) for _ in range(4)]
    Ga = V.alloc(8, 4); Ga2 = V.alloc(8, 4); Gb = V.alloc(8, 4); Gb2 = V.alloc(8, 4)
    GR = [V.alloc(4, 4) for _ in range(3)]
    Ec = V.alloc(16, 4); Es = V.alloc(16, 4); Hc = V.alloc(8, 4); Hs = V.alloc(8, 4)
    M2 = V.alloc(2, 2); M3 = V.alloc(2, 2); M4 = V.alloc(2, 2)
    St = V.alloc(4, 4)
    Ps = V.alloc(2, 2); Pc = V.alloc(2, 2)
    T = V.alloc(80, 4)

    def poll_tail(lab, code, vt):
        done = A.newlabel('DONE')
        A(f'''
        v_cmp_eq_u32 vcc, -1, {v(vt)}
        s_sub_u32 {s(sCnt)}, {s(sCnt)}, 1
        s_cbranch_vccz {done}
        s_cbranch_scc0 {lab}
        s_or_b32 {s(sErr)}, {s(sErr)}, {code}
        {done}:
        ''')
    def maxall(regs, vt, vt2):
        regs = list(regs)
        accs = [vt, vt2]; first = [True, True]; k = 0
        while regs:
            a = accs[k]
            if first[k]:
                if len(regs) >= 3: A(f'v_max3_u32 {v(a)}, {v(regs[0])}, {v(regs[1])}, {v(regs[2])}'); regs = regs[3:]
                else: raise Exception
                first[k] = False
            elif len(regs) >= 2: A(f'v_max3_u32 {v(a)}, {v(a)}, {v(regs[0])}, {v(regs[1])}'); regs = regs[2:]
            else: A(f'v_max_u32 {v(a)}, {v(a)}, {v(regs[0])}'); regs = regs[1:]
            k ^= 1
        A(f'v_max_u32 {v(vt)}, {v(vt)}, {v(vt2)}')
    sDbg = 52
    def dump(slot, reg, n, lay=0):
        if not OPT['debug']: return
        A(f's_mul_i32 {s(sDbg)}, {s(sLay)}, {lay * 0x400000}')
        A(f's_add_u32 {s(sDbg)}, {s(sDbg)}, {DUMPB + slot * 0x400000}')
        for r in range(0, n, 4):
            A(f'buffer_store_dwordx4 {v(reg+r,4)}, {v(vDump)}, {s(sW,4)}, {s(sDbg)} offen offset:{4*r}')
        A('s_waitcnt vmcnt(0)')
    vStamp = V.alloc()
    vXa = V.alloc(); vH = V.alloc(); vXf = V.alloc(2, 2); vPt = V.alloc(); vDum = V.alloc()

    def xfpub():
        A(f"""
    s_waitcnt lgkmcnt(0)
    s_mul_i32 {s(sT)}, {s(sT)}, 0x19660d
    s_add_u32 {s(sT)}, {s(sT)}, 0x3c6ef35f
    s_add_u32 {s(sXf)}, {s(sGb)}, {XF}
    v_lshlrev_b32 {v(vXa)}, 4, {v(vI)}
    v_mov_b32 {v(vXf)}, {s(sT)}
    v_mov_b32 {v(vXf+1)}, {s(sXcc)}
    s_lshl_b32 exec_lo, 1, {s(sL)}
    s_mov_b32 exec_hi, 0
    buffer_store_dwordx2 {v(vXf,2)}, {v(vXa)}, {s(sW,4)}, {s(sXf)} offen sc1
    s_mov_b64 exec, -1
        """)
    def h0touch():
        A(f"""
        s_mul_i32 {s(t2)}, {s(sWv)}, {HWG // 4}
        s_add_u32 {s(t2)}, {s(t2)}, {s(sHin)}
        v_lshlrev_b32 {v(vDum)}, 7, {v(vL)}
        s_mov_b32 exec_hi, 0xffff
        buffer_load_dword {v(vDum)}, {v(vDum)}, {s(sW,4)}, {s(t2)} offen
        s_mov_b32 exec_hi, -1
        """)
    sLn = 54
    stamp(0)
    if OPT['spin']: A('s_memrealtime s[88:89]')
    tau = T + 1; a0 = T + 2; a1 = T + 3
    vL16 = T + 16; vRow = X[0]
    A(f"""
    s_cmp_ge_u32 s2, 256
    s_cbranch_scc1 MAIN_END
    s_load_dwordx2 {s(sX,2)}, s[0:1], 0
    s_load_dwordx2 {s(sW,2)}, s[0:1], 96
    s_load_dwordx4 {s(sO,4)}, s[0:1], 80
    v_lshrrev_b32 {v(T)}, 6, v0
    v_and_b32 {v(vL)}, 63, v0
    v_readfirstlane_b32 {s(sWv)}, {v(T)}
    s_mov_b32 {s(sX+2)}, 0x400000
    s_mov_b32 {s(sX+3)}, 0x00020000
    s_mov_b32 {s(sW+2)}, {WS_SIZE}
    s_mov_b32 {s(sW+3)}, 0x00020000
    v_lshlrev_b32 {v(vL16)}, 4, {v(vL)}
    """)
    wg_indices(sK, sL, sN, t0)
    A(f"""
    s_lshl_b32 {s(sTau)}, {s(sL)}, 2
    s_add_u32 {s(sTau)}, {s(sTau)}, {s(sWv)}
    """)
    rows_scalar(sK, sTau, sR, sM, t0, t1)
    A(f"""
    v_and_b32 {v(vI)}, 15, v0
    v_lshrrev_b32 {v(vG)}, 4, {v(vL)}
    s_lshl_b32 {s(sGb)}, {s(sK)}, {GSH}
    s_waitcnt lgkmcnt(0)
    buffer_load_dwordx4 {v(vRow,4)}, {v(vL16)}, {s(sX,4)}, {s(sR)} offen
    buffer_load_dwordx4 {v(vRow+4,4)}, {v(vL16)}, {s(sX,4)}, {s(sR)} offen offset:1024
    buffer_load_dwordx4 {v(vRow+8,4)}, {v(vL16)}, {s(sX,4)}, {s(sM)} offen
    buffer_load_dwordx4 {v(vRow+12,4)}, {v(vL16)}, {s(sX,4)}, {s(sM)} offen offset:1024
    s_load_dword {s(sT)}, {s(sW,2)}, {EOFF}
    """)
    A(f"""
    s_mul_i32 {s(sHin)}, {s(sL)}, {HWG}
    s_add_u32 {s(sHin)}, {s(sHin)}, {s(sGb)}
    s_add_u32 {s(sHin)}, {s(sHin)}, {H0B}
    v_lshlrev_b32 {v(vPt)}, 6, {v(vL)}
    """)
    npt = 0
    if OPT['pt'] & 1:
        A(f"""
        s_mul_i32 {s(t0)}, {s(sWv)}, {HWG // 4}
        s_add_u32 {s(t0)}, {s(t0)}, {s(sHin)}
        """)
        if OPT['ps'] == 64:
            npt = 2
            A(f"""
            buffer_load_dword {v(vDum)}, {v(vPt)}, {s(sW,4)}, {s(t0)} offen
            s_mov_b32 exec_hi, 0
            s_add_u32 {s(t0)}, {s(t0)}, 4096
            buffer_load_dword {v(vDum)}, {v(vPt)}, {s(sW,4)}, {s(t0)} offen
            s_mov_b32 exec_hi, -1
            """)
        else:
            npt = 1
            A(f"""
            v_lshlrev_b32 {v(vDum)}, 7, {v(vL)}
            s_mov_b32 exec_hi, 0xffff
            buffer_load_dword {v(vDum)}, {v(vDum)}, {s(sW,4)}, {s(t0)} offen
            s_mov_b32 exec_hi, -1
            """)
    A(f"""
    s_getreg_b32 {s(sXcc)}, hwreg(HW_REG_XCC_ID, 0, 4)
    s_mov_b32 {s(sD)}, {s(sO+2)}
    s_mov_b32 {s(sD+1)}, {s(sO+3)}
    s_mov_b32 {s(sO+2)}, 0x400000
    s_mov_b32 {s(sO+3)}, 0x00020000
    s_mov_b32 {s(sD+2)}, 256
    s_mov_b32 {s(sD+3)}, 0x00020000
    v_mov_b32 {v(vOne)}, -1
    v_mov_b32 {v(vOne+1)}, -1
    v_mov_b32 {v(vOne+2)}, -1
    v_mov_b32 {v(vOne+3)}, -1
    s_lshl_b32 {s(t0)}, {s(sL)}, 13
    s_add_u32 {s(t0)}, {s(t0)}, {s(sGb)}
    s_lshr_b32 {s(t1)}, {s(sWv)}, 1
    s_lshl_b32 {s(t1)}, {s(t1)}, 12
    s_add_u32 {s(t0)}, {s(t0)}, {s(t1)}
    s_and_b32 {s(t1)}, {s(sWv)}, 1
    s_lshl_b32 {s(t2)}, {s(t1)}, 8
    s_add_u32 {s(t0)}, {s(t0)}, {s(t2)}
    v_lshlrev_b32 {v(a0)}, 4, {v(vI)}
    v_lshl_add_u32 {v(vXout)}, {v(vG)}, 10, {v(a0)}
    v_add_u32 {v(vXout)}, {s(t0)}, {v(vXout)}
    s_mov_b32 {s(sXb)}, {XB}
    s_mov_b32 {s(sXb2)}, {XB + (2 << GSH)}
    buffer_store_dwordx4 {v(vOne,4)}, {v(vXout)}, {s(sW,4)}, {s(sXb)} offen sc1
    buffer_store_dwordx4 {v(vOne,4)}, {v(vXout)}, {s(sW,4)}, {s(sXb)} offen offset:512 sc1
    s_lshl_b32 {s(t0)}, {s(sL)}, 10
    s_min_u32 {s(t2)}, {s(sWv)}, 2
    s_mul_i32 {s(t2)}, {s(t2)}, {SSTR}
    s_add_u32 {s(t0)}, {s(t0)}, {s(sGb)}
    s_add_u32 {s(t2)}, {s(t2)}, {s(t0)}
    s_add_u32 {s(t2)}, {s(t2)}, {SB}
    buffer_store_dwordx4 {v(vOne,4)}, {v(vL16)}, {s(sW,4)}, {s(t2)} offen sc1
    """)
    if OPT['pt'] & 32 and OPT['xo'] == 0: h0touch()
    A(f"""
    s_mov_b32 {s(sErr)}, 0
    s_mov_b32 {s(sLay)}, 0
    s_mov_b32 {s(sSb)}, {SB}
    ; tau = 16 w + i
    s_lshl_b32 {s(t2)}, {s(sWv)}, 4
    v_add_u32 {v(tau)}, {s(t2)}, {v(vI)}
    v_lshlrev_b32 {v(a1)}, 4, {v(tau)}
    v_lshl_add_u32 {v(vSout)}, {v(vG)}, 2, {v(a1)}
    v_add_u32 {v(vSout)}, {s(t0)}, {v(vSout)}
    v_lshl_add_u32 {v(vSin)}, {v(vG)}, 12, {v(a1)}
    v_add_u32 {v(vSin)}, {s(sGb)}, {v(vSin)}
    v_lshrrev_b32 {v(a0)}, 5, {v(vL)}
    v_lshlrev_b32 {v(vXin)}, {GSH}, {v(a0)}
    v_bfe_u32 {v(a0)}, {v(vL)}, 1, 4
    v_lshl_add_u32 {v(vXin)}, {v(a0)}, 13, {v(vXin)}
    v_and_b32 {v(a0)}, 1, {v(vL)}
    v_lshl_add_u32 {v(vXin)}, {v(a0)}, 4, {v(vXin)}
    s_lshl_b32 {s(t2)}, {s(sWv)}, {GSH+2}
    s_lshl_b32 {s(t3)}, {s(sN)}, 5
    s_add_u32 {s(t2)}, {s(t2)}, {s(t3)}
    v_add_u32 {v(vXin)}, {s(t2)}, {v(vXin)}
    s_lshl_b32 {s(t2)}, {s(sWv)}, 11
    s_add_u32 {s(t2)}, {s(t2)}, {LDS_Q}
    v_add_u32 {v(vQw)}, {s(t2)}, {v(vL16)}
    v_lshrrev_b32 {v(a0)}, 2, {v(tau)}
    v_lshlrev_b32 {v(vFout)}, 14, {v(a0)}
    v_and_b32 {v(a0)}, 3, {v(vI)}
    v_lshl_add_u32 {v(vFout)}, {v(a0)}, 6, {v(vFout)}
    v_lshl_add_u32 {v(vFout)}, {v(vG)}, 4, {v(vFout)}
    v_add_u32 {v(vFout)}, {s(t0)}, {v(vFout)}
    v_lshrrev_b32 {v(a0)}, 2, {v(vL)}
    v_lshlrev_b32 {v(vFin)}, 10, {v(a0)}
    v_and_b32 {v(a0)}, 3, {v(vL)}
    v_lshl_add_u32 {v(vFin)}, {v(a0)}, 4, {v(vFin)}
    s_lshl_b32 {s(t2)}, {s(sL)}, 14
    s_add_u32 {s(t2)}, {s(t2)}, {s(sGb)}
    s_lshl_b32 {s(t3)}, {s(sWv)}, 6
    s_add_u32 {s(t2)}, {s(t2)}, {s(t3)}
    v_add_u32 {v(vFin)}, {s(t2)}, {v(vFin)}
    """)
    A(f'''
    v_lshlrev_b32 {v(a0)}, 4, {v(vI)}
    v_lshl_add_u32 {v(vWr)}, {v(vG)}, 8, {v(a0)}
    v_lshl_add_u32 {v(vQr)}, {v(vG)}, 9, {v(a0)}
    s_lshl_b32 {s(t2)}, {s(t1)}, 10
    v_add_u32 {v(vWr)}, {s(t2)}, {v(vWr)}
    v_add_u32 {v(vQr)}, {LDS_Q}, {v(vQr)}
    v_lshrrev_b32 {v(a1)}, 1, {v(vG)}
    v_lshl_add_u32 {v(a0)}, {v(a1)}, 8, {v(a0)}
    v_and_b32 {v(a1)}, 1, {v(vG)}
    v_lshl_add_u32 {v(a0)}, {v(a1)}, 3, {v(a0)}
    s_lshr_b32 {s(t0)}, {s(sWv)}, 1
    s_lshl_b32 {s(t0)}, {s(t0)}, 11
    s_lshl_b32 {s(t2)}, {s(t1)}, 9
    s_add_u32 {s(t0)}, {s(t0)}, {s(t2)}
    s_lshl_b32 {s(t2)}, {s(sWv)}, 12
    s_lshl_b32 {s(t3)}, {s(sK)}, 2
    s_or_b32 {s(sSpec)}, {s(t3)}, {s(sWv)}
    s_cmp_lt_u32 {s(sSpec)}, 2
    s_cselect_b32 {s(t0)}, {s(t2)}, {s(t0)}
    s_cselect_b32 {s(t2)}, 1, 8
    s_lshl_b32 {s(t2)}, {s(t2)}, 9
    s_add_u32 {s(t2)}, {s(t2)}, {s(t0)}
    v_add_u32 {v(vWa1)}, {s(t0)}, {v(a0)}
    v_add_u32 {v(vWa2)}, {s(t2)}, {v(a0)}
    s_cmp_eq_u32 {s(sSpec)}, 0
    s_cselect_b32 {s(sRho)}, 0x00010001, 0
    s_mov_b32 {s(sRho+1)}, {s(sRho)}
    v_mov_b32 {v(M2)}, 1.0
    v_mov_b32 {v(M2+1)}, 1.0
    v_mov_b32 {v(M3)}, 1.0
    v_mov_b32 {v(M3+1)}, 1.0
    v_mov_b32 {v(M4)}, 1.0
    v_mov_b32 {v(M4+1)}, 1.0
    s_cmp_eq_u32 {s(sL)}, 0
    s_cselect_b32 exec_lo, 0xffff, 0
    s_mov_b32 exec_hi, 0
    v_mov_b32 {v(M2)}, 0
    v_mov_b32 {v(M3)}, 0
    s_and_b32 exec_lo, exec_lo, {s(sRho)}
    v_mov_b32 {v(M3)}, 1.0
    v_mov_b32 {v(M4)}, 0
    s_mov_b64 exec, -1
    v_mov_b32 {v(vStamp)}, 0
    ''')
    if OPT['debug']:
        A(f'''
        s_lshl_b32 {s(t0)}, {s(sN)}, 8
        v_add_u32 {v(vDump)}, {s(t0)}, v0
        v_lshlrev_b32 {v(vDump)}, 6, {v(vDump)}
        ''')

    if OPT['pt'] & 32 and OPT['xo'] == 1:
        xfpub(); h0touch()
    stamp(1)
    fr = T + 4; ph = T + 5; arg = T + 6; c0 = T + 8; stp = T + 7; gf = T + 10; amp = T + 11; voff = T + 12; Z = T + 13; arg2 = T + 14
    def f_ph(x_sgpr_or_imm):
        A(f'''
        v_lshrrev_b32 {v(a0)}, 1, {v(vI)}
        v_cvt_f32_u32 {v(fr)}, {v(a0)}
        v_and_b32 {v(a1)}, 1, {v(vI)}
        v_cvt_f32_u32 {v(ph)}, {v(a1)}
        v_mul_f32 {v(fr)}, {f32(1/32)}, {v(fr)}
        v_mul_f32 {v(ph)}, {f32(0.25)}, {v(ph)}
        v_add_f32 {v(fr)}, {x_sgpr_or_imm}, {v(fr)}
        v_cmp_eq_f32 vcc, 0, {v(fr)}
        v_cndmask_b32 {v(a0)}, 0, {v(ph)}, vcc
        v_fmac_f32 {v(fr)}, 2.0, {v(a0)}
        v_sub_f32 {v(ph)}, {v(ph)}, {v(a0)}
        ''')
    def cos_row(dst, step, scaled=False, first=None):
        for c in range(8):
            src = first if (c == 0 and first is not None) else arg
            A(f'v_cos_f32 {v(c0 + (c & 1))}, {v(src)}')
            if c < 7: A(f'v_add_f32 {v(arg)}, {v(arg)}, {v(step)}')
            if scaled: A(f'v_fma_f32 {v(c0 + (c & 1))}, {v(c0 + (c & 1))}, {v(amp)}, {v(voff)}')
            if c & 1: A(f'v_cvt_pk_f16_f32 {v(dst + c // 2)}, {v(c0)}, {v(c0+1)}')
    A(f'''
    v_cvt_f32_u32 {v(gf)}, {v(vG)}
    v_mul_f32 {v(gf)}, {f32(8.0)}, {v(gf)}
    s_cmp_eq_u32 {s(sL)}, 0
    s_cbranch_scc1 GCOL0
    ''')
    for cb in range(2):
        f_ph('0' if cb == 0 else f32(0.25))
        A(f'v_fma_f32 {v(arg)}, {v(fr)}, {v(gf)}, -{v(ph)}')
        cos_row(Ga + 4 * cb, fr)
    for r in range(0, 8, 2): A(f'v_mov_b64 {v(Ga2+r,2)}, {v(Ga+r,2)}')
    A('GCOL_DONE:')
    A(f'''
    s_lshr_b32 {s(t0)}, {s(sWv)}, 1
    s_mul_i32 {s(t0)}, {s(t0)}, {f32(0.25)}
    ''')
    f_ph(s(t0))
    A(f'v_fma_f32 {v(arg)}, {v(fr)}, {v(gf)}, -{v(ph)}')
    cos_row(GR[1], fr)
    A(f'''
    s_cmp_eq_u32 {s(sK)}, 0
    s_cbranch_scc1 GROW0
    ''')
    for r in range(0, 4, 2):
        A(f'v_mov_b64 {v(GR[0]+r,2)}, {v(GR[1]+r,2)}')
        A(f'v_mov_b64 {v(GR[2]+r,2)}, {v(GR[1]+r,2)}')
    A('GROW_DONE:')
    vLin, vRep0, vA0, vMir0, vC0, vRep1, vMir1 = range(Hc, Hc + 7)
    vE, vEm, q0, q1 = range(Hs, Hs + 4)
    vHin = T + 38; GRN = T + 40; HI = T + 64; vF = Ec
    GRS = X[0]
    assert X[3] == X[0] + 24
    def dreg(h, j, b=GRN): return b + 12 * h + 4 * (j // 3) + 1 + j % 3
    def pos(dst, col, rowoff):
        A(f"""
        v_lshrrev_b32 {v(q1)}, 8, {v(col)}
        v_lshl_add_u32 {v(q1)}, {v(q1)}, 5, {v(rowoff)}
        v_lshl_add_u32 {v(dst)}, {v(col)}, 1, {v(q1)}
        """)
    A(f"""
    s_mul_i32 {s(sBase)}, {s(sWv)}, {2*ROWB}
    s_add_u32 {s(sBase)}, {s(sBase)}, {LDS_R}
    v_lshrrev_b32 {v(q0)}, 5, {v(vL)}
    v_lshlrev_b32 {v(q0)}, 5, {v(q0)}
    v_lshl_add_u32 {v(vLin)}, {v(vL)}, 4, {v(q0)}
    v_add_u32 {v(vLin)}, {s(sBase)}, {v(vLin)}
    s_mov_b32 {s(sm)}, 0xf0f0f0f0
    s_mov_b32 {s(sm+1)}, 0xf0f0f0f0
    s_add_u32 {s(t0)}, {s(sBase)}, {ROWB}
    v_mov_b32 {v(q0)}, {s(sBase)}
    v_mov_b32 {v(q1)}, {s(t0)}
    v_cndmask_b32 {v(vE)}, {v(q0)}, {v(q1)}, {s(sm,2)}
    s_cmp_eq_u32 {s(sR)}, 0
    s_cselect_b32 {s(t1)}, -1, 0
    s_xor_b32 {s(sm2)}, {s(sm)}, {s(t1)}
    s_mov_b32 {s(sm2+1)}, {s(sm2)}
    v_cndmask_b32 {v(vEm)}, {v(q0)}, {v(q1)}, {s(sm2,2)}
    v_and_b32 {v(q0)}, 3, {v(vL)}
    v_lshrrev_b32 {v(vH)}, 3, {v(vL)}
    v_lshl_add_u32 {v(vA0)}, {v(q0)}, 8, {v(vH)}
    v_add_u32 {v(q0)}, 8, {v(vA0)}
    """)
    pos(vRep1, q0, vE)
    A(f'v_sub_u32 {v(q0)}, {1024-224-8}, {v(vA0)}')
    pos(vMir1, q0, vEm)
    A(f"""
    v_and_b32 {v(q0)}, 1, {v(vL)}
    v_lshlrev_b32 {v(q0)}, 8, {v(q0)}
    v_and_b32 {v(q1)}, 2, {v(vL)}
    s_mov_b64 exec, 0xff
    v_lshl_add_u32 {v(vA0)}, {v(q1)}, 3, {v(q0)}
    s_mov_b64 exec, -1
    """)
    pos(vRep0, vA0, vE)
    A(f'v_sub_u32 {v(q0)}, {1024-224}, {v(vA0)}')
    pos(vMir0, q0, vEm)
    A(f"""
    v_sub_u32 {v(q0)}, 1024, {v(vA0)}
    v_and_b32 {v(q0)}, 1023, {v(q0)}
    """)
    pos(vC0, q0, vEm)
    A(f"""
    v_mov_b32 {v(vA0)}, {v(vRep0)}
    s_mov_b64 exec, 1
    v_add_u32 {v(vA0)}, {2*512+64}, {v(vA0)}
    s_and_b32 exec_lo, {s(sm2)}, 0x11
    v_add_u32 {v(vC0)}, {2*512+64}, {v(vC0)}
    s_mov_b64 exec, -1
    s_mov_b32 {s(t0)}, {HWG}
    v_mul_lo_u32 {v(vH)}, {v(vH)}, {s(t0)}
    v_and_b32 {v(q0)}, 7, {v(vL)}
    v_lshl_add_u32 {v(vH)}, {v(q0)}, 4, {v(vH)}
    s_mul_i32 {s(sHa)}, {s(sTau)}, {HSL}
    s_add_u32 {s(sHa)}, {s(sHa)}, {s(sGb)}
    s_add_u32 {s(sHb)}, {s(sHa)}, {H0B + 8*HWG}
    s_add_u32 {s(sHa)}, {s(sHa)}, {H0B}
    v_mul_u32_u24 {v(vHin)}, {HSL}, {v(tau)}
    v_lshl_add_u32 {v(vHin)}, {v(vG)}, 4, {v(vHin)}
    """)
    if not (OPT["pt"] & 32): xfpub()
    stamp(2)
    if OPT['pt'] & 32: A(f's_waitcnt vmcnt({4+OPT["xo"]})')
    else: A(f's_waitcnt vmcnt({4+npt})')
    stamp(3)
    if OPT['pt'] & 32 and OPT['xo'] == 0: xfpub()
    nh = 0
    if OPT['pt'] & 8:
        A(f"""
        s_mul_i32 {s(t0)}, {s(sWv)}, {HWG // 4}
        s_add_u32 {s(t0)}, {s(t0)}, {s(sHin)}
        """)
        if OPT['hs'] == 64:
            nh = 2
            A(f"""
            buffer_load_dword {v(vDum)}, {v(vPt)}, {s(sW,4)}, {s(t0)} offen
            s_mov_b32 exec_hi, 0
            s_add_u32 {s(t0)}, {s(t0)}, 4096
            buffer_load_dword {v(vFlagD)}, {v(vPt)}, {s(sW,4)}, {s(t0)} offen
            s_mov_b32 exec_hi, -1
            """)
        else:
            nh = 1
            A(f"""
            v_lshlrev_b32 {v(vDum)}, 7, {v(vL)}
            s_mov_b32 exec_hi, 0xffff
            buffer_load_dword {v(vDum)}, {v(vDum)}, {s(sW,4)}, {s(t0)} offen
            s_mov_b32 exec_hi, -1
            """)
    A(f"""
    ds_write_b128 {v(vLin)}, {v(vRow,4)}
    ds_write_b128 {v(vLin)}, {v(vRow+4,4)} offset:1088
    ds_write_b128 {v(vLin)}, {v(vRow+8,4)} offset:{ROWB}
    ds_write_b128 {v(vLin)}, {v(vRow+12,4)} offset:{ROWB+1088}
    """)
    for r in range(16):
        A(f"""
        v_lshlrev_b32 {v(vF+2*r)}, 16, {v(vRow+r)}
        v_and_b32 {v(vF+2*r+1)}, 0xffff0000, {v(vRow+r)}
        """)
    A('s_waitcnt lgkmcnt(0)')
    for h in range(2):
        for t in range(3): A(f'v_mov_b32 {v(GRS+12*h+4*t)}, {s(sT)}')
    for h in range(2):
        for part in range(2):
            for c in range(8):
                if part == 0: ad, off = ((vA0, 0) if (c == 0 and h == 0) else ((vRep0, vRep1)[h], 64 * c))
                else: ad, off = ((vC0, 0) if (c == 0 and h == 0) else ((vMir0, vMir1)[h], 64 * (7 - c)))
                j = 4 * part + c // 2
                A(f'ds_read_u16 {v(HI+8*h+j if c & 1 else dreg(h, j, GRS))}, {v(ad)} offset:{off}')
    a, b, u, m = T + 4, T + 6, T + 8, T + 10
    for (acc, base) in ((a, vF), (b, vF + 16)):
        A(f'v_pk_add_f32 {v(acc,2)}, {v(base,2)}, {v(base+2,2)}')
    for p in range(2, 8):
        for (acc, base) in ((a, vF), (b, vF + 16)):
            A(f'v_pk_add_f32 {v(acc,2)}, {v(acc,2)}, {v(base+2*p,2)}')
    A(f"""
    v_add_f32 {v(a)}, {v(a)}, {v(a+1)}
    v_add_f32 {v(b)}, {v(b)}, {v(b+1)}
    """)
    red64x2(a, b, u)
    A(f"""
    v_mul_f32 {v(m)}, {f32(1/1024)}, {v(a)}
    v_mov_b32 {v(u)}, {v(m)}
    v_mov_b32 {v(u+1)}, {v(m)}
    v_permlane32_swap_b32 {v(u)}, {v(u+1)}
    """)
    for p in range(8):
        A(f'v_pk_add_f32 {v(vF+2*p,2)}, {v(vF+2*p,2)}, {v(u,2)} op_sel_hi:[1,0] neg_lo:[0,1] neg_hi:[0,1]')
        A(f'v_pk_add_f32 {v(vF+16+2*p,2)}, {v(vF+16+2*p,2)}, {v(u,2)} op_sel:[0,1] op_sel_hi:[1,1] neg_lo:[0,1] neg_hi:[0,1]')
    for (acc, base) in ((a, vF), (b, vF + 16)):
        A(f'v_pk_mul_f32 {v(acc,2)}, {v(base,2)}, {v(base,2)}')
    for p in range(1, 8):
        for (acc, base) in ((a, vF), (b, vF + 16)):
            A(f'v_pk_fma_f32 {v(acc,2)}, {v(base+2*p,2)}, {v(base+2*p,2)}, {v(acc,2)}')
    A(f"""
    v_add_f32 {v(a)}, {v(a)}, {v(a+1)}
    v_add_f32 {v(b)}, {v(b)}, {v(b+1)}
    s_waitcnt lgkmcnt(0)
    """)
    def hstore(h, t, m=None):
        if m is None: m = ['', ' nt', ' sc0', ' sc0 nt', ' sc1', ' sc0 sc1'][OPT['hm']]
        A(f'buffer_store_dwordx4 {v(GRS+12*h+4*t,4)}, {v(vH)}, {s(sW,4)}, {s((sHa, sHb)[h])} offen offset:{128*t}{m}')
    for h in range(2):
        for j in range(8):
            A(f'v_lshl_or_b32 {v(dreg(h, j, GRS))}, {v(HI+8*h+j)}, 16, {v(dreg(h, j, GRS))}')
            if j in (2, 5): hstore(h, j // 3)
    red64x2(a, b, u)
    A(f"""
    v_mov_b32 {v(u)}, {f32(1e-5)}
    v_fmac_f32 {v(u)}, {f32(1/1024)}, {v(a)}
    v_rsq_f32 {v(a)}, {v(u)}
    s_mov_b32 {s(sm2)}, 0xaaaaaaaa
    s_mov_b32 {s(sm2+1)}, 0xaaaaaaaa
    v_mul_f32 {v(a+1)}, {v(m)}, {v(a)}
    v_cndmask_b32 {v(a)}, {v(a)}, {v(a+1)}, {s(sm2,2)}
    v_mov_b32 {v(a+1)}, {v(a)}
    v_permlane32_swap_b32 {v(a)}, {v(a+1)}
    v_cndmask_b32 {v(dreg(0, 8, GRS))}, {v(a)}, {v(a+1)}, {s(sm,2)}
    v_cndmask_b32 {v(dreg(1, 8, GRS))}, {v(a)}, {v(a+1)}, {s(sm,2)}
    """)
    hstore(0, 2); hstore(1, 2)
    A(f"""
    s_mov_b32 {s(t0)}, {XB + XSTR}
    buffer_store_dwordx4 {v(vOne,4)}, {v(vXout)}, {s(sW,4)}, {s(t0)} offen sc1
    buffer_store_dwordx4 {v(vOne,4)}, {v(vXout)}, {s(sW,4)}, {s(t0)} offen offset:512 sc1
    """)
    stamp(4)
    A(f"""
    s_waitcnt vmcnt({9+nh+(1 if OPT['pt'] & 32 else 0)})
    s_barrier
    s_cmp_lg_u32 {s(sWv)}, 0
    s_cbranch_scc1 NOFLAG
    s_lshl_b32 {s(t0)}, {s(sL)}, 4
    s_add_u32 {s(t0)}, {s(t0)}, {s(sGb)}
    v_mov_b32 {v(vFlag)}, {FLG}
    s_mov_b64 exec, 1
    buffer_store_dword {v(GRS)}, {v(vFlag)}, {s(sW,4)}, {s(t0)} offen sc1
    s_mov_b64 exec, -1
    NOFLAG:
    buffer_load_dwordx2 {v(vXf,2)}, {v(vXa)}, {s(sW,4)}, {s(sXf)} offen sc1
    """)
    def hload(m):
        for t in range(3):
            for e in range(2):
                A(f'buffer_load_dwordx4 {v(GRN+12*e+4*t,4)}, {v(vHin)}, {s(sW,4)}, {s(sHin)} offen offset:{128*t+64*e}{m}')
    if OPT['pt'] & 16: hload(['', ' nt', ' sc0', ' sc1'][OPT['hl']])
    if OPT['rb']:
        A(f"""
        v_lshrrev_b32 {v(vDum)}, 3, {v(vL)}
        v_mul_u32_u24 {v(vDum)}, {HWG}, {v(vDum)}
        v_and_b32 {v(vFlagD)}, 7, {v(vL)}
        v_cmp_lt_u32 vcc, 2, {v(vFlagD)}
        v_lshl_add_u32 {v(vDum)}, {v(vFlagD)}, 7, {v(vDum)}
        v_add_u32 {v(vFlagD)}, {8*HWG - 3*128}, {v(vDum)}
        v_cndmask_b32 {v(vDum)}, {v(vDum)}, {v(vFlagD)}, vcc
        s_mov_b32 exec_lo, 0x3f3f3f3f
        s_mov_b32 exec_hi, 0x3f3f3f3f
        buffer_load_dword {v(vDum)}, {v(vDum)}, {s(sW,4)}, {s(sHa)} offen
        s_mov_b64 exec, -1
        """)
    A(f"""
    s_branch EHGEN
    EH_DONE:
    """)
    stamp(5)
    vt = T + 68; vt2 = T + 69
    A(f"""
    v_lshlrev_b32 {v(vFlag)}, {GSH}, {v(vG)}
    v_lshl_add_u32 {v(vFlag)}, {v(vI)}, 4, {v(vFlag)}
    s_lshl_b32 {s(sFl)}, {s(sWv)}, {GSH+2}
    s_add_u32 {s(sFl)}, {s(sFl)}, {FLG}
    s_mov_b32 {s(sCnt)}, {BOUND}
    s_waitcnt vmcnt(0)
    """)
    stamp(8)
    A(f"""
    v_cmp_ne_u32 vcc, {s(sT)}, {v(vXf)}
    s_cbranch_vccnz XCHK
    XOK:
    v_cmp_ne_u32 vcc, {s(sXcc)}, {v(vXf+1)}
    s_mov_b32 {s(sFast)}, 1
    s_mov_b32 {s(sPm)}, {11 | (4 if (OPT['pt'] & 4 or OPT['px']) else 0)}
    {'s_branch' if OPT['slow'] else 's_cbranch_vccnz'} HSLOW
    """)
    if OPT['pt'] & 16: A('s_branch HCHK')
    elif not OPT['pt'] & 40:
        hload('')
        A('s_branch HCHK')
    A('HPOLL:')
    hload(' sc1')
    tg = [GRN + 4 * k for k in range(6)]
    A(f"""
    HCHK:
    s_waitcnt vmcnt(0)
    v_min3_u32 {v(vt)}, {v(tg[0])}, {v(tg[1])}, {v(tg[2])}
    v_max3_u32 {v(vt2)}, {v(tg[0])}, {v(tg[1])}, {v(tg[2])}
    v_min3_u32 {v(vt)}, {v(vt)}, {v(tg[3])}, {v(tg[4])}
    v_max3_u32 {v(vt2)}, {v(vt2)}, {v(tg[3])}, {v(tg[4])}
    v_min_u32 {v(vt)}, {v(vt)}, {v(tg[5])}
    v_max_u32 {v(vt2)}, {v(vt2)}, {v(tg[5])}
    v_cmp_ne_u32 vcc, {s(sT)}, {v(vt)}
    v_cmp_ne_u32 {s(sm,2)}, {s(sT)}, {v(vt2)}
    s_or_b64 {s(sm,2)}, {s(sm,2)}, vcc
    s_cbranch_scc0 HGOT
    s_sub_u32 {s(sCnt)}, {s(sCnt)}, 1
    s_cbranch_scc0 HPOLL
    s_or_b32 {s(sErr)}, {s(sErr)}, 8
    HGOT:
    buffer_load_dword {v(vFlagD)}, {v(vFlag)}, {s(sW,4)}, {s(sFl)} offen sc1
    """)
    stamp(6)
    if OPT['stamps']: A(f's_sub_u32 {s(56+2*7)}, {BOUND}, {s(sCnt)}')
    stamp_flush(vStamp, 8, 0)
    if OPT['stamps']: A(f'v_writelane_b32 {v(vStamp)}, {s(56+16)}, 58')
    A(f"""
    v_mov_b32 {v(St)}, {v(dreg(0, 8))}
    v_mov_b32 {v(St+1)}, {v(dreg(0, 8))}
    v_mov_b32 {v(St+2)}, {v(dreg(1, 8))}
    v_mov_b32 {v(St+3)}, {v(dreg(1, 8))}
    """)
    for k in range(4):
        for r in range(4):
            src = dreg(k & 1, 4 * (k >> 1) + r)
            A(f"""
            v_lshlrev_b32 {v(X[k]+2*r)}, 16, {v(src)}
            v_and_b32 {v(X[k]+2*r+1)}, 0xffff0000, {v(src)}
            """)
        if k == 0:
            A(f"""
            v_permlane16_swap_b32 {v(St)}, {v(St+1)}
            v_permlane16_swap_b32 {v(St+2)}, {v(St+3)}
            """)
    dump(0, X[0], 16); dump(1, X[2], 16)

    rR, cR, rM, cM = St, St + 1, St + 2, St + 3
    pA = T; pB = T + 8; PA = T + 16; PB = T + 20; PC = T + 24; PD = T + 28
    W = T + 32
    Wh = T + 48
    Wb = T + 0
    Dacc = T + 16
    Fr = T + 56
    A('LOOP:')
    stamp(0)
    A(f'''
    v_cndmask_b32 {v(Ps)}, {v(rM)}, {v(rR)}, {s(sRho,2)}
    v_cndmask_b32 {v(Ps+1)}, {v(rR)}, {v(rM)}, {s(sRho,2)}
    v_cndmask_b32 {v(Pc)}, {v(cM)}, {v(cR)}, {s(sRho,2)}
    v_cndmask_b32 {v(Pc+1)}, {v(cR)}, {v(cM)}, {s(sRho,2)}
    v_add_f32 {v(Pc)}, {v(Pc)}, {v(cR)}
    v_add_f32 {v(Pc+1)}, {v(Pc+1)}, {v(cM)}
    ''')
    for p in range(4):
        A(f'v_pk_fma_f32 {v(pA+2*p,2)}, {v(X[0]+2*p,2)}, {v(St,2)}, {v(Pc,2)} op_sel_hi:[1,0,0] neg_lo:[0,0,1] neg_hi:[0,0,1]')
        A(f'v_pk_fma_f32 {v(pB+2*p,2)}, {v(X[1]+2*p,2)}, {v(St+2,2)}, {v(Pc,2)} op_sel:[0,0,1] op_sel_hi:[1,0,1] neg_lo:[0,0,1] neg_hi:[0,0,1]')
    for p in range(4):
        A(f'v_pk_fma_f32 {v(pA+2*p,2)}, {v(X[3]+2*p,2)}, {v(Ps,2)}, {v(pA+2*p,2)} op_sel_hi:[1,0,1]')
        A(f'v_pk_fma_f32 {v(pB+2*p,2)}, {v(X[2]+2*p,2)}, {v(Ps,2)}, {v(pB+2*p,2)} op_sel:[0,1,0] op_sel_hi:[1,1,1]')
    for p in range(4):
        A(f'v_cvt_pk_f16_f32 {v(PA+p)}, {v(pA+2*p)}, {v(pA+2*p+1)}')
    for p in range(4):
        A(f'v_cvt_pk_f16_f32 {v(PB+p)}, {v(pB+2*p)}, {v(pB+2*p+1)}')
    A(f'''
    s_cmp_eq_u32 {s(sL)}, 0
    s_cbranch_scc1 COL0
    ''')
    MF = 'v_mfma_f32_16x16x32_f16'
    for cb in range(2): A(f'{MF} {v(W+4*cb,4)}, {v(PA,4)}, {v(Ga+4*cb,4)}, 0')
    for cb in range(2): A(f'{MF} {v(W+8+4*cb,4)}, {v(PB,4)}, {v(Ga2+4*cb,4)}, 0')
    A('COL_DONE:')
    dump(16, St, 8, 1); dump(20, PA, 16, 1); dump(24, W, 16, 1)
    for j in range(4):
        A(f'''
        v_cvt_pk_f16_f32 {v(Wh+2*j)}, {v(W+4*j)}, {v(W+4*j+1)}
        v_cvt_pk_f16_f32 {v(Wh+2*j+1)}, {v(W+4*j+2)}, {v(W+4*j+3)}
        ds_write_b64 {v(vWa1 if j < 2 else vWa2)}, {v(Wh+2*j,2)} offset:{LDS_W + 1024*(j&1)}
        ''')
    stamp(1)
    A('''
    s_waitcnt lgkmcnt(0)
    s_barrier
    ''')
    for u in range(4): A(f'ds_read_b128 {v(Wb+4*u,4)}, {v(vWr)} offset:{LDS_W + 2048*u}')
    for u in range(4):
        A(f's_waitcnt lgkmcnt({3-u})')
        A(f'{MF} {v(Dacc+4*u,4)}, {v(GR[[0,1,2,1][u]],4)}, {v(Wb+4*u,4)}, 0')
    dump(28, Dacc, 16, 1)
    for j in range(2):
        for u in range(4):
            A(f'v_cvt_pk_f16_f32 {v(Fr+4*j+u)}, {v(Dacc+4*u+2*j)}, {v(Dacc+4*u+2*j+1)}')
        A(f'buffer_store_dwordx4 {v(Fr+4*j,4)}, {v(vXout)}, {s(sW,4)}, {s(sXb)} offen offset:{512*j} sc1')
    stamp(2)
    A(f"""
    s_cmp_eq_u32 {s(sLay)}, 0
    s_cbranch_scc1 FLAGS
    CLR_DONE:
    s_mov_b32 {s(sCnt)}, {BOUND}
    s_waitcnt vmcnt({OPT['xw']})
    """)
    stamp(3)
    Qp = T; Q = T + 8; Vc = T + 40; Vs = T + 48; BVc = T + 56; BVs = T + 60; BVo = T + 64; CC = T + 0; SS = T + 8
    if OPT['xm']:
        m = ['', '', ' sc0', ' nt', ' sc0 sc1', ' sc1 nt'][OPT['xm']]
        A(f"""
        buffer_load_dwordx4 {v(Qp,4)}, {v(vXin)}, {s(sW,4)}, {s(sXb)} offen{m}
        buffer_load_dwordx4 {v(Qp+4,4)}, {v(vXin)}, {s(sW,4)}, {s(sXb2)} offen{m}
        s_branch XP1
        """)
    A(f"""
    XPOLL:
    buffer_load_dwordx4 {v(Qp,4)}, {v(vXin)}, {s(sW,4)}, {s(sXb)} offen sc1
    buffer_load_dwordx4 {v(Qp+4,4)}, {v(vXin)}, {s(sW,4)}, {s(sXb2)} offen sc1
    XP1:
    """)
    if OPT['px']:
        A(f"""
        s_cmp_eq_u32 {s(sPm)}, 8
        s_cbranch_scc1 XT3
        XGO3:
        s_waitcnt vmcnt(0)
        """)
    else:
        A(f"""
        s_bitcmp1_b32 {s(sPm)}, {s(sLay)}
        s_cbranch_scc1 XTRA
        s_waitcnt vmcnt(0)
        XGO:
        """)
    maxall(range(Qp, Qp + 8), vt, vt2)
    poll_tail('XPOLL', 1, vt)
    stamp(4)
    if OPT['stamps']: A(f's_sub_u32 {s(56+2*9)}, {BOUND}, {s(sCnt)}')
    A(f"""
    ds_write_b128 {v(vQw)}, {v(Qp,4)}
    ds_write_b128 {v(vQw)}, {v(Qp+4,4)} offset:1024
    """)
    if OPT['px']:
        A(f"""
        s_cmp_lt_u32 {s(sLay)}, 3
        s_cbranch_scc1 XTRA
        XGO:
        """)
    A(f"""
    s_waitcnt lgkmcnt(0)
    s_barrier
    """)
    stamp(5)
    for q in range(4):
        for blk in range(2):
            A(f'ds_read_b128 {v(Q+8*q+4*blk,4)}, {v(vQr)} offset:{2048*q+256*blk}')
    for q in range(4):
        for blk in range(2):
            A(f's_waitcnt lgkmcnt({7-2*q-blk})')
            for (acc, E) in ((Vc, Ec), (Vs, Es)):
                cin = '0' if q == 0 else v(acc+4*blk,4)
                A(f'{MF} {v(acc+4*blk,4)}, {v(Q+8*q+4*blk,4)}, {v(E+4*q,4)}, {cin}')
    dump(32, Vc, 16, 1)
    for (acc, B) in ((Vc, BVc), (Vs, BVs)):
        for r in range(4):
            A(f'v_cvt_pk_f16_f32 {v(B+r)}, {v(acc+2*r)}, {v(acc+2*r+1)}')
    A(f'''
    s_cmp_eq_u32 {s(sSpec)}, 0
    s_cbranch_scc1 HSPEC
    ''')
    for mb in range(2): A(f'{MF} {v(CC+4*mb,4)}, {v(Hc+4*mb,4)}, {v(BVc,4)}, 0')
    for mb in range(2): A(f'{MF} {v(SS+4*mb,4)}, {v(Hs+4*mb,4)}, {v(BVs,4)}, 0')
    A('H_DONE:')
    dump(36, CC, 16, 1)
    U1 = T + 16; U2 = T + 24
    for p in range(4):
        A(f'v_pk_add_f32 {v(U1+2*p,2)}, {v(CC+2*p,2)}, {v(SS+2*p,2)} neg_lo:[0,1] neg_hi:[0,1]')
        A(f'v_pk_add_f32 {v(U2+2*p,2)}, {v(CC+2*p,2)}, {v(SS+2*p,2)}')
    for p in range(4):
        for k, U, M in ((0, U1, None), (1, U2, M2), (2, U2, M3), (3, U1, M4)):
            if p == 0 and M is not None:
                A(f'v_pk_fma_f32 {v(X[k],2)}, {v(U,2)}, {v(M,2)}, {v(X[k],2)}')
            else:
                A(f'v_pk_add_f32 {v(X[k]+2*p,2)}, {v(X[k]+2*p,2)}, {v(U+2*p,2)}')
    dump(2, X[0], 16, 2); dump(3, X[2], 16, 2)
    stamp(6)
    A(f'''
    s_cmp_eq_u32 {s(sLay)}, 3
    s_cbranch_scc1 FINAL
    ''')
    Sa = [T + 2 * k for k in range(4)]; Qa = [T + 8 + 2 * k for k in range(4)]
    for k in range(4):
        A(f'v_pk_add_f32 {v(Sa[k],2)}, {v(X[k],2)}, {v(X[k]+2,2)}')
        A(f'v_pk_mul_f32 {v(Qa[k],2)}, {v(X[k],2)}, {v(X[k],2)}')
    for p in range(1, 4):
        for k in range(4):
            if p > 1: A(f'v_pk_add_f32 {v(Sa[k],2)}, {v(Sa[k],2)}, {v(X[k]+2*p,2)}')
            A(f'v_pk_fma_f32 {v(Qa[k],2)}, {v(X[k]+2*p,2)}, {v(X[k]+2*p,2)}, {v(Qa[k],2)}')
    A(f'''
    s_cmp_lg_u32 {s(sSpec)}, 0
    s_cbranch_scc1 NOSWAP
    s_mov_b64 exec, {s(sRho,2)}
    v_swap_b32 {v(Sa[2])}, {v(Sa[3])}
    v_swap_b32 {v(Sa[2]+1)}, {v(Sa[3]+1)}
    v_swap_b32 {v(Qa[2])}, {v(Qa[3])}
    v_swap_b32 {v(Qa[2]+1)}, {v(Qa[3]+1)}
    s_mov_b64 exec, -1
    NOSWAP:
    v_pk_add_f32 {v(Sa[0],2)}, {v(Sa[0],2)}, {v(Sa[2],2)}
    v_pk_add_f32 {v(Sa[1],2)}, {v(Sa[1],2)}, {v(Sa[3],2)}
    v_pk_add_f32 {v(Qa[0],2)}, {v(Qa[0],2)}, {v(Qa[2],2)}
    v_pk_add_f32 {v(Qa[1],2)}, {v(Qa[1],2)}, {v(Qa[3],2)}
    v_add_f32 {v(Sa[0])}, {v(Sa[0])}, {v(Sa[0]+1)}
    v_add_f32 {v(Sa[1])}, {v(Sa[1])}, {v(Sa[1]+1)}
    v_add_f32 {v(Qa[0])}, {v(Qa[0])}, {v(Qa[0]+1)}
    v_add_f32 {v(Qa[1])}, {v(Qa[1])}, {v(Qa[1]+1)}
    v_permlane32_swap_b32 {v(Sa[0])}, {v(Sa[1])}
    v_permlane32_swap_b32 {v(Qa[0])}, {v(Qa[1])}
    v_add_f32 {v(Sa[0])}, {v(Sa[0])}, {v(Sa[1])}
    v_add_f32 {v(Qa[0])}, {v(Qa[0])}, {v(Qa[1])}
    v_permlane16_swap_b32 {v(Sa[0])}, {v(Qa[0])}
    s_cmp_eq_u32 {s(sFast)}, 0
    s_mov_b32 {s(sCnt)}, {BOUND}
    v_add_f32 {v(Sa[0])}, {v(Sa[0])}, {v(Qa[0])}
    s_cbranch_scc1 SSLOW
    buffer_store_dword {v(Sa[0])}, {v(vSout)}, {s(sW,4)}, {s(sSb)} offen
    ''')
    stamp(7)
    if OPT['aw'] & 1: A('s_waitcnt vmcnt(0)')
    A('SPOLL:')
    G4 = T + 16
    for j in range(4):
        A(f'buffer_load_dwordx4 {v(G4+4*j,4)}, {v(vSin)}, {s(sW,4)}, {s(sSb)} offen offset:{1024*j} sc1')
    A('s_waitcnt vmcnt(0)')
    maxall(range(G4, G4 + 16), vt, vt2)
    poll_tail('SPOLL', 2, vt)
    stamp(8)
    if OPT['stamps']:
        A(f's_sub_u32 {s(56+2*10)}, {BOUND}, {s(sCnt)}')
        A(f's_mul_i32 {s(sLn)}, {s(sLay)}, 12')
    stamp_flush(vStamp, 11, 8, sLane=sLn)
    e, f_, u1, u2 = G4, G4 + 1, G4 + 4, G4 + 5
    A(f'''
    v_pk_add_f32 {v(G4,2)}, {v(G4,2)}, {v(G4+4,2)}
    v_pk_add_f32 {v(G4+2,2)}, {v(G4+2,2)}, {v(G4+6,2)}
    v_pk_add_f32 {v(G4+8,2)}, {v(G4+8,2)}, {v(G4+12,2)}
    v_pk_add_f32 {v(G4+10,2)}, {v(G4+10,2)}, {v(G4+14,2)}
    v_pk_add_f32 {v(G4,2)}, {v(G4,2)}, {v(G4+8,2)}
    v_pk_add_f32 {v(G4+2,2)}, {v(G4+2,2)}, {v(G4+10,2)}
    v_permlane32_swap_b32 {v(G4)}, {v(G4+2)}
    v_permlane32_swap_b32 {v(G4+1)}, {v(G4+3)}
    v_pk_add_f32 {v(G4,2)}, {v(G4,2)}, {v(G4+2,2)}
    v_mov_b64 {v(u1,2)}, {v(G4,2)}
    v_permlane16_swap_b32 {v(e)}, {v(u1)}
    v_permlane16_swap_b32 {v(f_)}, {v(u2)}
    v_pk_add_f32 {v(G4,2)}, {v(G4,2)}, {v(u1,2)}
    v_mul_f32 {v(e)}, {f32(1/1024)}, {v(e)}
    v_mul_f32 {v(f_)}, {f32(1/1024)}, {v(f_)}
    v_fma_f32 {v(f_)}, -{v(e)}, {v(e)}, {v(f_)}
    v_max_f32 {v(f_)}, 0, {v(f_)}
    v_add_f32 {v(f_)}, {f32(1e-5)}, {v(f_)}
    v_rsq_f32 {v(rR)}, {v(f_)}
    v_mul_f32 {v(cR)}, {v(e)}, {v(rR)}
    v_mov_b32 {v(rM)}, {v(rR)}
    v_mov_b32 {v(cM)}, {v(cR)}
    v_permlane32_swap_b32 {v(rR)}, {v(rM)}
    v_permlane32_swap_b32 {v(cR)}, {v(cM)}
    s_add_u32 {s(sLay)}, {s(sLay)}, 1
    s_add_u32 {s(sXb)}, {s(sXb)}, {XSTR}
    s_add_u32 {s(sXb2)}, {s(sXb2)}, {XSTR}
    s_add_u32 {s(sSb)}, {s(sSb)}, {SSTR}
    s_branch LOOP
    ''')

    A('FINAL:')
    Pk = T
    A(f'''
    s_cmp_eq_u32 {s(sFast)}, 0
    s_cselect_b32 {s(t3)}, {FB}, {0 if OPT['fa'] else FB}
    s_cbranch_scc1 FSLOW
    ''')
    def fstore(m):
        for k in range(4):
            for r in range(4):
                A(f'v_cvt_pk_bf16_f32 {v(Pk+4*k+r)}, {v(X[k]+2*r)}, {v(X[k]+2*r+1)}')
            A(f'buffer_store_dwordx4 {v(Pk+4*k,4)}, {v(vFout)}, {s(sW,4)}, {s(t3)} offen offset:{256*k}{m}')
    fstore('')
    A('F_DONE:')
    vLin, vRep, vMir, vA0, vC0, vD0, vOa = [Ga + j for j in range(7)]
    stamp(7)
    Fd = T + 16
    A(f's_mov_b32 {s(sCnt)}, {BOUND}')
    if OPT['aw'] & 2: A('s_waitcnt vmcnt(0)')
    if OPT['fp']: A(f's_sleep {OPT["fp"]}')
    stamp(13)
    A(f"""
    FPOLL:
    buffer_load_dwordx4 {v(Fd,4)}, {v(vFin)}, {s(sW,4)}, {s(t3)} offen sc1
    buffer_load_dwordx4 {v(Fd+4,4)}, {v(vFin)}, {s(sW,4)}, {s(t3)} offen offset:256 sc1
    buffer_load_dwordx4 {v(Fd+8,4)}, {v(vFin)}, {s(sW,4)}, {s(sFo2)} offen sc1
    buffer_load_dwordx4 {v(Fd+12,4)}, {v(vFin)}, {s(sW,4)}, {s(sFo3)} offen sc1
    s_waitcnt vmcnt(0)
    """)
    maxall(range(Fd, Fd + 16), vt, vt2)
    poll_tail('FPOLL', 4, vt)
    stamp(8)
    if OPT['stamps']: A(f's_sub_u32 {s(56+2*10)}, {BOUND}, {s(sCnt)}')
    for k in range(4):
        for c in range(8):
            ad, off = slot_addr(k, c, vRep, vMir, vA0, vC0, vD0)
            A(f'ds_write_b16{"_d16_hi" if c & 1 else ""} {v(ad)}, {v(Fd+4*k+c//2)} offset:{off}')
    A('s_waitcnt lgkmcnt(0)')
    for j, off in enumerate((0, 1088, ROWB, ROWB + 1088)):
        A(f'ds_read_b128 {v(Pk+4*j,4)}, {v(vLin)} offset:{off}')
    for j in range(4):
        A(f's_waitcnt lgkmcnt({3-j})')
        A(f'buffer_store_dwordx4 {v(Pk+4*j,4)}, {v(vOa)}, {s(sO,4)}, {s(sR if j < 2 else sM)} offen offset:{1024*(j&1)}' + ['', ' sc1', ' nt', ' sc0 sc1'][OPT['om']])
    stamp(11)
    if OPT['stamps']: A('s_waitcnt vmcnt(0)')
    stamp(12)
    stamp_flush(vStamp, 14, 44)
    stamp_store(vStamp, vL, sW, 1, sWv, t0, t1, vt)
    if OPT['spin']:
        A(f"""
        SPIN:
        s_memrealtime s[90:91]
        s_waitcnt lgkmcnt(0)
        s_sub_u32 {s(t0)}, s90, s88
        s_cmp_lt_u32 {s(t0)}, {OPT['spin']}
        s_cbranch_scc1 SPIN
        """)
    if OPT['stamps'] == 2:
        sel = [None, 0, 0, 2, 3, 4, 6, 8+2, 8+4, 8+8, 20+4, 20+8, 32+8, 44+4, 44+8, 44+12]
        A(f'v_mov_b32 {v(vt)}, 0')
        for k, src in enumerate(sel):
            if src is None: continue
            A(f'v_readlane_b32 {s(t0)}, {v(vStamp)}, {src}')
            if k == 1: A(f's_not_b32 {s(t0)}, {s(t0)}')
            A(f'v_writelane_b32 {v(vt)}, {s(t0)}, {k}')
        A(f"""
        v_lshlrev_b32 {v(vt2)}, 2, {v(vL)}
        s_mov_b64 exec, 0xffff
        buffer_atomic_umax {v(vt)}, {v(vt2)}, {s(sD,4)}, 0 offen
        s_mov_b64 exec, -1
        """)
    A(f'''
    s_lshl_b32 {s(t0)}, {s(sN)}, 2
    s_or_b32 {s(t0)}, {s(t0)}, {s(sWv)}
    s_cmp_lg_u32 {s(t0)}, 0
    s_cbranch_scc1 NOTAG
    v_mov_b32 {v(vt)}, {s(sT)}
    v_mov_b32 {v(vt2)}, {EOFF}
    s_mov_b64 exec, 1
    buffer_store_dword {v(vt)}, {v(vt2)}, {s(sW,4)}, 0 offen sc1
    NOTAG:
    s_cmp_eq_u32 {s(sErr)}, 0
    s_cbranch_scc1 MAIN_END
    v_mov_b32 {v(vt)}, {s(sErr)}
    v_mov_b32 {v(vt2)}, 0
    s_mov_b64 exec, 1
    buffer_atomic_or {v(vt)}, {v(vt2)}, {s(sD,4)}, 0 offen
    MAIN_END:
    s_endpgm
    ''')

    A('GCOL0:')
    cls = T + 15
    B0 = T + 32
    for cb in range(2):
        A(f'''
        v_lshrrev_b32 {v(a0)}, 1, {v(vI)}
        v_cvt_f32_u32 {v(fr)}, {v(a0)}
        v_mul_f32 {v(fr)}, {f32(1/32)}, {v(fr)}
        v_add_f32 {v(fr)}, {'0' if cb == 0 else f32(0.25)}, {v(fr)}
        v_and_b32 {v(a1)}, 1, {v(vI)}
        v_lshrrev_b32 {v(cls)}, 1, {v(vG)}
        v_cmp_eq_u32 vcc, {v(a1)}, {v(cls)}
        v_mov_b32 {v(a0)}, {f32(math.sqrt(0.5))}
        v_cndmask_b32 {v(amp)}, 0, {v(a0)}, vcc
        v_mov_b32 {v(ph)}, {f32(0.125)}
        v_mov_b32 {v(voff)}, 0
        ''')
        if cb == 0:
            A(f'''
            s_mov_b32 exec_lo, 0x00030003
            s_mov_b32 exec_hi, 0x00030003
            v_mov_b32 {v(fr)}, 0.5
            v_cndmask_b32 {v(amp)}, 0.5, 0, vcc
            v_cvt_f32_u32 {v(ph)}, {v(cls)}
            v_mul_f32 {v(voff)}, {v(ph)}, {v(amp)}
            v_mul_f32 {v(ph)}, {f32(0.25)}, {v(ph)}
            s_mov_b64 exec, -1
            ''')
        A(f'''
        ; d0/32 = 8 (g&1) + 0.5 (g>>1)
        v_and_b32 {v(a0)}, 1, {v(vG)}
        v_lshl_add_u32 {v(a0)}, {v(a0)}, 4, {v(cls)}
        v_cvt_f32_u32 {v(a0)}, {v(a0)}
        v_mul_f32 {v(a0)}, 0.5, {v(a0)}
        v_mul_f32 {v(a0)}, {v(a0)}, {v(fr)}
        v_cmp_eq_u32 {s(sG0,2)}, 0, {v(vG)}
        v_mul_f32 {v(Z)}, {f32(16.0)}, {v(fr)}
        v_cndmask_b32 {v(Z)}, 0, {v(Z)}, {s(sG0,2)}
        v_sub_f32 {v(arg)}, {v(a0)}, {v(ph)}
        v_add_f32 {v(arg2)}, {v(arg)}, {v(Z)}
        v_cos_f32 {v(B0)}, {v(arg)}
        ''')
        cos_row(Ga + 4 * cb, fr, scaled=True, first=arg2)
        A(f'''
        v_fma_f32 {v(B0)}, {v(B0)}, {v(amp)}, {v(voff)}
        v_cvt_pk_f16_f32 {v(B0)}, {v(B0)}, {v(B0)}
        s_mov_b32 {s(t0)}, 0xffff
        v_bfi_b32 {v(Ga2+4*cb)}, {s(t0)}, {v(B0)}, {v(Ga+4*cb)}
        v_mov_b32 {v(Ga2+4*cb+1)}, {v(Ga+4*cb+1)}
        v_mov_b64 {v(Ga2+4*cb+2,2)}, {v(Ga+4*cb+2,2)}
        v_sub_f32 {v(arg)}, 0, {v(a0)}
        v_sub_f32 {v(arg)}, {v(arg)}, {v(ph)}
        v_sub_f32 {v(stp)}, 0, {v(fr)}
        v_add_f32 {v(arg2)}, {v(arg)}, {v(Z)}
        v_cos_f32 {v(B0)}, {v(arg2)}
        ''')
        cos_row(Gb + 4 * cb, stp, scaled=True)
        A(f'''
        v_fma_f32 {v(B0)}, {v(B0)}, {v(amp)}, {v(voff)}
        v_cvt_pk_f16_f32 {v(B0)}, {v(B0)}, {v(B0)}
        v_bfi_b32 {v(Gb2+4*cb)}, {s(t0)}, {v(B0)}, {v(Gb+4*cb)}
        v_mov_b32 {v(Gb2+4*cb+1)}, {v(Gb+4*cb+1)}
        v_mov_b64 {v(Gb2+4*cb+2,2)}, {v(Gb+4*cb+2,2)}
        ''')
    A('s_branch GCOL_DONE')
    A(f'''
    GROW0:
    v_cmp_le_u32 vcc, 2, {v(vG)}
    v_sub_f32 {v(stp)}, 0, {v(fr)}
    v_cndmask_b32 {v(stp)}, {v(fr)}, {v(stp)}, vcc
    v_sub_f32 {v(a0)}, {f32(48.0)}, {v(gf)}
    v_cndmask_b32 {v(a0)}, {v(gf)}, {v(a0)}, vcc
    v_fma_f32 {v(arg)}, {v(fr)}, {v(a0)}, -{v(ph)}
    v_cmp_eq_u32 {s(sG0,2)}, 2, {v(vG)}
    v_mul_f32 {v(Z)}, {f32(16.0)}, {v(fr)}
    v_cndmask_b32 {v(Z)}, 0, {v(Z)}, {s(sG0,2)}
    v_sub_f32 {v(arg2)}, {v(arg)}, {v(Z)}
    ''')
    cos_row(GR[0], stp, first=arg2)
    A(f'''
    v_sub_f32 {v(a0)}, {f32(47.0)}, {v(gf)}
    v_cndmask_b32 {v(a0)}, {v(gf)}, {v(a0)}, vcc
    v_fma_f32 {v(arg)}, {v(fr)}, {v(a0)}, -{v(ph)}
    ''')
    cos_row(GR[2], stp)
    A('s_branch GROW_DONE')
    A('COL0:')
    for r in range(4):
        A(f'v_cndmask_b32 {v(PC+r)}, {v(PB+r)}, {v(PA+r)}, {s(sRho,2)}')
        A(f'v_cndmask_b32 {v(PD+r)}, {v(PA+r)}, {v(PB+r)}, {s(sRho,2)}')
    z = T + 64
    A(f'''
    s_cmp_lg_u32 {s(sSpec)}, 0
    s_cbranch_scc1 COL0B
    s_mov_b64 exec, 1
    v_fma_f32 {v(z)}, {v(X[0])}, {v(rR)}, -{v(cR)}
    v_fma_f32 {v(z+1)}, {v(X[3])}, {v(rR)}, -{v(cR)}
    v_fma_f32 {v(z+2)}, {v(X[1])}, {v(rM)}, -{v(cM)}
    v_fma_f32 {v(z+3)}, {v(X[2])}, {v(rM)}, -{v(cM)}
    v_add_f32 {v(z)}, {v(z)}, {v(z)}
    v_add_f32 {v(z+1)}, {v(z+1)}, {v(z+1)}
    v_add_f32 {v(z+2)}, {v(z+2)}, {v(z+2)}
    v_add_f32 {v(z+3)}, {v(z+3)}, {v(z+3)}
    v_cvt_pk_f16_f32 {v(PA)}, {v(z)}, {v(pA+1)}
    v_cvt_pk_f16_f32 {v(PC)}, {v(z+1)}, {v(pA+1)}
    v_cvt_pk_f16_f32 {v(PB)}, {v(z+2)}, {v(pB+1)}
    v_cvt_pk_f16_f32 {v(PD)}, {v(z+3)}, {v(pB+1)}
    s_mov_b64 exec, -1
    COL0B:
    ''')
    for cb in range(2): A(f'{MF} {v(W+4*cb,4)}, {v(PA,4)}, {v(Ga+4*cb,4)}, 0')
    for cb in range(2): A(f'{MF} {v(W+8+4*cb,4)}, {v(PB,4)}, {v(Ga2+4*cb,4)}, 0')
    for cb in range(2): A(f'{MF} {v(W+4*cb,4)}, {v(PC,4)}, {v(Gb+4*cb,4)}, {v(W+4*cb,4)}')
    for cb in range(2): A(f'{MF} {v(W+8+4*cb,4)}, {v(PD,4)}, {v(Gb2+4*cb,4)}, {v(W+8+4*cb,4)}')
    A('s_branch COL_DONE')
    A(f"""
    XTRA:
    s_bitset0_b32 {s(sPm)}, {s(sLay)}
    s_cmp_ge_u32 {s(sLay)}, 2
    s_cbranch_scc1 XT23
    s_add_u32 {s(t0)}, {s(sXb)}, {2*XSTR}
    buffer_store_dwordx4 {v(vOne,4)}, {v(vXout)}, {s(sW,4)}, {s(t0)} offen sc1
    buffer_store_dwordx4 {v(vOne,4)}, {v(vXout)}, {s(sW,4)}, {s(t0)} offen offset:512 sc1
    s_cmp_eq_u32 {s(sLay)}, 1
    s_cbranch_scc1 XT1
    s_cmp_eq_u32 {s(sFast)}, {0 if OPT['pt'] & 2 else s(sFast)}
    s_cbranch_scc1 XT0S
    s_lshl_b32 {s(t0)}, {s(sL)}, 10
    s_min_u32 {s(t2)}, {s(sWv)}, 2
    s_mul_i32 {s(t2)}, {s(t2)}, {SSTR}
    s_add_u32 {s(t2)}, {s(t2)}, {s(t0)}
    s_add_u32 {s(t2)}, {s(t2)}, {SB}
    s_add_u32 {s(t2)}, {s(t2)}, {s(sGb)}
    s_mov_b64 exec, 0xffff
    buffer_load_dword {v(vDum)}, {v(vPt)}, {s(sW,4)}, {s(t2)} offen
    s_mov_b64 exec, -1
    {'' if OPT['px'] else 's_waitcnt vmcnt(3)'}
    s_branch XGO
    XT0S:
    {'' if OPT['px'] else 's_waitcnt vmcnt(2)'}
    s_branch XGO
    XT1:
    s_mul_i32 {s(t0)}, {s(sTau)}, {6144 if OPT['fa'] == 2 else 4096}
    s_add_u32 {s(t0)}, {s(t0)}, {s(sGb)}
    s_cmp_eq_u32 {s(sFast)}, 0
    s_cselect_b32 {s(t2)}, {FB}, {0 if OPT['fa'] else FB}
    s_add_u32 {s(t0)}, {s(t0)}, {s(t2)}
    v_lshlrev_b32 {v(vt)}, 4, {v(vL)}
    """)
    if OPT['fa'] == 3:
        A('s_cbranch_scc1 XT1X')
        A(f's_cmp_eq_u32 {s(sFast)}, 0')
        A('s_cbranch_scc1 XT1X')
        for k in range(4):
            A(f'buffer_store_dwordx4 {v(vOne,4)}, {v(vt)}, {s(sW,4)}, {s(t0)} offen offset:{1024*k}')
        A('s_branch XGO')
        A('XT1X:')
    for k in range(4):
        A(f'buffer_store_dwordx4 {v(vOne,4)}, {v(vt)}, {s(sW,4)}, {s(t0)} offen offset:{1024*k} sc1')
    if OPT['fa'] == 2:
        A(f's_add_u32 {s(t0)}, {s(t0)}, 4096')
        for k in range(2):
            A(f'buffer_store_dwordx4 {v(vOne,4)}, {v(vt)}, {s(sW,4)}, {s(t0)} offen offset:{1024*k} sc1')
    A(f"""
    {'' if OPT['px'] else 's_waitcnt vmcnt(6)'}
    s_branch XGO
    XT23:
    s_cmp_eq_u32 {s(sLay)}, 3
    s_cbranch_scc1 XT3
    s_cmp_eq_u32 {s(sFast)}, {0 if OPT['pt'] & 4 else s(sFast)}
    s_cbranch_scc1 XGO
    s_lshl_b32 {s(t0)}, {s(sTau)}, 12
    s_add_u32 {s(t0)}, {s(t0)}, {0 if OPT['fa'] else FB}
    s_add_u32 {s(t0)}, {s(t0)}, {s(sGb)}
    buffer_load_dword {v(vDum)}, {v(vPt)}, {s(sW,4)}, {s(t0)} offen
    {'' if OPT['px'] else 's_waitcnt vmcnt(1)'}
    s_branch XGO
    XT3:
    s_mov_b32 {s(sPm)}, 0
    """)
    relayout_addrs(vL, sBase, vLin, vRep, vMir, vA0, vC0, vD0, vt, vt2, sm)
    A(f"""
    s_cmp_eq_u32 {s(sR)}, 0
    s_cselect_b32 {s(t0)}, 256, 0
    s_add_u32 {s(sFo2)}, {s(t0)}, 512
    s_sub_u32 {s(sFo3)}, 768, {s(t0)}
    s_cmp_eq_u32 {s(sFast)}, 0
    s_cselect_b32 {s(t0)}, {FB}, {0 if OPT['fa'] else FB}
    s_add_u32 {s(sFo2)}, {s(sFo2)}, {s(t0)}
    s_add_u32 {s(sFo3)}, {s(sFo3)}, {s(t0)}
    v_lshlrev_b32 {v(vOa)}, 4, {v(vL)}
    {'s_branch XGO3' if OPT['px'] else 's_waitcnt vmcnt(0)'}
    s_branch XGO
    """)
    A(f'''
    XCHK:
    buffer_load_dwordx2 {v(vXf,2)}, {v(vXa)}, {s(sW,4)}, {s(sXf)} offen sc1
    s_waitcnt vmcnt(0)
    v_cmp_ne_u32 vcc, {s(sT)}, {v(vXf)}
    s_cbranch_vccz XOK
    s_sub_u32 {s(sCnt)}, {s(sCnt)}, 1
    s_cbranch_scc0 XCHK
    s_or_b32 {s(sErr)}, {s(sErr)}, 32
    HSLOW:
    s_mov_b32 {s(sFast)}, 0
    s_mov_b32 {s(sPm)}, {15 if OPT['px'] else 11}
    s_add_u32 {s(sHa)}, {s(sHa)}, {H0S - H0B}
    s_add_u32 {s(sHb)}, {s(sHb)}, {H0S - H0B}
    s_add_u32 {s(sHin)}, {s(sHin)}, {H0S - H0B}
    s_mov_b32 {s(sCnt)}, {BOUND}
    ''')
    for h in range(2):
        for t in range(3): hstore(h, t, ' sc1')
    A(f'''
    s_waitcnt vmcnt(0)
    s_branch HPOLL
    SSLOW:
    buffer_store_dword {v(Sa[0])}, {v(vSout)}, {s(sW,4)}, {s(sSb)} offen sc1
    s_waitcnt vmcnt(0)
    s_branch SPOLL
    FSLOW:
    ''')
    fstore(' sc1')
    A('''
    s_waitcnt vmcnt(0)
    s_branch F_DONE
    ''')
    A(f"""
    FLAGS:
    s_mov_b32 {s(sCnt)}, {BOUND}
    s_waitcnt vmcnt(2)
    FLPOLL:
    v_cmp_ne_u32 vcc, {s(sT)}, {v(vFlagD)}
    s_cbranch_vccz CLR_DONE
    buffer_load_dword {v(vFlagD)}, {v(vFlag)}, {s(sW,4)}, {s(sFl)} offen sc1
    s_sub_u32 {s(sCnt)}, {s(sCnt)}, 1
    s_waitcnt vmcnt(0)
    s_cbranch_scc0 FLPOLL
    s_or_b32 {s(sErr)}, {s(sErr)}, 16
    s_branch CLR_DONE
    """)
    A('HSPEC:')
    for r in range(4):
        A(f'v_cndmask_b32 {v(BVo+r)}, 0, {v(BVs+r)}, {s(sRho,2)}')
        A(f'v_cndmask_b32 {v(BVs+r)}, {v(BVs+r)}, 0, {s(sRho,2)}')
    for mb in range(2): A(f'{MF} {v(CC+4*mb,4)}, {v(Hc+4*mb,4)}, {v(BVc,4)}, 0')
    for mb in range(2): A(f'{MF} {v(SS+4*mb,4)}, {v(Hs+4*mb,4)}, {v(BVs,4)}, 0')
    for mb in range(2): A(f'{MF} {v(SS+4*mb,4)}, {v(Hc+4*mb,4)}, {v(BVo,4)}, {v(SS+4*mb,4)}')
    A('s_branch H_DONE')
    A('EHGEN:')
    tf = T + 0; t32 = T + 1; an = T + 2; cs = T + 4; sn = T + 5; e0 = T + 6; e1 = T + 7; gfl = T + 8; an1 = T + 9; an2 = T + 10
    sgn = T + 11
    A(f'''
    s_lshr_b32 {s(t0)}, {s(sWv)}, 1
    s_and_b32 {s(t1)}, {s(sWv)}, 1
    s_lshl_b32 {s(t2)}, {s(t0)}, 5
    s_add_u32 {s(t2)}, {s(t2)}, {s(sK)}
    s_lshl_b32 {s(t3)}, {s(t1)}, 10
    s_add_u32 {s(t2)}, {s(t2)}, {s(t3)}
    s_add_u32 {s(t3)}, {s(t3)}, 16
    s_lshl_b32 {s(t1)}, {s(t1)}, 5
    s_cmp_eq_u32 {s(t0)}, 1
    s_cselect_b32 {s(t1)}, {s(t3)}, {s(t1)}
    s_cselect_b32 {s(sEA)}, 0, {f32(1/16)}
    s_cselect_b32 {s(sEC)}, {f32(1/16)}, 0
    s_cmp_eq_u32 {s(sK)}, 0
    s_cselect_b32 {s(t2)}, {s(t1)}, {s(t2)}
    s_cselect_b32 {s(sEA)}, {s(sEA)}, {f32(1/16)}
    s_cselect_b32 {s(sEC)}, {s(sEC)}, 0
    s_cselect_b32 {s(sEB)}, 0, {f32(-1/16)}
    s_cselect_b32 {s(sEnB)}, 0, {f32(1/16)}
    v_lshlrev_b32 {v(tf)}, 6, {v(vI)}
    v_add_u32 {v(tf)}, {s(t2)}, {v(tf)}
    v_cvt_f32_u32 {v(tf)}, {v(tf)}
    v_cvt_f32_u32 {v(gfl)}, {v(vG)}
    v_mul_f32 {v(tf)}, {f32(1/2048)}, {v(tf)}
    v_mul_f32 {v(t32)}, {f32(32.0)}, {v(tf)}
    v_cmp_eq_u32 {s(sG0,2)}, 0, {v(vG)}
    s_mov_b32 {s(t0)}, 0x80008000
    ''')
    def e_pair(ang, dc, ds_):
        A(f'''
        v_cos_f32 {v(cs)}, {v(ang)}
        v_sin_f32 {v(sn)}, {v(ang)}
        v_mul_f32 {v(e0)}, {s(sEA)}, {v(cs)}
        v_mul_f32 {v(e1)}, {s(sEC)}, {v(cs)}
        v_fmac_f32 {v(e1)}, {s(sEB)}, {v(sn)}
        v_cvt_pk_f16_f32 {v(dc)}, {v(e0)}, {v(e1)}
        v_mul_f32 {v(e0)}, {s(sEA)}, {v(sn)}
        v_mul_f32 {v(e1)}, {s(sEC)}, {v(sn)}
        v_fmac_f32 {v(e1)}, {s(sEnB)}, {v(cs)}
        v_cvt_pk_f16_f32 {v(ds_)}, {v(e0)}, {v(e1)}
        ''')
    for q in range(4):
        if q == 0:
            A(f'''
            v_mul_f32 {v(an)}, {v(tf)}, {v(gfl)}
            v_mul_f32 {v(an1)}, 0.5, {v(t32)}
            v_cndmask_b32 {v(an1)}, {v(t32)}, {v(an1)}, {s(sG0,2)}
            v_add_f32 {v(an1)}, {v(an1)}, {v(an)}
            v_cndmask_b32 {v(an2)}, {v(an)}, {v(t32)}, {s(sG0,2)}
            v_mov_b32 {v(sgn)}, {s(t0)}
            v_cndmask_b32 {v(sgn)}, {v(sgn)}, 0, {s(sG0,2)}
            ''')
            e_pair(an, Ec, Es); e_pair(an1, Ec + 1, Es + 1); e_pair(an2, Ec + 2, Es + 2)
            A(f'''
            v_xor_b32 {v(Es+2)}, {v(sgn)}, {v(Es+2)}
            v_mov_b32 {v(Ec+3)}, {v(Ec+1)}
            v_xor_b32 {v(Es+3)}, {s(t0)}, {v(Es+1)}
            ''')
        else:
            A(f'''
            v_fmac_f32 {v(an)}, 4.0, {v(tf)}
            v_add_f32 {v(an1)}, {v(an)}, {v(t32)}
            ''')
            e_pair(an, Ec + 4 * q, Es + 4 * q); e_pair(an1, Ec + 4 * q + 1, Es + 4 * q + 1)
            A(f'''
            v_mov_b64 {v(Ec+4*q+2,2)}, {v(Ec+4*q,2)}
            v_xor_b32 {v(Es+4*q+2)}, {s(t0)}, {v(Es+4*q)}
            v_xor_b32 {v(Es+4*q+3)}, {s(t0)}, {v(Es+4*q+1)}
            ''')
    A(f'''
    s_and_b32 exec_lo, {s(sRho)}, 0x00010000
    s_mov_b32 exec_hi, exec_lo
    ''')
    for r in range(16):
        A(f'v_mov_b32 {v(Ec+r)}, 0')
        A(f'v_mov_b32 {v(Es+r)}, 0xac00')
    A('s_mov_b64 exec, -1')
    hA = T + 12; hB = T + 13; hC = T + 14; hO = T + 15; ef = T + 16; ls = T + 18; mu = T + 22; sg = T + 23; hnB = T + 24
    A(f'''
    v_lshrrev_b32 {v(mu)}, 2, {v(vI)}
    v_lshlrev_b32 {v(mu)}, 3, {v(mu)}
    v_and_b32 {v(e0)}, 3, {v(vI)}
    v_add_u32 {v(mu)}, {v(mu)}, {v(e0)}
    v_lshlrev_b32 {v(ef)}, 5, {v(mu)}
    v_add_u32 {v(ef)}, {s(sL)}, {v(ef)}
    v_add_u32 {v(ef+1)}, 128, {v(ef)}
    v_mov_b32 {v(hA)}, {f32(16.0)}
    v_mov_b32 {v(hB)}, {f32(-16.0)}
    v_mov_b32 {v(hC)}, 0
    v_mov_b32 {v(hO)}, 0
    s_cmp_eq_u32 {s(sL)}, 0
    s_cselect_b32 exec_lo, 0xff00ff00, 0
    s_mov_b32 exec_hi, exec_lo
    v_subrev_u32 {v(ef)}, {512-16}, {v(ef)}
    v_subrev_u32 {v(ef+1)}, {512-16}, {v(ef+1)}
    v_mov_b32 {v(hA)}, 0
    v_mov_b32 {v(hB)}, 0
    v_mov_b32 {v(hC)}, {f32(16.0)}
    s_cselect_b32 exec_lo, 0x00ff00ff, 0
    s_mov_b32 exec_hi, exec_lo
    v_mov_b32 {v(hB)}, 0
    v_mov_b32 {v(hO)}, {f32(-16.0)}
    s_cselect_b32 exec_lo, 0x00010001, 0
    s_mov_b32 exec_hi, exec_lo
    v_mov_b32 {v(ef)}, 512
    s_mov_b64 exec, -1
    v_cvt_f32_u32 {v(ef)}, {v(ef)}
    v_cvt_f32_u32 {v(ef+1)}, {v(ef+1)}
    v_sub_f32 {v(hnB)}, 0, {v(hB)}
    v_mul_f32 {v(ef)}, {f32(1/1024)}, {v(ef)}
    v_mul_f32 {v(ef+1)}, {f32(1/1024)}, {v(ef+1)}
    v_add_f32 {v(ls)}, {v(gfl)}, {v(gfl)}
    v_add_f32 {v(ls+1)}, 1.0, {v(ls)}
    v_add_f32 {v(ls+2)}, {f32(8.0)}, {v(ls)}
    v_add_f32 {v(ls+3)}, {f32(9.0)}, {v(ls)}
    ''')
    for mb in range(2):
        for d in range(4):
            A(f'''
            v_mul_f32 {v(an)}, {v(ef+mb)}, {v(ls+d)}
            v_cos_f32 {v(cs)}, {v(an)}
            v_sin_f32 {v(sn)}, {v(an)}
            v_fma_f32 {v(e0)}, {v(hA)}, {v(cs)}, {v(hO)}
            v_mul_f32 {v(e1)}, {v(hC)}, {v(cs)}
            v_fmac_f32 {v(e1)}, {v(hB)}, {v(sn)}
            v_cvt_pk_f16_f32 {v(Hc+4*mb+d)}, {v(e0)}, {v(e1)}
            v_mul_f32 {v(e0)}, {v(hA)}, {v(sn)}
            v_mul_f32 {v(e1)}, {v(hC)}, {v(sn)}
            v_fmac_f32 {v(e1)}, {v(hnB)}, {v(cs)}
            v_cvt_pk_f16_f32 {v(Hs+4*mb+d)}, {v(e0)}, {v(e1)}
            ''')
    A(f'''
    v_and_b32 {v(sg)}, 1, {v(vI)}
    v_cvt_f32_u32 {v(sg)}, {v(sg)}
    v_fma_f32 {v(sg)}, {v(sg)}, -2.0, 1.0
    v_add_f32 {v(e0)}, {v(hnB)}, {v(hO)}
    v_fma_f32 {v(e0)}, -{v(hO)}, {v(sg)}, {v(e0)}
    v_fma_f32 {v(e1)}, {v(hnB)}, {v(sg)}, {v(hC)}
    v_fma_f32 {v(cs)}, {v(hC)}, {v(sg)}, {v(hnB)}
    v_mul_f32 {v(sn)}, {v(hnB)}, {v(sg)}
    s_mov_b64 exec, 0xffff
    v_cvt_pk_f16_f32 {v(Hc)}, {v(e0)}, {v(e1)}
    v_cvt_pk_f16_f32 {v(Hc+4)}, {v(e0)}, {v(e1)}
    v_cvt_pk_f16_f32 {v(Hs)}, {v(cs)}, {v(sn)}
    v_cvt_pk_f16_f32 {v(Hs+4)}, {v(cs)}, {v(sn)}
    s_mov_b64 exec, -1
    ''')
    if OPT['debug'] >= 2:
        dump(10, Ga, 16); dump(11, Gb, 16); dump(12, GR[0], 12); dump(13, Ec, 16); dump(14, Es, 16); dump(15, Hc, 16)
    A('s_branch EH_DONE')
    return V.hi

def descriptor(name, nv):
    nv = (nv + 7) // 8 * 8
    return f'''.section .rodata,"a"
.p2align 6
.amdhsa_kernel {name}
  .amdhsa_next_free_vgpr {nv}
  .amdhsa_next_free_sgpr 96
  .amdhsa_accum_offset {nv}
  .amdhsa_group_segment_fixed_size 0
  .amdhsa_kernarg_size 104
  .amdhsa_user_sgpr_count 2
  .amdhsa_user_sgpr_kernarg_segment_ptr 1
  .amdhsa_system_sgpr_workgroup_id_x 1
.end_amdhsa_kernel
'''

hdr = open('cdna_kernels/' + NAME + '.s.ref').read().split('; Override launch')[0]
nv2 = gen_main()
npad = A.pad()
out = hdr
out += f'; @launch grid=(256,1,1) block=(256,1,1) lds={LDS_MAIN}\n'
out += '.amdgcn_target "amdgcn-amd-amdhsa--gfx950"\n.text\n'
out += A.text()
out += descriptor(MAIN, nv2)
open(sys.argv[1], 'w').write(out)
print('vgprs', nv2, 'pad states', npad, 'lines', out.count('\n'))
```

```python
import sys, math
sys.path.insert(0, 'work')
from asmlib import *

NAME = 'interleave_layers__spectral_fnet__spectral_fnet__prompt'
MAIN = NAME + '_kernel'
WS_SIZE = 0x2000000
GSH = 21
H0B, FLG, EOFF, SB, XB, FB, DUMPB = 0, 0x60000, 0x68000, 0x70000, 0x80000, 0x100000, 0x2000000
SSTR, XSTR = 0x4000, 0x20000
HWG, HSL = 24576, 384
LDS_W, LDS_Q, LDS_R = 0, 8192, 16384
ROWB = 2176
LDS_MAIN = LDS_R + 4 * 2 * ROWB
BOUND = 20000
OPT = dict(fa=3, wb=0, ck=1, debug=0, stamps=0, xp=0, sl=0, fp=0, hp=0, spin=0, om=0, slow=0, aw=3, mix=0, pt=22, ps=64, xw=0, hs=128, px=1, rb=0, xm=0, xo=0, hm=0, hl=0)
XF = FLG + 0x800
H0S = 0x140000
for a in sys.argv[2:]:
    k, val = a.split('='); OPT[k] = int(val)

if OPT['debug']: WS_SIZE = 0x10000000
A = Asm()

def wg_indices(sK, sL, sN, sT):
    if OPT['mix']:
        A(f'''
        s_lshr_b32 {s(sK)}, s2, 4
        s_and_b32 {s(sL)}, s2, 15
        s_mov_b32 {s(sN)}, s2
        ''')
        return
    A(f'''
    s_and_b32 {s(sK)}, s2, 7
    s_lshl_b32 {s(sK)}, {s(sK)}, 1
    s_bfe_u32 {s(sT)}, s2, 0x10003
    s_or_b32 {s(sK)}, {s(sK)}, {s(sT)}
    s_lshr_b32 {s(sL)}, s2, 4
    s_lshl_b32 {s(sN)}, {s(sK)}, 4
    s_or_b32 {s(sN)}, {s(sN)}, {s(sL)}
    ''')

def rows_scalar(sK, sTau, sR, sM, t0, t1):
    A(f'''
    s_lshr_b32 {s(t0)}, {s(sTau)}, 5
    s_and_b32 {s(t1)}, {s(sTau)}, 31
    s_lshl_b32 {s(sR)}, {s(t1)}, 6
    s_lshl_b32 {s(sM)}, {s(t0)}, 5
    s_add_u32 {s(sM)}, {s(sM)}, {s(sK)}
    s_cmp_ge_u32 {s(t1)}, 16
    s_cselect_b32 {s(t1)}, -992, 0
    s_cmp_eq_u32 {s(t0)}, 1
    s_cselect_b32 {s(t1)}, 16, {s(t1)}
    s_cmp_eq_u32 {s(sK)}, 0
    s_cselect_b32 {s(sM)}, {s(t1)}, {s(sM)}
    s_add_u32 {s(sR)}, {s(sR)}, {s(sM)}
    s_sub_u32 {s(sM)}, 2048, {s(sR)}
    s_cmp_eq_u32 {s(sR)}, 0
    s_cselect_b32 {s(sM)}, 1024, {s(sM)}
    s_lshl_b32 {s(sR)}, {s(sR)}, 11
    s_lshl_b32 {s(sM)}, {s(sM)}, 11
    ''')

def relayout_addrs(vL, sBase, vLin, vRep, vMir, vA0, vC0, vD0, t0, t1, sm):
    def pos(dst, col, tmp):
        A(f'''
        v_lshrrev_b32 {v(tmp)}, 8, {v(col)}
        v_lshlrev_b32 {v(tmp)}, 5, {v(tmp)}
        v_lshl_add_u32 {v(dst)}, {v(col)}, 1, {v(tmp)}
        v_add_u32 {v(dst)}, {s(sBase)}, {v(dst)}
        ''')
    A(f'''
    v_lshrrev_b32 {v(t0)}, 5, {v(vL)}
    v_lshlrev_b32 {v(t0)}, 5, {v(t0)}
    v_lshl_add_u32 {v(vLin)}, {v(vL)}, 4, {v(t0)}
    v_add_u32 {v(vLin)}, {s(sBase)}, {v(vLin)}
    v_and_b32 {v(t0)}, 3, {v(vL)}
    v_lshlrev_b32 {v(t0)}, 8, {v(t0)}
    v_lshrrev_b32 {v(t1)}, 2, {v(vL)}
    v_add_u32 {v(vA0)}, {v(t0)}, {v(t1)}
    v_and_b32 {v(t0)}, 1, {v(vL)}
    v_lshlrev_b32 {v(t0)}, 8, {v(t0)}
    v_and_b32 {v(t1)}, 2, {v(vL)}
    v_lshl_add_u32 {v(t0)}, {v(t1)}, 3, {v(t0)}
    v_cmp_gt_u32 {s(sm,2)}, 4, {v(vL)}
    v_cndmask_b32 {v(vA0)}, {v(vA0)}, {v(t0)}, {s(sm,2)}
    ''')
    pos(vRep, vA0, t0)
    A(f'v_sub_u32 {v(t1)}, {1024-224}, {v(vA0)}')
    pos(vMir, t1, t0)
    A(f'''
    v_sub_u32 {v(t1)}, 1024, {v(vA0)}
    v_and_b32 {v(t1)}, 1023, {v(t1)}
    ''')
    pos(vC0, t1, t0)
    A(f'''
    v_cmp_eq_u32 {s(sm,2)}, 0, {v(vL)}
    v_mov_b32 {v(t0)}, {2*512+64}
    v_cndmask_b32 {v(t0)}, 0, {v(t0)}, {s(sm,2)}
    v_add_u32 {v(vA0)}, {v(vRep)}, {v(t0)}
    v_add_u32 {v(vD0)}, {v(vC0)}, {v(t0)}
    ''')

def slot_addr(k, c, vRep, vMir, vA0, vC0, vD0):
    row = ROWB if k in (1, 3) else 0
    if c == 0:
        return [(vA0, 0), (vRep, ROWB), (vC0, 0), (vD0, ROWB)][k]
    if k < 2: return (vRep, row + 64 * c)
    return (vMir, row + 64 * (7 - c))

def red64x2(a, b, u):
    A(f'''
    v_permlane32_swap_b32 {v(a)}, {v(b)}
    v_add_f32 {v(a)}, {v(a)}, {v(b)}
    v_add_f32_dpp {v(a)}, {v(a)}, {v(a)} row_ror:8 row_mask:0xf bank_mask:0xf
    v_add_f32_dpp {v(a)}, {v(a)}, {v(a)} row_ror:4 row_mask:0xf bank_mask:0xf
    v_add_f32_dpp {v(a)}, {v(a)}, {v(a)} row_ror:2 row_mask:0xf bank_mask:0xf
    v_add_f32_dpp {v(a)}, {v(a)}, {v(a)} row_ror:1 row_mask:0xf bank_mask:0xf
    v_mov_b32 {v(u)}, {v(a)}
    v_permlane16_swap_b32 {v(a)}, {v(u)}
    v_add_f32 {v(a)}, {v(a)}, {v(u)}
    ''')

STB = 0x1c0000
def stamp(idx, base=56):
    if OPT['stamps']: A(f's_memrealtime {s(base+2*idx,2)}')
def stamp_flush(vS, n, lane0, base=56, sLane=None, tmp=None):
    if not OPT['stamps']: return
    A('s_waitcnt lgkmcnt(0)')
    for k in range(n):
        if sLane is None: A(f'v_writelane_b32 {v(vS)}, {s(base+2*k)}, {lane0+k}')
        else:
            A(f's_add_u32 m0, {s(sLane)}, {lane0+k}')
            A(f'v_writelane_b32 {v(vS)}, {s(base+2*k)}, m0')
def stamp_store(vS, vL, sW, which, sWv, t0, t1, vt):
    if not OPT['stamps']: return
    A(f'''
    s_mov_b64 exec, -1
    s_lshl_b32 {s(t0)}, s2, 10
    s_lshl_b32 {s(t1)}, {s(sWv)}, 8
    s_add_u32 {s(t0)}, {s(t0)}, {s(t1)}
    s_add_u32 {s(t0)}, {s(t0)}, {STB}
    v_lshlrev_b32 {v(vt)}, 2, {v(vL)}
    buffer_store_dword {v(vS)}, {v(vt)}, {s(sW,4)}, {s(t0)} offen
    ''')

def kernel_head(name):
    A.raw(f'.globl {name}\n.p2align 8\n.type {name},@function\n{name}:')
    A.raw('.KERNEL')

def gen_main():
    global HWG, HSL
    if OPT['ck']: HWG, HSL = (16384 if OPT['ck'] == 2 else 20480), 256
    kernel_head(MAIN)
    V = Regs('v', 1, 256)
    sW, sO, sD, sX = 4, 8, 12, 84
    (sK, sL, sN, sWv, sLay, sXb, sXb2, sSb, sCnt, sErr, t0, t1, t2, t3, sSpec, sEA, sEB, sEC, sEnB, sTau, sR, sM,
     sBase, sFo2, sFo3, sT) = range(16, 42)
    sGb, sHa, sHb, sHin = 50, 51, 53, 55
    sFast, sFl, sXcc, sXf, sPm = 92, 93, 94, 95, 3
    sRho = 42
    sm = 44; sm2 = 46; sG0 = 48
    vL = V.alloc(); vI = V.alloc(); vG = V.alloc()
    vXin = V.alloc(); vXout = V.alloc(); vSout = V.alloc(); vSin = V.alloc(); vFout = V.alloc(); vFin = V.alloc()
    vWa1 = V.alloc(); vWa2 = V.alloc(); vWr = V.alloc(); vQw = V.alloc(); vQr = V.alloc()
    vDump = V.alloc(); vFlag = V.alloc(); vFlagD = V.alloc()
    vOne = V.alloc(4, 4)
    X = [V.alloc(8, 4) for _ in range(4)]
    Ga = V.alloc(8, 4); Ga2 = V.alloc(8, 4); Gb = V.alloc(8, 4); Gb2 = V.alloc(8, 4)
    GR = [V.alloc(4, 4) for _ in range(3)]
    Ec = V.alloc(16, 4); Es = V.alloc(16, 4); Hc = V.alloc(8, 4); Hs = V.alloc(8, 4)
    M2 = V.alloc(2, 2); M3 = V.alloc(2, 2); M4 = V.alloc(2, 2)
    St = V.alloc(4, 4)
    Ps = V.alloc(2, 2); Pc = V.alloc(2, 2)
    T = V.alloc(80, 4)

    def poll_tail(lab, code, vt):
        done = A.newlabel('DONE')
        A(f'''
        v_cmp_eq_u32 vcc, -1, {v(vt)}
        s_sub_u32 {s(sCnt)}, {s(sCnt)}, 1
        s_cbranch_vccz {done}
        s_cbranch_scc0 {lab}
        s_or_b32 {s(sErr)}, {s(sErr)}, {code}
        {done}:
        ''')
    def maxall(regs, vt, vt2):
        regs = list(regs)
        accs = [vt, vt2]; first = [True, True]; k = 0
        while regs:
            a = accs[k]
            if first[k]:
                if len(regs) >= 3: A(f'v_max3_u32 {v(a)}, {v(regs[0])}, {v(regs[1])}, {v(regs[2])}'); regs = regs[3:]
                else: raise Exception
                first[k] = False
            elif len(regs) >= 2: A(f'v_max3_u32 {v(a)}, {v(a)}, {v(regs[0])}, {v(regs[1])}'); regs = regs[2:]
            else: A(f'v_max_u32 {v(a)}, {v(a)}, {v(regs[0])}'); regs = regs[1:]
            k ^= 1
        A(f'v_max_u32 {v(vt)}, {v(vt)}, {v(vt2)}')
    sDbg = 52
    def dump(slot, reg, n, lay=0):
        if not OPT['debug']: return
        A(f's_mul_i32 {s(sDbg)}, {s(sLay)}, {lay * 0x400000}')
        A(f's_add_u32 {s(sDbg)}, {s(sDbg)}, {DUMPB + slot * 0x400000}')
        for r in range(0, n, 4):
            A(f'buffer_store_dwordx4 {v(reg+r,4)}, {v(vDump)}, {s(sW,4)}, {s(sDbg)} offen offset:{4*r}')
        A('s_waitcnt vmcnt(0)')
    vStamp = V.alloc()
    vXa = V.alloc(); vH = V.alloc(); vXf = V.alloc(2, 2); vPt = V.alloc(); vDum = V.alloc()

    def xfpub():
        A(f"""
    s_waitcnt lgkmcnt(0)
    s_mul_i32 {s(sT)}, {s(sT)}, 0x19660d
    s_add_u32 {s(sT)}, {s(sT)}, 0x3c6ef35f
    s_add_u32 {s(sXf)}, {s(sGb)}, {XF}
    v_lshlrev_b32 {v(vXa)}, 4, {v(vI)}
    v_mov_b32 {v(vXf)}, {s(sT)}
    v_mov_b32 {v(vXf+1)}, {s(sXcc)}
    s_lshl_b32 exec_lo, 1, {s(sL)}
    s_mov_b32 exec_hi, 0
    buffer_store_dwordx2 {v(vXf,2)}, {v(vXa)}, {s(sW,4)}, {s(sXf)} offen sc1
    s_mov_b64 exec, -1
        """)
    def h0touch():
        A(f"""
        s_mul_i32 {s(t2)}, {s(sWv)}, {HWG // 4}
        s_add_u32 {s(t2)}, {s(t2)}, {s(sHin)}
        v_lshlrev_b32 {v(vDum)}, 7, {v(vL)}
        s_mov_b32 exec_hi, 0xffff
        buffer_load_dword {v(vDum)}, {v(vDum)}, {s(sW,4)}, {s(t2)} offen
        s_mov_b32 exec_hi, -1
        """)
    sLn = 54
    stamp(0)
    if OPT['spin']: A('s_memrealtime s[88:89]')
    tau = T + 1; a0 = T + 2; a1 = T + 3
    vL16 = T + 16; vRow = X[0]
    A(f"""
    s_cmp_ge_u32 s2, 256
    s_cbranch_scc1 MAIN_END
    s_load_dwordx2 {s(sX,2)}, s[0:1], 0
    s_load_dwordx2 {s(sW,2)}, s[0:1], 96
    s_load_dwordx4 {s(sO,4)}, s[0:1], 80
    v_lshrrev_b32 {v(T)}, 6, v0
    v_and_b32 {v(vL)}, 63, v0
    v_readfirstlane_b32 {s(sWv)}, {v(T)}
    s_mov_b32 {s(sX+2)}, 0x400000
    s_mov_b32 {s(sX+3)}, 0x00020000
    s_mov_b32 {s(sW+2)}, {WS_SIZE}
    s_mov_b32 {s(sW+3)}, 0x00020000
    v_lshlrev_b32 {v(vL16)}, 4, {v(vL)}
    """)
    wg_indices(sK, sL, sN, t0)
    A(f"""
    s_lshl_b32 {s(sTau)}, {s(sL)}, 2
    s_add_u32 {s(sTau)}, {s(sTau)}, {s(sWv)}
    """)
    rows_scalar(sK, sTau, sR, sM, t0, t1)
    A(f"""
    v_and_b32 {v(vI)}, 15, v0
    v_lshrrev_b32 {v(vG)}, 4, {v(vL)}
    s_lshl_b32 {s(sGb)}, {s(sK)}, {GSH}
    s_waitcnt lgkmcnt(0)
    buffer_load_dwordx4 {v(vRow,4)}, {v(vL16)}, {s(sX,4)}, {s(sR)} offen
    buffer_load_dwordx4 {v(vRow+4,4)}, {v(vL16)}, {s(sX,4)}, {s(sR)} offen offset:1024
    buffer_load_dwordx4 {v(vRow+8,4)}, {v(vL16)}, {s(sX,4)}, {s(sM)} offen
    buffer_load_dwordx4 {v(vRow+12,4)}, {v(vL16)}, {s(sX,4)}, {s(sM)} offen offset:1024
    s_load_dword {s(sT)}, {s(sW,2)}, {EOFF}
    """)
    A(f"""
    s_mul_i32 {s(sHin)}, {s(sL)}, {HWG}
    s_add_u32 {s(sHin)}, {s(sHin)}, {s(sGb)}
    s_add_u32 {s(sHin)}, {s(sHin)}, {H0B}
    v_lshlrev_b32 {v(vPt)}, 6, {v(vL)}
    """)
    npt = 0
    if OPT['pt'] & 1:
        A(f"""
        s_mul_i32 {s(t0)}, {s(sWv)}, {HWG // 4}
        s_add_u32 {s(t0)}, {s(t0)}, {s(sHin)}
        """)
        if OPT['ps'] == 64:
            npt = 2
            A(f"""
            buffer_load_dword {v(vDum)}, {v(vPt)}, {s(sW,4)}, {s(t0)} offen
            s_mov_b32 exec_hi, 0
            s_add_u32 {s(t0)}, {s(t0)}, 4096
            buffer_load_dword {v(vDum)}, {v(vPt)}, {s(sW,4)}, {s(t0)} offen
            s_mov_b32 exec_hi, -1
            """)
        else:
            npt = 1
            A(f"""
            v_lshlrev_b32 {v(vDum)}, 7, {v(vL)}
            s_mov_b32 exec_hi, 0xffff
            buffer_load_dword {v(vDum)}, {v(vDum)}, {s(sW,4)}, {s(t0)} offen
            s_mov_b32 exec_hi, -1
            """)
    A(f"""
    s_getreg_b32 {s(sXcc)}, hwreg(HW_REG_XCC_ID, 0, 4)
    s_mov_b32 {s(sD)}, {s(sO+2)}
    s_mov_b32 {s(sD+1)}, {s(sO+3)}
    s_mov_b32 {s(sO+2)}, 0x400000
    s_mov_b32 {s(sO+3)}, 0x00020000
    s_mov_b32 {s(sD+2)}, 256
    s_mov_b32 {s(sD+3)}, 0x00020000
    v_mov_b32 {v(vOne)}, -1
    v_mov_b32 {v(vOne+1)}, -1
    v_mov_b32 {v(vOne+2)}, -1
    v_mov_b32 {v(vOne+3)}, -1
    s_lshl_b32 {s(t0)}, {s(sL)}, 13
    s_add_u32 {s(t0)}, {s(t0)}, {s(sGb)}
    s_lshr_b32 {s(t1)}, {s(sWv)}, 1
    s_lshl_b32 {s(t1)}, {s(t1)}, 12
    s_add_u32 {s(t0)}, {s(t0)}, {s(t1)}
    s_and_b32 {s(t1)}, {s(sWv)}, 1
    s_lshl_b32 {s(t2)}, {s(t1)}, 8
    s_add_u32 {s(t0)}, {s(t0)}, {s(t2)}
    v_lshlrev_b32 {v(a0)}, 4, {v(vI)}
    v_lshl_add_u32 {v(vXout)}, {v(vG)}, 10, {v(a0)}
    v_add_u32 {v(vXout)}, {s(t0)}, {v(vXout)}
    s_mov_b32 {s(sXb)}, {XB}
    s_mov_b32 {s(sXb2)}, {XB + (2 << GSH)}
    buffer_store_dwordx4 {v(vOne,4)}, {v(vXout)}, {s(sW,4)}, {s(sXb)} offen sc1
    buffer_store_dwordx4 {v(vOne,4)}, {v(vXout)}, {s(sW,4)}, {s(sXb)} offen offset:512 sc1
    s_lshl_b32 {s(t0)}, {s(sL)}, 10
    s_min_u32 {s(t2)}, {s(sWv)}, 2
    s_mul_i32 {s(t2)}, {s(t2)}, {SSTR}
    s_add_u32 {s(t0)}, {s(t0)}, {s(sGb)}
    s_add_u32 {s(t2)}, {s(t2)}, {s(t0)}
    s_add_u32 {s(t2)}, {s(t2)}, {SB}
    buffer_store_dwordx4 {v(vOne,4)}, {v(vL16)}, {s(sW,4)}, {s(t2)} offen sc1
    """)
    if OPT['pt'] & 32 and OPT['xo'] == 0: h0touch()
    A(f"""
    s_mov_b32 {s(sErr)}, 0
    s_mov_b32 {s(sLay)}, 0
    s_mov_b32 {s(sSb)}, {SB}
    ; tau = 16 w + i
    s_lshl_b32 {s(t2)}, {s(sWv)}, 4
    v_add_u32 {v(tau)}, {s(t2)}, {v(vI)}
    v_lshlrev_b32 {v(a1)}, 4, {v(tau)}
    v_lshl_add_u32 {v(vSout)}, {v(vG)}, 2, {v(a1)}
    v_add_u32 {v(vSout)}, {s(t0)}, {v(vSout)}
    v_lshl_add_u32 {v(vSin)}, {v(vG)}, 12, {v(a1)}
    v_add_u32 {v(vSin)}, {s(sGb)}, {v(vSin)}
    v_lshrrev_b32 {v(a0)}, 5, {v(vL)}
    v_lshlrev_b32 {v(vXin)}, {GSH}, {v(a0)}
    v_bfe_u32 {v(a0)}, {v(vL)}, 1, 4
    v_lshl_add_u32 {v(vXin)}, {v(a0)}, 13, {v(vXin)}
    v_and_b32 {v(a0)}, 1, {v(vL)}
    v_lshl_add_u32 {v(vXin)}, {v(a0)}, 4, {v(vXin)}
    s_lshl_b32 {s(t2)}, {s(sWv)}, {GSH+2}
    s_lshl_b32 {s(t3)}, {s(sN)}, 5
    s_add_u32 {s(t2)}, {s(t2)}, {s(t3)}
    v_add_u32 {v(vXin)}, {s(t2)}, {v(vXin)}
    s_lshl_b32 {s(t2)}, {s(sWv)}, 11
    s_add_u32 {s(t2)}, {s(t2)}, {LDS_Q}
    v_add_u32 {v(vQw)}, {s(t2)}, {v(vL16)}
    v_lshrrev_b32 {v(a0)}, 2, {v(tau)}
    v_lshlrev_b32 {v(vFout)}, 14, {v(a0)}
    v_and_b32 {v(a0)}, 3, {v(vI)}
    v_lshl_add_u32 {v(vFout)}, {v(a0)}, 6, {v(vFout)}
    v_lshl_add_u32 {v(vFout)}, {v(vG)}, 4, {v(vFout)}
    v_add_u32 {v(vFout)}, {s(t0)}, {v(vFout)}
    v_lshrrev_b32 {v(a0)}, 2, {v(vL)}
    v_lshlrev_b32 {v(vFin)}, 10, {v(a0)}
    v_and_b32 {v(a0)}, 3, {v(vL)}
    v_lshl_add_u32 {v(vFin)}, {v(a0)}, 4, {v(vFin)}
    s_lshl_b32 {s(t2)}, {s(sL)}, 14
    s_add_u32 {s(t2)}, {s(t2)}, {s(sGb)}
    s_lshl_b32 {s(t3)}, {s(sWv)}, 6
    s_add_u32 {s(t2)}, {s(t2)}, {s(t3)}
    v_add_u32 {v(vFin)}, {s(t2)}, {v(vFin)}
    """)
    A(f'''
    v_lshlrev_b32 {v(a0)}, 4, {v(vI)}
    v_lshl_add_u32 {v(vWr)}, {v(vG)}, 8, {v(a0)}
    v_lshl_add_u32 {v(vQr)}, {v(vG)}, 9, {v(a0)}
    s_lshl_b32 {s(t2)}, {s(t1)}, 10
    v_add_u32 {v(vWr)}, {s(t2)}, {v(vWr)}
    v_add_u32 {v(vQr)}, {LDS_Q}, {v(vQr)}
    v_lshrrev_b32 {v(a1)}, 1, {v(vG)}
    v_lshl_add_u32 {v(a0)}, {v(a1)}, 8, {v(a0)}
    v_and_b32 {v(a1)}, 1, {v(vG)}
    v_lshl_add_u32 {v(a0)}, {v(a1)}, 3, {v(a0)}
    s_lshr_b32 {s(t0)}, {s(sWv)}, 1
    s_lshl_b32 {s(t0)}, {s(t0)}, 11
    s_lshl_b32 {s(t2)}, {s(t1)}, 9
    s_add_u32 {s(t0)}, {s(t0)}, {s(t2)}
    s_lshl_b32 {s(t2)}, {s(sWv)}, 12
    s_lshl_b32 {s(t3)}, {s(sK)}, 2
    s_or_b32 {s(sSpec)}, {s(t3)}, {s(sWv)}
    s_cmp_lt_u32 {s(sSpec)}, 2
    s_cselect_b32 {s(t0)}, {s(t2)}, {s(t0)}
    s_cselect_b32 {s(t2)}, 1, 8
    s_lshl_b32 {s(t2)}, {s(t2)}, 9
    s_add_u32 {s(t2)}, {s(t2)}, {s(t0)}
    v_add_u32 {v(vWa1)}, {s(t0)}, {v(a0)}
    v_add_u32 {v(vWa2)}, {s(t2)}, {v(a0)}
    s_cmp_eq_u32 {s(sSpec)}, 0
    s_cselect_b32 {s(sRho)}, 0x00010001, 0
    s_mov_b32 {s(sRho+1)}, {s(sRho)}
    v_mov_b32 {v(M2)}, 1.0
    v_mov_b32 {v(M2+1)}, 1.0
    v_mov_b32 {v(M3)}, 1.0
    v_mov_b32 {v(M3+1)}, 1.0
    v_mov_b32 {v(M4)}, 1.0
    v_mov_b32 {v(M4+1)}, 1.0
    s_cmp_eq_u32 {s(sL)}, 0
    s_cselect_b32 exec_lo, 0xffff, 0
    s_mov_b32 exec_hi, 0
    v_mov_b32 {v(M2)}, 0
    v_mov_b32 {v(M3)}, 0
    s_and_b32 exec_lo, exec_lo, {s(sRho)}
    v_mov_b32 {v(M3)}, 1.0
    v_mov_b32 {v(M4)}, 0
    s_mov_b64 exec, -1
    v_mov_b32 {v(vStamp)}, 0
    ''')
    if OPT['debug']:
        A(f'''
        s_lshl_b32 {s(t0)}, {s(sN)}, 8
        v_add_u32 {v(vDump)}, {s(t0)}, v0
        v_lshlrev_b32 {v(vDump)}, 6, {v(vDump)}
        ''')

    if OPT['pt'] & 32 and OPT['xo'] == 1:
        xfpub(); h0touch()
    stamp(1)
    fr = T + 4; ph = T + 5; arg = T + 6; c0 = T + 8; stp = T + 7; gf = T + 10; amp = T + 11; voff = T + 12; Z = T + 13; arg2 = T + 14
    def f_ph(x_sgpr_or_imm):
        A(f'''
        v_lshrrev_b32 {v(a0)}, 1, {v(vI)}
        v_cvt_f32_u32 {v(fr)}, {v(a0)}
        v_and_b32 {v(a1)}, 1, {v(vI)}
        v_cvt_f32_u32 {v(ph)}, {v(a1)}
        v_mul_f32 {v(fr)}, {f32(1/32)}, {v(fr)}
        v_mul_f32 {v(ph)}, {f32(0.25)}, {v(ph)}
        v_add_f32 {v(fr)}, {x_sgpr_or_imm}, {v(fr)}
        v_cmp_eq_f32 vcc, 0, {v(fr)}
        v_cndmask_b32 {v(a0)}, 0, {v(ph)}, vcc
        v_fmac_f32 {v(fr)}, 2.0, {v(a0)}
        v_sub_f32 {v(ph)}, {v(ph)}, {v(a0)}
        ''')
    def cos_row(dst, step, scaled=False, first=None):
        for c in range(8):
            src = first if (c == 0 and first is not None) else arg
            A(f'v_cos_f32 {v(c0 + (c & 1))}, {v(src)}')
            if c < 7: A(f'v_add_f32 {v(arg)}, {v(arg)}, {v(step)}')
            if scaled: A(f'v_fma_f32 {v(c0 + (c & 1))}, {v(c0 + (c & 1))}, {v(amp)}, {v(voff)}')
            if c & 1: A(f'v_cvt_pk_f16_f32 {v(dst + c // 2)}, {v(c0)}, {v(c0+1)}')
    A(f'''
    v_cvt_f32_u32 {v(gf)}, {v(vG)}
    v_mul_f32 {v(gf)}, {f32(8.0)}, {v(gf)}
    s_cmp_eq_u32 {s(sL)}, 0
    s_cbranch_scc1 GCOL0
    ''')
    for cb in range(2):
        f_ph('0' if cb == 0 else f32(0.25))
        A(f'v_fma_f32 {v(arg)}, {v(fr)}, {v(gf)}, -{v(ph)}')
        cos_row(Ga + 4 * cb, fr)
    for r in range(0, 8, 2): A(f'v_mov_b64 {v(Ga2+r,2)}, {v(Ga+r,2)}')
    A('GCOL_DONE:')
    A(f'''
    s_lshr_b32 {s(t0)}, {s(sWv)}, 1
    s_mul_i32 {s(t0)}, {s(t0)}, {f32(0.25)}
    ''')
    f_ph(s(t0))
    A(f'v_fma_f32 {v(arg)}, {v(fr)}, {v(gf)}, -{v(ph)}')
    cos_row(GR[1], fr)
    A(f'''
    s_cmp_eq_u32 {s(sK)}, 0
    s_cbranch_scc1 GROW0
    ''')
    for r in range(0, 4, 2):
        A(f'v_mov_b64 {v(GR[0]+r,2)}, {v(GR[1]+r,2)}')
        A(f'v_mov_b64 {v(GR[2]+r,2)}, {v(GR[1]+r,2)}')
    A('GROW_DONE:')
    vLin, vRep0, vA0, vMir0, vC0, vRep1, vMir1 = range(Hc, Hc + 7)
    vE, vEm, q0, q1 = range(Hs, Hs + 4)
    vHin = T + 38; GRN = T + 40; HI = T + 64; vF = Ec
    GRS = X[0]
    assert X[3] == X[0] + 24
    def dreg(h, j, b=GRN): return (b + 12 * h + j) if OPT['ck'] else (b + 12 * h + 4 * (j // 3) + 1 + j % 3)
    vH2 = GRS + 22; vHin2 = GRN + 10; vH3 = GRS + 23; vHin3 = GRN + 11
    C2 = OPT['ck'] == 2
    def cksum(b, dst, tmp):
        for h in range(2): A(f'v_add3_u32 {v(dst[h])}, {v(b+12*h)}, {v(b+12*h+1)}, {v(b+12*h+2)}')
        for h in range(2): A(f'v_add3_u32 {v(tmp[h])}, {v(b+12*h+4)}, {v(b+12*h+5)}, {v(b+12*h+6)}')
        for h in range(2): A(f'v_add3_u32 {v(dst[h])}, {v(dst[h])}, {v(b+12*h+3)}, {0 if C2 else s(sT)}')
        for h in range(2): A(f'v_add3_u32 {v(tmp[h])}, {v(tmp[h])}, {v(b+12*h+7)}, {v(b+12*h+8)}')
        for h in range(2): A(f'v_alignbit_b32 {v(tmp[h])}, {v(tmp[h])}, {v(tmp[h])}, 19')
        for h in range(2): A(f'v_add_u32 {v(dst[h])}, {v(dst[h])}, {v(tmp[h])}')
    def pos(dst, col, rowoff):
        A(f"""
        v_lshrrev_b32 {v(q1)}, 8, {v(col)}
        v_lshl_add_u32 {v(q1)}, {v(q1)}, 5, {v(rowoff)}
        v_lshl_add_u32 {v(dst)}, {v(col)}, 1, {v(q1)}
        """)
    A(f"""
    s_mul_i32 {s(sBase)}, {s(sWv)}, {2*ROWB}
    s_add_u32 {s(sBase)}, {s(sBase)}, {LDS_R}
    v_lshrrev_b32 {v(q0)}, 5, {v(vL)}
    v_lshlrev_b32 {v(q0)}, 5, {v(q0)}
    v_lshl_add_u32 {v(vLin)}, {v(vL)}, 4, {v(q0)}
    v_add_u32 {v(vLin)}, {s(sBase)}, {v(vLin)}
    s_mov_b32 {s(sm)}, 0xf0f0f0f0
    s_mov_b32 {s(sm+1)}, 0xf0f0f0f0
    s_add_u32 {s(t0)}, {s(sBase)}, {ROWB}
    v_mov_b32 {v(q0)}, {s(sBase)}
    v_mov_b32 {v(q1)}, {s(t0)}
    v_cndmask_b32 {v(vE)}, {v(q0)}, {v(q1)}, {s(sm,2)}
    s_cmp_eq_u32 {s(sR)}, 0
    s_cselect_b32 {s(t1)}, -1, 0
    s_xor_b32 {s(sm2)}, {s(sm)}, {s(t1)}
    s_mov_b32 {s(sm2+1)}, {s(sm2)}
    v_cndmask_b32 {v(vEm)}, {v(q0)}, {v(q1)}, {s(sm2,2)}
    v_and_b32 {v(q0)}, 3, {v(vL)}
    v_lshrrev_b32 {v(vH)}, 3, {v(vL)}
    v_lshl_add_u32 {v(vA0)}, {v(q0)}, 8, {v(vH)}
    v_add_u32 {v(q0)}, 8, {v(vA0)}
    """)
    pos(vRep1, q0, vE)
    A(f'v_sub_u32 {v(q0)}, {1024-224-8}, {v(vA0)}')
    pos(vMir1, q0, vEm)
    A(f"""
    v_and_b32 {v(q0)}, 1, {v(vL)}
    v_lshlrev_b32 {v(q0)}, 8, {v(q0)}
    v_and_b32 {v(q1)}, 2, {v(vL)}
    s_mov_b64 exec, 0xff
    v_lshl_add_u32 {v(vA0)}, {v(q1)}, 3, {v(q0)}
    s_mov_b64 exec, -1
    """)
    pos(vRep0, vA0, vE)
    A(f'v_sub_u32 {v(q0)}, {1024-224}, {v(vA0)}')
    pos(vMir0, q0, vEm)
    A(f"""
    v_sub_u32 {v(q0)}, 1024, {v(vA0)}
    v_and_b32 {v(q0)}, 1023, {v(q0)}
    """)
    pos(vC0, q0, vEm)
    A(f"""
    v_mov_b32 {v(vA0)}, {v(vRep0)}
    s_mov_b64 exec, 1
    v_add_u32 {v(vA0)}, {2*512+64}, {v(vA0)}
    s_and_b32 exec_lo, {s(sm2)}, 0x11
    v_add_u32 {v(vC0)}, {2*512+64}, {v(vC0)}
    s_mov_b64 exec, -1
    s_mov_b32 {s(t0)}, {HWG}
    v_mul_lo_u32 {v(vH)}, {v(vH)}, {s(t0)}
    v_and_b32 {v(q0)}, 7, {v(vL)}
    """)
    if C2:
        A(f"""
        s_mul_i32 {s(t0)}, {s(sTau)}, 252
        s_sub_u32 {s(t0)}, 0x40000, {s(t0)}
        v_lshrrev_b32 {v(vH2)}, 6, {v(vH)}
        v_add_u32 {v(vH2)}, {s(t0)}, {v(vH2)}
        s_mul_i32 {s(t0)}, {s(sTau)}, 224
        s_sub_u32 {s(t0)}, 0x41000, {s(t0)}
        v_lshl_add_u32 {v(vH3)}, {v(q0)}, 2, {s(t0)}
        s_lshl_b32 {s(t0)}, {s(sL)}, 8
        s_add_u32 {s(t0)}, {s(t0)}, 0x40000
        v_lshl_add_u32 {v(vHin2)}, {v(tau)}, 2, {s(t0)}
        v_lshlrev_b32 {v(vHin3)}, 5, {v(tau)}
        v_lshl_add_u32 {v(vHin3)}, {v(vG)}, 2, {v(vHin3)}
        v_add_u32 {v(vHin3)}, 0x41000, {v(vHin3)}
        """)
    else:
        A(f"""
        v_lshl_add_u32 {v(vH2)}, {v(q0)}, 3, {v(vH)}
        s_mul_i32 {s(t0)}, {s(sTau)}, 192
        s_sub_u32 {s(t0)}, 16384, {s(t0)}
        v_add_u32 {v(vH2)}, {s(t0)}, {v(vH2)}
        v_lshlrev_b32 {v(vHin2)}, 6, {v(tau)}
        v_lshl_add_u32 {v(vHin2)}, {v(vG)}, 3, {v(vHin2)}
        v_add_u32 {v(vHin2)}, 16384, {v(vHin2)}
        """)
    A(f"""
    v_lshl_add_u32 {v(vH)}, {v(q0)}, 4, {v(vH)}
    s_mul_i32 {s(sHa)}, {s(sTau)}, {HSL}
    s_add_u32 {s(sHa)}, {s(sHa)}, {s(sGb)}
    s_add_u32 {s(sHb)}, {s(sHa)}, {H0B + 8*HWG}
    s_add_u32 {s(sHa)}, {s(sHa)}, {H0B}
    v_mul_u32_u24 {v(vHin)}, {HSL}, {v(tau)}
    v_lshl_add_u32 {v(vHin)}, {v(vG)}, 4, {v(vHin)}
    """)
    if not (OPT["pt"] & 32): xfpub()
    stamp(2)
    if OPT['pt'] & 32: A(f's_waitcnt vmcnt({4+OPT["xo"]})')
    else: A(f's_waitcnt vmcnt({4+npt})')
    stamp(3)
    if OPT['pt'] & 32 and OPT['xo'] == 0: xfpub()
    nh = 0
    if OPT['pt'] & 8:
        A(f"""
        s_mul_i32 {s(t0)}, {s(sWv)}, {HWG // 4}
        s_add_u32 {s(t0)}, {s(t0)}, {s(sHin)}
        """)
        if OPT['hs'] == 64:
            nh = 2
            A(f"""
            buffer_load_dword {v(vDum)}, {v(vPt)}, {s(sW,4)}, {s(t0)} offen
            s_mov_b32 exec_hi, 0
            s_add_u32 {s(t0)}, {s(t0)}, 4096
            buffer_load_dword {v(vFlagD)}, {v(vPt)}, {s(sW,4)}, {s(t0)} offen
            s_mov_b32 exec_hi, -1
            """)
        else:
            nh = 1
            A(f"""
            v_lshlrev_b32 {v(vDum)}, 7, {v(vL)}
            s_mov_b32 exec_hi, 0xffff
            buffer_load_dword {v(vDum)}, {v(vDum)}, {s(sW,4)}, {s(t0)} offen
            s_mov_b32 exec_hi, -1
            """)
    A(f"""
    ds_write_b128 {v(vLin)}, {v(vRow,4)}
    ds_write_b128 {v(vLin)}, {v(vRow+4,4)} offset:1088
    ds_write_b128 {v(vLin)}, {v(vRow+8,4)} offset:{ROWB}
    ds_write_b128 {v(vLin)}, {v(vRow+12,4)} offset:{ROWB+1088}
    """)
    for r in range(16):
        A(f"""
        v_lshlrev_b32 {v(vF+2*r)}, 16, {v(vRow+r)}
        v_and_b32 {v(vF+2*r+1)}, 0xffff0000, {v(vRow+r)}
        """)
    A('s_waitcnt lgkmcnt(0)')
    for h in range(2):
        for t in range(3):
            if not OPT['ck']: A(f'v_mov_b32 {v(GRS+12*h+4*t)}, {s(sT)}')
    if OPT['ck']: A(f'v_mov_b32 {v(GRS+11)}, {s(sT)}')
    for h in range(2):
        for part in range(2):
            for c in range(8):
                if part == 0: ad, off = ((vA0, 0) if (c == 0 and h == 0) else ((vRep0, vRep1)[h], 64 * c))
                else: ad, off = ((vC0, 0) if (c == 0 and h == 0) else ((vMir0, vMir1)[h], 64 * (7 - c)))
                j = 4 * part + c // 2
                A(f'ds_read_u16 {v(HI+8*h+j if c & 1 else dreg(h, j, GRS))}, {v(ad)} offset:{off}')
    a, b, u, m = T + 4, T + 6, T + 8, T + 10
    for (acc, base) in ((a, vF), (b, vF + 16)):
        A(f'v_pk_add_f32 {v(acc,2)}, {v(base,2)}, {v(base+2,2)}')
    for p in range(2, 8):
        for (acc, base) in ((a, vF), (b, vF + 16)):
            A(f'v_pk_add_f32 {v(acc,2)}, {v(acc,2)}, {v(base+2*p,2)}')
    A(f"""
    v_add_f32 {v(a)}, {v(a)}, {v(a+1)}
    v_add_f32 {v(b)}, {v(b)}, {v(b+1)}
    """)
    red64x2(a, b, u)
    A(f"""
    v_mul_f32 {v(m)}, {f32(1/1024)}, {v(a)}
    v_mov_b32 {v(u)}, {v(m)}
    v_mov_b32 {v(u+1)}, {v(m)}
    v_permlane32_swap_b32 {v(u)}, {v(u+1)}
    """)
    for p in range(8):
        A(f'v_pk_add_f32 {v(vF+2*p,2)}, {v(vF+2*p,2)}, {v(u,2)} op_sel_hi:[1,0] neg_lo:[0,1] neg_hi:[0,1]')
        A(f'v_pk_add_f32 {v(vF+16+2*p,2)}, {v(vF+16+2*p,2)}, {v(u,2)} op_sel:[0,1] op_sel_hi:[1,1] neg_lo:[0,1] neg_hi:[0,1]')
    for (acc, base) in ((a, vF), (b, vF + 16)):
        A(f'v_pk_mul_f32 {v(acc,2)}, {v(base,2)}, {v(base,2)}')
    for p in range(1, 8):
        for (acc, base) in ((a, vF), (b, vF + 16)):
            A(f'v_pk_fma_f32 {v(acc,2)}, {v(base+2*p,2)}, {v(base+2*p,2)}, {v(acc,2)}')
    A(f"""
    v_add_f32 {v(a)}, {v(a)}, {v(a+1)}
    v_add_f32 {v(b)}, {v(b)}, {v(b+1)}
    s_waitcnt lgkmcnt(0)
    """)
    def hstore(h, t, m=None):
        if m is None: m = ['', ' nt', ' sc0', ' sc0 nt', ' sc1', ' sc0 sc1'][OPT['hm']]
        if C2 and t == 2:
            if h == 0:
                A('s_mov_b64 exec, 0xff')
                A(f'buffer_store_dword {v(GRS+8)}, {v(vH3)}, {s(sW,4)}, {s(sHa)} offen{m}')
            A('s_mov_b32 exec_lo, 0x01010101')
            A('s_mov_b32 exec_hi, 0x01010101')
            A(f'buffer_store_dword {v(GRS+12*h+9)}, {v(vH2)}, {s(sW,4)}, {s(sHa)} offen offset:{2048*h}{m}')
            A('s_mov_b64 exec, -1')
            return
        if OPT['ck'] and t == 2:
            A(f'buffer_store_dwordx2 {v(GRS+12*h+8,2)}, {v(vH2)}, {s(sW,4)}, {s((sHa, sHb)[h])} offen{m}')
            return
        A(f'buffer_store_dwordx4 {v(GRS+12*h+4*t,4)}, {v(vH)}, {s(sW,4)}, {s((sHa, sHb)[h])} offen offset:{128*t}{m}')
    for h in range(2):
        for j in range(8):
            A(f'v_lshl_or_b32 {v(dreg(h, j, GRS))}, {v(HI+8*h+j)}, 16, {v(dreg(h, j, GRS))}')
            if OPT['ck']:
                if j in (3, 7): hstore(h, j // 4)
            elif j in (2, 5): hstore(h, j // 3)
    red64x2(a, b, u)
    A(f"""
    v_mov_b32 {v(u)}, {f32(1e-5)}
    v_fmac_f32 {v(u)}, {f32(1/1024)}, {v(a)}
    v_rsq_f32 {v(a)}, {v(u)}
    s_mov_b32 {s(sm2)}, 0xaaaaaaaa
    s_mov_b32 {s(sm2+1)}, 0xaaaaaaaa
    v_mul_f32 {v(a+1)}, {v(m)}, {v(a)}
    v_cndmask_b32 {v(a)}, {v(a)}, {v(a+1)}, {s(sm2,2)}
    v_mov_b32 {v(a+1)}, {v(a)}
    v_permlane32_swap_b32 {v(a)}, {v(a+1)}
    v_cndmask_b32 {v(dreg(0, 8, GRS))}, {v(a)}, {v(a+1)}, {s(sm,2)}
    v_cndmask_b32 {v(dreg(1, 8, GRS))}, {v(a)}, {v(a+1)}, {s(sm,2)}
    """)
    if OPT['ck']: cksum(GRS, (GRS+9, GRS+21), (GRS+10, HI))
    if C2:
        for dpp in ('quad_perm:[1,0,3,2]', 'quad_perm:[2,3,0,1]', 'row_half_mirror'):
            A('s_nop 1')
            for h in range(2): A(f'v_add_u32_dpp {v(GRS+12*h+9)}, {v(GRS+12*h+9)}, {v(GRS+12*h+9)} {dpp} row_mask:0xf bank_mask:0xf')
        for h in range(2): A(f'v_add_u32 {v(GRS+12*h+9)}, {s(sT)}, {v(GRS+12*h+9)}')
    hstore(0, 2); hstore(1, 2)
    A(f"""
    s_mov_b32 {s(t0)}, {XB + XSTR}
    buffer_store_dwordx4 {v(vOne,4)}, {v(vXout)}, {s(sW,4)}, {s(t0)} offen sc1
    buffer_store_dwordx4 {v(vOne,4)}, {v(vXout)}, {s(sW,4)}, {s(t0)} offen offset:512 sc1
    """)
    stamp(4)
    A(f"""
    s_waitcnt vmcnt({9+nh+(1 if OPT['pt'] & 32 else 0)+(1 if C2 else 0)})
    s_barrier
    s_cmp_lg_u32 {s(sWv)}, 0
    s_cbranch_scc1 NOFLAG
    s_lshl_b32 {s(t0)}, {s(sL)}, 4
    s_add_u32 {s(t0)}, {s(t0)}, {s(sGb)}
    v_mov_b32 {v(vFlag)}, {FLG}
    s_mov_b64 exec, 1
    buffer_store_dword {v(GRS+11 if OPT['ck'] else GRS)}, {v(vFlag)}, {s(sW,4)}, {s(t0)} offen sc1
    s_mov_b64 exec, -1
    NOFLAG:
    buffer_load_dwordx2 {v(vXf,2)}, {v(vXa)}, {s(sW,4)}, {s(sXf)} offen sc1
    """)
    def hload(m):
        for t in range(3):
            for e in range(2):
                if C2 and t == 2:
                    if e == 0:
                        A(f's_mul_i32 {s(t1)}, {s(sL)}, {HWG}')
                        A(f's_sub_u32 {s(t1)}, {s(sHin)}, {s(t1)}')
                        A(f'buffer_load_dword {v(GRN+9)}, {v(vHin2)}, {s(sW,4)}, {s(t1)} offen{m}')
                    A(f'buffer_load_dword {v(GRN+12*e+8)}, {v(vHin3)}, {s(sW,4)}, {s(t1)} offen offset:{16*e}{m}')
                    continue
                if OPT['ck'] and t == 2:
                    A(f'buffer_load_dwordx2 {v(GRN+12*e+8,2)}, {v(vHin2)}, {s(sW,4)}, {s(sHin)} offen offset:{32*e}{m}')
                    continue
                A(f'buffer_load_dwordx4 {v(GRN+12*e+4*t,4)}, {v(vHin)}, {s(sW,4)}, {s(sHin)} offen offset:{128*t+64*e}{m}')
    if OPT['pt'] & 16: hload(['', ' nt', ' sc0', ' sc1'][OPT['hl']])
    if OPT['rb']:
        A(f"""
        ; read back one word of every line this wave has just written
        v_lshrrev_b32 {v(vDum)}, 3, {v(vL)}
        v_mul_u32_u24 {v(vDum)}, {HWG}, {v(vDum)}
        v_and_b32 {v(vFlagD)}, 7, {v(vL)}
        v_cmp_lt_u32 vcc, 2, {v(vFlagD)}
        v_lshl_add_u32 {v(vDum)}, {v(vFlagD)}, 7, {v(vDum)}
        v_add_u32 {v(vFlagD)}, {8*HWG - 3*128}, {v(vDum)}
        v_cndmask_b32 {v(vDum)}, {v(vDum)}, {v(vFlagD)}, vcc
        s_mov_b32 exec_lo, 0x3f3f3f3f
        s_mov_b32 exec_hi, 0x3f3f3f3f
        buffer_load_dword {v(vDum)}, {v(vDum)}, {s(sW,4)}, {s(sHa)} offen
        s_mov_b64 exec, -1
        """)
    A(f"""
    s_branch EHGEN
    EH_DONE:
    """)
    stamp(5)
    vt = T + 68; vt2 = T + 69
    A(f"""
    v_lshlrev_b32 {v(vFlag)}, {GSH}, {v(vG)}
    v_lshl_add_u32 {v(vFlag)}, {v(vI)}, 4, {v(vFlag)}
    s_lshl_b32 {s(sFl)}, {s(sWv)}, {GSH+2}
    s_add_u32 {s(sFl)}, {s(sFl)}, {FLG}
    s_mov_b32 {s(sCnt)}, {BOUND}
    s_waitcnt vmcnt(0)
    """)
    stamp(8)
    A(f"""
    v_cmp_ne_u32 vcc, {s(sT)}, {v(vXf)}
    s_cbranch_vccnz XCHK
    XOK:
    v_cmp_ne_u32 vcc, {s(sXcc)}, {v(vXf+1)}
    s_mov_b32 {s(sFast)}, 1
    s_mov_b32 {s(sPm)}, {11 | (4 if (OPT['pt'] & 4 or OPT['px']) else 0)}
    {'s_branch' if OPT['slow'] else 's_cbranch_vccnz'} HSLOW
    """)
    if OPT['pt'] & 16: A('s_branch HCHK')
    elif not OPT['pt'] & 40:
        hload('')
        A('s_branch HCHK')
    A('HPOLL:')
    hload(' sc1')
    tg = [GRN + 4 * k for k in range(6)]
    A(f"""
    HCHK:
    s_waitcnt vmcnt(0)
    """)
    if OPT['ck']:
        cksum(GRN, (vt, vt2), (GRN+22, GRN+23))
        if C2:
            A(f"""
            v_add_u32 {v(vt)}, {v(vt)}, {v(vt2)}
            v_mov_b32 {v(vt2)}, {v(vt)}
            s_nop 1
            v_permlane32_swap_b32 {v(vt)}, {v(vt2)}
            s_nop 1
            v_add_u32 {v(vt)}, {v(vt)}, {v(vt2)}
            v_mov_b32 {v(vt2)}, {v(vt)}
            s_nop 1
            v_permlane16_swap_b32 {v(vt)}, {v(vt2)}
            s_nop 1
            v_add3_u32 {v(vt)}, {v(vt)}, {v(vt2)}, {s(sT)}
            v_mov_b32 {v(vt2)}, {v(GRN+21)}
            """)
        A(f"""
        v_cmp_ne_u32 vcc, {v(GRN+9)}, {v(vt)}
        v_cmp_ne_u32 {s(sm,2)}, {v(GRN+21)}, {v(vt2)}
        """)
    else:
        A(f"""
        v_min3_u32 {v(vt)}, {v(tg[0])}, {v(tg[1])}, {v(tg[2])}
        v_max3_u32 {v(vt2)}, {v(tg[0])}, {v(tg[1])}, {v(tg[2])}
        v_min3_u32 {v(vt)}, {v(vt)}, {v(tg[3])}, {v(tg[4])}
        v_max3_u32 {v(vt2)}, {v(vt2)}, {v(tg[3])}, {v(tg[4])}
        v_min_u32 {v(vt)}, {v(vt)}, {v(tg[5])}
        v_max_u32 {v(vt2)}, {v(vt2)}, {v(tg[5])}
        v_cmp_ne_u32 vcc, {s(sT)}, {v(vt)}
        v_cmp_ne_u32 {s(sm,2)}, {s(sT)}, {v(vt2)}
        """)
    A(f"""
    s_or_b64 {s(sm,2)}, {s(sm,2)}, vcc
    s_cbranch_scc0 HGOT
    s_sub_u32 {s(sCnt)}, {s(sCnt)}, 1
    s_cbranch_scc0 HPOLL
    s_or_b32 {s(sErr)}, {s(sErr)}, 8
    HGOT:
    buffer_load_dword {v(vFlagD)}, {v(vFlag)}, {s(sW,4)}, {s(sFl)} offen sc1
    """)
    stamp(6)
    if OPT['stamps']: A(f's_sub_u32 {s(56+2*7)}, {BOUND}, {s(sCnt)}')
    stamp_flush(vStamp, 8, 0)
    if OPT['stamps']: A(f'v_writelane_b32 {v(vStamp)}, {s(56+16)}, 58')
    A(f"""
    v_mov_b32 {v(St)}, {v(dreg(0, 8))}
    v_mov_b32 {v(St+1)}, {v(dreg(0, 8))}
    v_mov_b32 {v(St+2)}, {v(dreg(1, 8))}
    v_mov_b32 {v(St+3)}, {v(dreg(1, 8))}
    """)
    for k in range(4):
        for r in range(4):
            src = dreg(k & 1, 4 * (k >> 1) + r)
            A(f"""
            v_lshlrev_b32 {v(X[k]+2*r)}, 16, {v(src)}
            v_and_b32 {v(X[k]+2*r+1)}, 0xffff0000, {v(src)}
            """)
        if k == 0:
            A(f"""
            v_permlane16_swap_b32 {v(St)}, {v(St+1)}
            v_permlane16_swap_b32 {v(St+2)}, {v(St+3)}
            """)
    dump(0, X[0], 16); dump(1, X[2], 16)

    rR, cR, rM, cM = St, St + 1, St + 2, St + 3
    pA = T; pB = T + 8; PA = T + 16; PB = T + 20; PC = T + 24; PD = T + 28
    W = T + 32
    Wh = T + 48
    Wb = T + 0
    Dacc = T + 16
    Fr = T + 56
    A('LOOP:')
    stamp(0)
    A(f'''
    v_cndmask_b32 {v(Ps)}, {v(rM)}, {v(rR)}, {s(sRho,2)}
    v_cndmask_b32 {v(Ps+1)}, {v(rR)}, {v(rM)}, {s(sRho,2)}
    v_cndmask_b32 {v(Pc)}, {v(cM)}, {v(cR)}, {s(sRho,2)}
    v_cndmask_b32 {v(Pc+1)}, {v(cR)}, {v(cM)}, {s(sRho,2)}
    v_add_f32 {v(Pc)}, {v(Pc)}, {v(cR)}
    v_add_f32 {v(Pc+1)}, {v(Pc+1)}, {v(cM)}
    ''')
    for p in range(4):
        A(f'v_pk_fma_f32 {v(pA+2*p,2)}, {v(X[0]+2*p,2)}, {v(St,2)}, {v(Pc,2)} op_sel_hi:[1,0,0] neg_lo:[0,0,1] neg_hi:[0,0,1]')
        A(f'v_pk_fma_f32 {v(pB+2*p,2)}, {v(X[1]+2*p,2)}, {v(St+2,2)}, {v(Pc,2)} op_sel:[0,0,1] op_sel_hi:[1,0,1] neg_lo:[0,0,1] neg_hi:[0,0,1]')
    for p in range(4):
        A(f'v_pk_fma_f32 {v(pA+2*p,2)}, {v(X[3]+2*p,2)}, {v(Ps,2)}, {v(pA+2*p,2)} op_sel_hi:[1,0,1]')
        A(f'v_pk_fma_f32 {v(pB+2*p,2)}, {v(X[2]+2*p,2)}, {v(Ps,2)}, {v(pB+2*p,2)} op_sel:[0,1,0] op_sel_hi:[1,1,1]')
    for p in range(4):
        A(f'v_cvt_pk_f16_f32 {v(PA+p)}, {v(pA+2*p)}, {v(pA+2*p+1)}')
    for p in range(4):
        A(f'v_cvt_pk_f16_f32 {v(PB+p)}, {v(pB+2*p)}, {v(pB+2*p+1)}')
    A(f'''
    s_cmp_eq_u32 {s(sL)}, 0
    s_cbranch_scc1 COL0
    ''')
    MF = 'v_mfma_f32_16x16x32_f16'
    for cb in range(2): A(f'{MF} {v(W+4*cb,4)}, {v(PA,4)}, {v(Ga+4*cb,4)}, 0')
    for cb in range(2): A(f'{MF} {v(W+8+4*cb,4)}, {v(PB,4)}, {v(Ga2+4*cb,4)}, 0')
    A('COL_DONE:')
    dump(16, St, 8, 1); dump(20, PA, 16, 1); dump(24, W, 16, 1)
    for j in range(4):
        A(f'''
        v_cvt_pk_f16_f32 {v(Wh+2*j)}, {v(W+4*j)}, {v(W+4*j+1)}
        v_cvt_pk_f16_f32 {v(Wh+2*j+1)}, {v(W+4*j+2)}, {v(W+4*j+3)}
        ds_write_b64 {v(vWa1 if j < 2 else vWa2)}, {v(Wh+2*j,2)} offset:{LDS_W + 1024*(j&1)}
        ''')
    stamp(1)
    A('''
    s_waitcnt lgkmcnt(0)
    s_barrier
    ''')
    for u in range(4): A(f'ds_read_b128 {v(Wb+4*u,4)}, {v(vWr)} offset:{LDS_W + 2048*u}')
    for u in range(4):
        A(f's_waitcnt lgkmcnt({3-u})')
        A(f'{MF} {v(Dacc+4*u,4)}, {v(GR[[0,1,2,1][u]],4)}, {v(Wb+4*u,4)}, 0')
    dump(28, Dacc, 16, 1)
    for j in range(2):
        for u in range(4):
            A(f'v_cvt_pk_f16_f32 {v(Fr+4*j+u)}, {v(Dacc+4*u+2*j)}, {v(Dacc+4*u+2*j+1)}')
        A(f'buffer_store_dwordx4 {v(Fr+4*j,4)}, {v(vXout)}, {s(sW,4)}, {s(sXb)} offen offset:{512*j} sc1')
    stamp(2)
    A(f"""
    s_cmp_eq_u32 {s(sLay)}, 0
    s_cbranch_scc1 FLAGS
    CLR_DONE:
    s_mov_b32 {s(sCnt)}, {BOUND}
    s_waitcnt vmcnt({OPT['xw']})
    """)
    stamp(3)
    Qp = T; Q = T + 8; Vc = T + 40; Vs = T + 48; BVc = T + 56; BVs = T + 60; BVo = T + 64; CC = T + 0; SS = T + 8
    if OPT['xm']:
        m = ['', '', ' sc0', ' nt', ' sc0 sc1', ' sc1 nt'][OPT['xm']]
        A(f"""
        buffer_load_dwordx4 {v(Qp,4)}, {v(vXin)}, {s(sW,4)}, {s(sXb)} offen{m}
        buffer_load_dwordx4 {v(Qp+4,4)}, {v(vXin)}, {s(sW,4)}, {s(sXb2)} offen{m}
        s_branch XP1
        """)
    A(f"""
    XPOLL:
    buffer_load_dwordx4 {v(Qp,4)}, {v(vXin)}, {s(sW,4)}, {s(sXb)} offen sc1
    buffer_load_dwordx4 {v(Qp+4,4)}, {v(vXin)}, {s(sW,4)}, {s(sXb2)} offen sc1
    XP1:
    """)
    if OPT['px']:
        A(f"""
        s_cmp_eq_u32 {s(sPm)}, 8
        s_cbranch_scc1 XT3
        XGO3:
        s_waitcnt vmcnt(0)
        """)
    else:
        A(f"""
        s_bitcmp1_b32 {s(sPm)}, {s(sLay)}
        s_cbranch_scc1 XTRA
        s_waitcnt vmcnt(0)
        XGO:
        """)
    maxall(range(Qp, Qp + 8), vt, vt2)
    poll_tail('XPOLL', 1, vt)
    stamp(4)
    if OPT['stamps']: A(f's_sub_u32 {s(56+2*9)}, {BOUND}, {s(sCnt)}')
    A(f"""
    ds_write_b128 {v(vQw)}, {v(Qp,4)}
    ds_write_b128 {v(vQw)}, {v(Qp+4,4)} offset:1024
    """)
    if OPT['px']:
        A(f"""
        s_cmp_lt_u32 {s(sLay)}, 3
        s_cbranch_scc1 XTRA
        XGO:
        """)
    A(f"""
    s_waitcnt lgkmcnt(0)
    s_barrier
    """)
    stamp(5)
    for q in range(4):
        for blk in range(2):
            A(f'ds_read_b128 {v(Q+8*q+4*blk,4)}, {v(vQr)} offset:{2048*q+256*blk}')
    for q in range(4):
        for blk in range(2):
            A(f's_waitcnt lgkmcnt({7-2*q-blk})')
            for (acc, E) in ((Vc, Ec), (Vs, Es)):
                cin = '0' if q == 0 else v(acc+4*blk,4)
                A(f'{MF} {v(acc+4*blk,4)}, {v(Q+8*q+4*blk,4)}, {v(E+4*q,4)}, {cin}')
    dump(32, Vc, 16, 1)
    for (acc, B) in ((Vc, BVc), (Vs, BVs)):
        for r in range(4):
            A(f'v_cvt_pk_f16_f32 {v(B+r)}, {v(acc+2*r)}, {v(acc+2*r+1)}')
    A(f'''
    s_cmp_eq_u32 {s(sSpec)}, 0
    s_cbranch_scc1 HSPEC
    ''')
    for mb in range(2): A(f'{MF} {v(CC+4*mb,4)}, {v(Hc+4*mb,4)}, {v(BVc,4)}, 0')
    for mb in range(2): A(f'{MF} {v(SS+4*mb,4)}, {v(Hs+4*mb,4)}, {v(BVs,4)}, 0')
    A('H_DONE:')
    dump(36, CC, 16, 1)
    U1 = T + 16; U2 = T + 24
    for p in range(4):
        A(f'v_pk_add_f32 {v(U1+2*p,2)}, {v(CC+2*p,2)}, {v(SS+2*p,2)} neg_lo:[0,1] neg_hi:[0,1]')
        A(f'v_pk_add_f32 {v(U2+2*p,2)}, {v(CC+2*p,2)}, {v(SS+2*p,2)}')
    for p in range(4):
        for k, U, M in ((0, U1, None), (1, U2, M2), (2, U2, M3), (3, U1, M4)):
            if p == 0 and M is not None:
                A(f'v_pk_fma_f32 {v(X[k],2)}, {v(U,2)}, {v(M,2)}, {v(X[k],2)}')
            else:
                A(f'v_pk_add_f32 {v(X[k]+2*p,2)}, {v(X[k]+2*p,2)}, {v(U+2*p,2)}')
    dump(2, X[0], 16, 2); dump(3, X[2], 16, 2)
    stamp(6)
    A(f'''
    s_cmp_eq_u32 {s(sLay)}, 3
    s_cbranch_scc1 FINAL
    ''')
    Sa = [T + 2 * k for k in range(4)]; Qa = [T + 8 + 2 * k for k in range(4)]
    for k in range(4):
        A(f'v_pk_add_f32 {v(Sa[k],2)}, {v(X[k],2)}, {v(X[k]+2,2)}')
        A(f'v_pk_mul_f32 {v(Qa[k],2)}, {v(X[k],2)}, {v(X[k],2)}')
    for p in range(1, 4):
        for k in range(4):
            if p > 1: A(f'v_pk_add_f32 {v(Sa[k],2)}, {v(Sa[k],2)}, {v(X[k]+2*p,2)}')
            A(f'v_pk_fma_f32 {v(Qa[k],2)}, {v(X[k]+2*p,2)}, {v(X[k]+2*p,2)}, {v(Qa[k],2)}')
    A(f'''
    s_cmp_lg_u32 {s(sSpec)}, 0
    s_cbranch_scc1 NOSWAP
    s_mov_b64 exec, {s(sRho,2)}
    v_swap_b32 {v(Sa[2])}, {v(Sa[3])}
    v_swap_b32 {v(Sa[2]+1)}, {v(Sa[3]+1)}
    v_swap_b32 {v(Qa[2])}, {v(Qa[3])}
    v_swap_b32 {v(Qa[2]+1)}, {v(Qa[3]+1)}
    s_mov_b64 exec, -1
    NOSWAP:
    v_pk_add_f32 {v(Sa[0],2)}, {v(Sa[0],2)}, {v(Sa[2],2)}
    v_pk_add_f32 {v(Sa[1],2)}, {v(Sa[1],2)}, {v(Sa[3],2)}
    v_pk_add_f32 {v(Qa[0],2)}, {v(Qa[0],2)}, {v(Qa[2],2)}
    v_pk_add_f32 {v(Qa[1],2)}, {v(Qa[1],2)}, {v(Qa[3],2)}
    v_add_f32 {v(Sa[0])}, {v(Sa[0])}, {v(Sa[0]+1)}
    v_add_f32 {v(Sa[1])}, {v(Sa[1])}, {v(Sa[1]+1)}
    v_add_f32 {v(Qa[0])}, {v(Qa[0])}, {v(Qa[0]+1)}
    v_add_f32 {v(Qa[1])}, {v(Qa[1])}, {v(Qa[1]+1)}
    v_permlane32_swap_b32 {v(Sa[0])}, {v(Sa[1])}
    v_permlane32_swap_b32 {v(Qa[0])}, {v(Qa[1])}
    v_add_f32 {v(Sa[0])}, {v(Sa[0])}, {v(Sa[1])}
    v_add_f32 {v(Qa[0])}, {v(Qa[0])}, {v(Qa[1])}
    v_permlane16_swap_b32 {v(Sa[0])}, {v(Qa[0])}
    s_cmp_eq_u32 {s(sFast)}, 0
    s_mov_b32 {s(sCnt)}, {BOUND}
    v_add_f32 {v(Sa[0])}, {v(Sa[0])}, {v(Qa[0])}
    s_cbranch_scc1 SSLOW
    buffer_store_dword {v(Sa[0])}, {v(vSout)}, {s(sW,4)}, {s(sSb)} offen
    ''')
    stamp(7)
    if OPT['aw'] & 1: A('s_waitcnt vmcnt(0)')
    A('SPOLL:')
    G4 = T + 16
    for j in range(4):
        A(f'buffer_load_dwordx4 {v(G4+4*j,4)}, {v(vSin)}, {s(sW,4)}, {s(sSb)} offen offset:{1024*j} sc1')
    A('s_waitcnt vmcnt(0)')
    maxall(range(G4, G4 + 16), vt, vt2)
    poll_tail('SPOLL', 2, vt)
    stamp(8)
    if OPT['stamps']:
        A(f's_sub_u32 {s(56+2*10)}, {BOUND}, {s(sCnt)}')
        A(f's_mul_i32 {s(sLn)}, {s(sLay)}, 12')
    stamp_flush(vStamp, 11, 8, sLane=sLn)
    e, f_, u1, u2 = G4, G4 + 1, G4 + 4, G4 + 5
    A(f'''
    v_pk_add_f32 {v(G4,2)}, {v(G4,2)}, {v(G4+4,2)}
    v_pk_add_f32 {v(G4+2,2)}, {v(G4+2,2)}, {v(G4+6,2)}
    v_pk_add_f32 {v(G4+8,2)}, {v(G4+8,2)}, {v(G4+12,2)}
    v_pk_add_f32 {v(G4+10,2)}, {v(G4+10,2)}, {v(G4+14,2)}
    v_pk_add_f32 {v(G4,2)}, {v(G4,2)}, {v(G4+8,2)}
    v_pk_add_f32 {v(G4+2,2)}, {v(G4+2,2)}, {v(G4+10,2)}
    v_permlane32_swap_b32 {v(G4)}, {v(G4+2)}
    v_permlane32_swap_b32 {v(G4+1)}, {v(G4+3)}
    v_pk_add_f32 {v(G4,2)}, {v(G4,2)}, {v(G4+2,2)}
    v_mov_b64 {v(u1,2)}, {v(G4,2)}
    v_permlane16_swap_b32 {v(e)}, {v(u1)}
    v_permlane16_swap_b32 {v(f_)}, {v(u2)}
    v_pk_add_f32 {v(G4,2)}, {v(G4,2)}, {v(u1,2)}
    v_mul_f32 {v(e)}, {f32(1/1024)}, {v(e)}
    v_mul_f32 {v(f_)}, {f32(1/1024)}, {v(f_)}
    v_fma_f32 {v(f_)}, -{v(e)}, {v(e)}, {v(f_)}
    v_max_f32 {v(f_)}, 0, {v(f_)}
    v_add_f32 {v(f_)}, {f32(1e-5)}, {v(f_)}
    v_rsq_f32 {v(rR)}, {v(f_)}
    v_mul_f32 {v(cR)}, {v(e)}, {v(rR)}
    v_mov_b32 {v(rM)}, {v(rR)}
    v_mov_b32 {v(cM)}, {v(cR)}
    v_permlane32_swap_b32 {v(rR)}, {v(rM)}
    v_permlane32_swap_b32 {v(cR)}, {v(cM)}
    s_add_u32 {s(sLay)}, {s(sLay)}, 1
    s_add_u32 {s(sXb)}, {s(sXb)}, {XSTR}
    s_add_u32 {s(sXb2)}, {s(sXb2)}, {XSTR}
    s_add_u32 {s(sSb)}, {s(sSb)}, {SSTR}
    s_branch LOOP
    ''')

    A('FINAL:')
    Pk = T
    A(f'''
    s_cmp_eq_u32 {s(sFast)}, 0
    s_cselect_b32 {s(t3)}, {FB}, {0 if OPT['fa'] else FB}
    s_cbranch_scc1 FSLOW
    ''')
    def fstore(m):
        for k in range(4):
            for r in range(4):
                A(f'v_cvt_pk_bf16_f32 {v(Pk+4*k+r)}, {v(X[k]+2*r)}, {v(X[k]+2*r+1)}')
            A(f'buffer_store_dwordx4 {v(Pk+4*k,4)}, {v(vFout)}, {s(sW,4)}, {s(t3)} offen offset:{256*k}{m}')
    fstore('')
    A('F_DONE:')
    vLin, vRep, vMir, vA0, vC0, vD0, vOa = [Ga + j for j in range(7)]
    stamp(7)
    Fd = T + 16
    A(f's_mov_b32 {s(sCnt)}, {BOUND}')
    if OPT['aw'] & 2: A('s_waitcnt vmcnt(0)')
    if OPT['fp']: A(f's_sleep {OPT["fp"]}')
    stamp(13)
    A(f"""
    FPOLL:
    buffer_load_dwordx4 {v(Fd,4)}, {v(vFin)}, {s(sW,4)}, {s(t3)} offen sc1
    buffer_load_dwordx4 {v(Fd+4,4)}, {v(vFin)}, {s(sW,4)}, {s(t3)} offen offset:256 sc1
    buffer_load_dwordx4 {v(Fd+8,4)}, {v(vFin)}, {s(sW,4)}, {s(sFo2)} offen sc1
    buffer_load_dwordx4 {v(Fd+12,4)}, {v(vFin)}, {s(sW,4)}, {s(sFo3)} offen sc1
    s_waitcnt vmcnt(0)
    """)
    maxall(range(Fd, Fd + 16), vt, vt2)
    poll_tail('FPOLL', 4, vt)
    stamp(8)
    if OPT['stamps']: A(f's_sub_u32 {s(56+2*10)}, {BOUND}, {s(sCnt)}')
    for k in range(4):
        for c in range(8):
            ad, off = slot_addr(k, c, vRep, vMir, vA0, vC0, vD0)
            A(f'ds_write_b16{"_d16_hi" if c & 1 else ""} {v(ad)}, {v(Fd+4*k+c//2)} offset:{off}')
    A('s_waitcnt lgkmcnt(0)')
    for j, off in enumerate((0, 1088, ROWB, ROWB + 1088)):
        A(f'ds_read_b128 {v(Pk+4*j,4)}, {v(vLin)} offset:{off}')
    for j in range(4):
        A(f's_waitcnt lgkmcnt({3-j})')
        A(f'buffer_store_dwordx4 {v(Pk+4*j,4)}, {v(vOa)}, {s(sO,4)}, {s(sR if j < 2 else sM)} offen offset:{1024*(j&1)}' + ['', ' sc1', ' nt', ' sc0 sc1'][OPT['om']])
    if OPT['wb']:
        wb = OPT['wb']
        if wb == 2: A(f's_cmp_lg_u32 {s(sWv)}, 0')
        if wb == 3: A(f's_cmp_lg_u32 {s(sTau)}, 0')
        if wb == 4:
            A(f's_and_b32 {s(t0)}, {s(sTau)}, 15')
            A(f's_cmp_lg_u32 {s(t0)}, 0')
        if wb > 1: A('s_cbranch_scc1 NOWB')
        A('buffer_wbl2 sc1')
        A('NOWB:')
    stamp(11)
    if OPT['stamps']: A('s_waitcnt vmcnt(0)')
    stamp(12)
    stamp_flush(vStamp, 14, 44)
    stamp_store(vStamp, vL, sW, 1, sWv, t0, t1, vt)
    if OPT['spin']:
        A(f"""
        SPIN:
        s_memrealtime s[90:91]
        s_waitcnt lgkmcnt(0)
        s_sub_u32 {s(t0)}, s90, s88
        s_cmp_lt_u32 {s(t0)}, {OPT['spin']}
        s_cbranch_scc1 SPIN
        """)
    if OPT['stamps'] == 2:
        sel = [None, 0, 0, 2, 3, 4, 6, 8+2, 8+4, 8+8, 20+4, 20+8, 32+8, 44+4, 44+8, 44+12]
        A(f'v_mov_b32 {v(vt)}, 0')
        for k, src in enumerate(sel):
            if src is None: continue
            A(f'v_readlane_b32 {s(t0)}, {v(vStamp)}, {src}')
            if k == 1: A(f's_not_b32 {s(t0)}, {s(t0)}')
            A(f'v_writelane_b32 {v(vt)}, {s(t0)}, {k}')
        A(f"""
        v_lshlrev_b32 {v(vt2)}, 2, {v(vL)}
        s_mov_b64 exec, 0xffff
        buffer_atomic_umax {v(vt)}, {v(vt2)}, {s(sD,4)}, 0 offen
        s_mov_b64 exec, -1
        """)
    A(f'''
    s_lshl_b32 {s(t0)}, {s(sN)}, 2
    s_or_b32 {s(t0)}, {s(t0)}, {s(sWv)}
    s_cmp_lg_u32 {s(t0)}, 0
    s_cbranch_scc1 NOTAG
    v_mov_b32 {v(vt)}, {s(sT)}
    v_mov_b32 {v(vt2)}, {EOFF}
    s_mov_b64 exec, 1
    buffer_store_dword {v(vt)}, {v(vt2)}, {s(sW,4)}, 0 offen sc1
    NOTAG:
    s_cmp_eq_u32 {s(sErr)}, 0
    s_cbranch_scc1 MAIN_END
    v_mov_b32 {v(vt)}, {s(sErr)}
    v_mov_b32 {v(vt2)}, 0
    s_mov_b64 exec, 1
    buffer_atomic_or {v(vt)}, {v(vt2)}, {s(sD,4)}, 0 offen
    MAIN_END:
    s_endpgm
    ''')

    A('GCOL0:')
    cls = T + 15
    B0 = T + 32
    for cb in range(2):
        A(f'''
        v_lshrrev_b32 {v(a0)}, 1, {v(vI)}
        v_cvt_f32_u32 {v(fr)}, {v(a0)}
        v_mul_f32 {v(fr)}, {f32(1/32)}, {v(fr)}
        v_add_f32 {v(fr)}, {'0' if cb == 0 else f32(0.25)}, {v(fr)}
        v_and_b32 {v(a1)}, 1, {v(vI)}
        v_lshrrev_b32 {v(cls)}, 1, {v(vG)}
        v_cmp_eq_u32 vcc, {v(a1)}, {v(cls)}
        v_mov_b32 {v(a0)}, {f32(math.sqrt(0.5))}
        v_cndmask_b32 {v(amp)}, 0, {v(a0)}, vcc
        v_mov_b32 {v(ph)}, {f32(0.125)}
        v_mov_b32 {v(voff)}, 0
        ''')
        if cb == 0:
            A(f'''
            s_mov_b32 exec_lo, 0x00030003
            s_mov_b32 exec_hi, 0x00030003
            v_mov_b32 {v(fr)}, 0.5
            v_cndmask_b32 {v(amp)}, 0.5, 0, vcc
            v_cvt_f32_u32 {v(ph)}, {v(cls)}
            v_mul_f32 {v(voff)}, {v(ph)}, {v(amp)}
            v_mul_f32 {v(ph)}, {f32(0.25)}, {v(ph)}
            s_mov_b64 exec, -1
            ''')
        A(f'''
        ; d0/32 = 8 (g&1) + 0.5 (g>>1)
        v_and_b32 {v(a0)}, 1, {v(vG)}
        v_lshl_add_u32 {v(a0)}, {v(a0)}, 4, {v(cls)}
        v_cvt_f32_u32 {v(a0)}, {v(a0)}
        v_mul_f32 {v(a0)}, 0.5, {v(a0)}
        v_mul_f32 {v(a0)}, {v(a0)}, {v(fr)}
        v_cmp_eq_u32 {s(sG0,2)}, 0, {v(vG)}
        v_mul_f32 {v(Z)}, {f32(16.0)}, {v(fr)}
        v_cndmask_b32 {v(Z)}, 0, {v(Z)}, {s(sG0,2)}
        v_sub_f32 {v(arg)}, {v(a0)}, {v(ph)}
        v_add_f32 {v(arg2)}, {v(arg)}, {v(Z)}
        v_cos_f32 {v(B0)}, {v(arg)}
        ''')
        cos_row(Ga + 4 * cb, fr, scaled=True, first=arg2)
        A(f'''
        v_fma_f32 {v(B0)}, {v(B0)}, {v(amp)}, {v(voff)}
        v_cvt_pk_f16_f32 {v(B0)}, {v(B0)}, {v(B0)}
        s_mov_b32 {s(t0)}, 0xffff
        v_bfi_b32 {v(Ga2+4*cb)}, {s(t0)}, {v(B0)}, {v(Ga+4*cb)}
        v_mov_b32 {v(Ga2+4*cb+1)}, {v(Ga+4*cb+1)}
        v_mov_b64 {v(Ga2+4*cb+2,2)}, {v(Ga+4*cb+2,2)}
        v_sub_f32 {v(arg)}, 0, {v(a0)}
        v_sub_f32 {v(arg)}, {v(arg)}, {v(ph)}
        v_sub_f32 {v(stp)}, 0, {v(fr)}
        v_add_f32 {v(arg2)}, {v(arg)}, {v(Z)}
        v_cos_f32 {v(B0)}, {v(arg2)}
        ''')
        cos_row(Gb + 4 * cb, stp, scaled=True)
        A(f'''
        v_fma_f32 {v(B0)}, {v(B0)}, {v(amp)}, {v(voff)}
        v_cvt_pk_f16_f32 {v(B0)}, {v(B0)}, {v(B0)}
        v_bfi_b32 {v(Gb2+4*cb)}, {s(t0)}, {v(B0)}, {v(Gb+4*cb)}
        v_mov_b32 {v(Gb2+4*cb+1)}, {v(Gb+4*cb+1)}
        v_mov_b64 {v(Gb2+4*cb+2,2)}, {v(Gb+4*cb+2,2)}
        ''')
    A('s_branch GCOL_DONE')
    A(f'''
    GROW0:
    v_cmp_le_u32 vcc, 2, {v(vG)}
    v_sub_f32 {v(stp)}, 0, {v(fr)}
    v_cndmask_b32 {v(stp)}, {v(fr)}, {v(stp)}, vcc
    v_sub_f32 {v(a0)}, {f32(48.0)}, {v(gf)}
    v_cndmask_b32 {v(a0)}, {v(gf)}, {v(a0)}, vcc
    v_fma_f32 {v(arg)}, {v(fr)}, {v(a0)}, -{v(ph)}
    v_cmp_eq_u32 {s(sG0,2)}, 2, {v(vG)}
    v_mul_f32 {v(Z)}, {f32(16.0)}, {v(fr)}
    v_cndmask_b32 {v(Z)}, 0, {v(Z)}, {s(sG0,2)}
    v_sub_f32 {v(arg2)}, {v(arg)}, {v(Z)}
    ''')
    cos_row(GR[0], stp, first=arg2)
    A(f'''
    v_sub_f32 {v(a0)}, {f32(47.0)}, {v(gf)}
    v_cndmask_b32 {v(a0)}, {v(gf)}, {v(a0)}, vcc
    v_fma_f32 {v(arg)}, {v(fr)}, {v(a0)}, -{v(ph)}
    ''')
    cos_row(GR[2], stp)
    A('s_branch GROW_DONE')
    A('COL0:')
    for r in range(4):
        A(f'v_cndmask_b32 {v(PC+r)}, {v(PB+r)}, {v(PA+r)}, {s(sRho,2)}')
        A(f'v_cndmask_b32 {v(PD+r)}, {v(PA+r)}, {v(PB+r)}, {s(sRho,2)}')
    z = T + 64
    A(f'''
    s_cmp_lg_u32 {s(sSpec)}, 0
    s_cbranch_scc1 COL0B
    s_mov_b64 exec, 1
    v_fma_f32 {v(z)}, {v(X[0])}, {v(rR)}, -{v(cR)}
    v_fma_f32 {v(z+1)}, {v(X[3])}, {v(rR)}, -{v(cR)}
    v_fma_f32 {v(z+2)}, {v(X[1])}, {v(rM)}, -{v(cM)}
    v_fma_f32 {v(z+3)}, {v(X[2])}, {v(rM)}, -{v(cM)}
    v_add_f32 {v(z)}, {v(z)}, {v(z)}
    v_add_f32 {v(z+1)}, {v(z+1)}, {v(z+1)}
    v_add_f32 {v(z+2)}, {v(z+2)}, {v(z+2)}
    v_add_f32 {v(z+3)}, {v(z+3)}, {v(z+3)}
    v_cvt_pk_f16_f32 {v(PA)}, {v(z)}, {v(pA+1)}
    v_cvt_pk_f16_f32 {v(PC)}, {v(z+1)}, {v(pA+1)}
    v_cvt_pk_f16_f32 {v(PB)}, {v(z+2)}, {v(pB+1)}
    v_cvt_pk_f16_f32 {v(PD)}, {v(z+3)}, {v(pB+1)}
    s_mov_b64 exec, -1
    COL0B:
    ''')
    for cb in range(2): A(f'{MF} {v(W+4*cb,4)}, {v(PA,4)}, {v(Ga+4*cb,4)}, 0')
    for cb in range(2): A(f'{MF} {v(W+8+4*cb,4)}, {v(PB,4)}, {v(Ga2+4*cb,4)}, 0')
    for cb in range(2): A(f'{MF} {v(W+4*cb,4)}, {v(PC,4)}, {v(Gb+4*cb,4)}, {v(W+4*cb,4)}')
    for cb in range(2): A(f'{MF} {v(W+8+4*cb,4)}, {v(PD,4)}, {v(Gb2+4*cb,4)}, {v(W+8+4*cb,4)}')
    A('s_branch COL_DONE')
    A(f"""
    XTRA:
    s_bitset0_b32 {s(sPm)}, {s(sLay)}
    s_cmp_ge_u32 {s(sLay)}, 2
    s_cbranch_scc1 XT23
    s_add_u32 {s(t0)}, {s(sXb)}, {2*XSTR}
    buffer_store_dwordx4 {v(vOne,4)}, {v(vXout)}, {s(sW,4)}, {s(t0)} offen sc1
    buffer_store_dwordx4 {v(vOne,4)}, {v(vXout)}, {s(sW,4)}, {s(t0)} offen offset:512 sc1
    s_cmp_eq_u32 {s(sLay)}, 1
    s_cbranch_scc1 XT1
    s_cmp_eq_u32 {s(sFast)}, {0 if OPT['pt'] & 2 else s(sFast)}
    s_cbranch_scc1 XT0S
    s_lshl_b32 {s(t0)}, {s(sL)}, 10
    s_min_u32 {s(t2)}, {s(sWv)}, 2
    s_mul_i32 {s(t2)}, {s(t2)}, {SSTR}
    s_add_u32 {s(t2)}, {s(t2)}, {s(t0)}
    s_add_u32 {s(t2)}, {s(t2)}, {SB}
    s_add_u32 {s(t2)}, {s(t2)}, {s(sGb)}
    s_mov_b64 exec, 0xffff
    buffer_load_dword {v(vDum)}, {v(vPt)}, {s(sW,4)}, {s(t2)} offen
    s_mov_b64 exec, -1
    {'' if OPT['px'] else 's_waitcnt vmcnt(3)'}
    s_branch XGO
    XT0S:
    {'' if OPT['px'] else 's_waitcnt vmcnt(2)'}
    s_branch XGO
    XT1:
    s_mul_i32 {s(t0)}, {s(sTau)}, {6144 if OPT['fa'] == 2 else 4096}
    s_add_u32 {s(t0)}, {s(t0)}, {s(sGb)}
    s_cmp_eq_u32 {s(sFast)}, 0
    s_cselect_b32 {s(t2)}, {FB}, {0 if OPT['fa'] else FB}
    s_add_u32 {s(t0)}, {s(t0)}, {s(t2)}
    v_lshlrev_b32 {v(vt)}, 4, {v(vL)}
    """)
    if OPT['fa'] == 3:
        A('s_cbranch_scc1 XT1X')
        A(f's_cmp_eq_u32 {s(sFast)}, 0')
        A('s_cbranch_scc1 XT1X')
        for k in range(4):
            A(f'buffer_store_dwordx4 {v(vOne,4)}, {v(vt)}, {s(sW,4)}, {s(t0)} offen offset:{1024*k}')
        A('s_branch XGO')
        A('XT1X:')
    for k in range(4):
        A(f'buffer_store_dwordx4 {v(vOne,4)}, {v(vt)}, {s(sW,4)}, {s(t0)} offen offset:{1024*k} sc1')
    if OPT['fa'] == 2:
        A(f's_add_u32 {s(t0)}, {s(t0)}, 4096')
        for k in range(2):
            A(f'buffer_store_dwordx4 {v(vOne,4)}, {v(vt)}, {s(sW,4)}, {s(t0)} offen offset:{1024*k} sc1')
    A(f"""
    {'' if OPT['px'] else 's_waitcnt vmcnt(6)'}
    s_branch XGO
    XT23:
    s_cmp_eq_u32 {s(sLay)}, 3
    s_cbranch_scc1 XT3
    s_cmp_eq_u32 {s(sFast)}, {0 if OPT['pt'] & 4 else s(sFast)}
    s_cbranch_scc1 XGO
    s_lshl_b32 {s(t0)}, {s(sTau)}, 12
    s_add_u32 {s(t0)}, {s(t0)}, {0 if OPT['fa'] else FB}
    s_add_u32 {s(t0)}, {s(t0)}, {s(sGb)}
    buffer_load_dword {v(vDum)}, {v(vPt)}, {s(sW,4)}, {s(t0)} offen
    {'' if OPT['px'] else 's_waitcnt vmcnt(1)'}
    s_branch XGO
    XT3:
    s_mov_b32 {s(sPm)}, 0
    """)
    relayout_addrs(vL, sBase, vLin, vRep, vMir, vA0, vC0, vD0, vt, vt2, sm)
    A(f"""
    s_cmp_eq_u32 {s(sR)}, 0
    s_cselect_b32 {s(t0)}, 256, 0
    s_add_u32 {s(sFo2)}, {s(t0)}, 512
    s_sub_u32 {s(sFo3)}, 768, {s(t0)}
    s_cmp_eq_u32 {s(sFast)}, 0
    s_cselect_b32 {s(t0)}, {FB}, {0 if OPT['fa'] else FB}
    s_add_u32 {s(sFo2)}, {s(sFo2)}, {s(t0)}
    s_add_u32 {s(sFo3)}, {s(sFo3)}, {s(t0)}
    v_lshlrev_b32 {v(vOa)}, 4, {v(vL)}
    {'s_branch XGO3' if OPT['px'] else 's_waitcnt vmcnt(0)'}
    s_branch XGO
    """)
    A(f'''
    XCHK:
    buffer_load_dwordx2 {v(vXf,2)}, {v(vXa)}, {s(sW,4)}, {s(sXf)} offen sc1
    s_waitcnt vmcnt(0)
    v_cmp_ne_u32 vcc, {s(sT)}, {v(vXf)}
    s_cbranch_vccz XOK
    s_sub_u32 {s(sCnt)}, {s(sCnt)}, 1
    s_cbranch_scc0 XCHK
    s_or_b32 {s(sErr)}, {s(sErr)}, 32
    HSLOW:
    s_mov_b32 {s(sFast)}, 0
    s_mov_b32 {s(sPm)}, {15 if OPT['px'] else 11}
    s_add_u32 {s(sHa)}, {s(sHa)}, {H0S - H0B}
    s_add_u32 {s(sHb)}, {s(sHb)}, {H0S - H0B}
    s_add_u32 {s(sHin)}, {s(sHin)}, {H0S - H0B}
    s_mov_b32 {s(sCnt)}, {BOUND}
    ''')
    for h in range(2):
        for t in range(3): hstore(h, t, ' sc1')
    A(f'''
    s_waitcnt vmcnt(0)
    s_branch HPOLL
    SSLOW:
    buffer_store_dword {v(Sa[0])}, {v(vSout)}, {s(sW,4)}, {s(sSb)} offen sc1
    s_waitcnt vmcnt(0)
    s_branch SPOLL
    FSLOW:
    ''')
    fstore(' sc1')
    A('''
    s_waitcnt vmcnt(0)
    s_branch F_DONE
    ''')
    A(f"""
    FLAGS:
    s_mov_b32 {s(sCnt)}, {BOUND}
    s_waitcnt vmcnt(2)
    FLPOLL:
    v_cmp_ne_u32 vcc, {s(sT)}, {v(vFlagD)}
    s_cbranch_vccz CLR_DONE
    buffer_load_dword {v(vFlagD)}, {v(vFlag)}, {s(sW,4)}, {s(sFl)} offen sc1
    s_sub_u32 {s(sCnt)}, {s(sCnt)}, 1
    s_waitcnt vmcnt(0)
    s_cbranch_scc0 FLPOLL
    s_or_b32 {s(sErr)}, {s(sErr)}, 16
    s_branch CLR_DONE
    """)
    A('HSPEC:')
    for r in range(4):
        A(f'v_cndmask_b32 {v(BVo+r)}, 0, {v(BVs+r)}, {s(sRho,2)}')
        A(f'v_cndmask_b32 {v(BVs+r)}, {v(BVs+r)}, 0, {s(sRho,2)}')
    for mb in range(2): A(f'{MF} {v(CC+4*mb,4)}, {v(Hc+4*mb,4)}, {v(BVc,4)}, 0')
    for mb in range(2): A(f'{MF} {v(SS+4*mb,4)}, {v(Hs+4*mb,4)}, {v(BVs,4)}, 0')
    for mb in range(2): A(f'{MF} {v(SS+4*mb,4)}, {v(Hc+4*mb,4)}, {v(BVo,4)}, {v(SS+4*mb,4)}')
    A('s_branch H_DONE')
    A('EHGEN:')
    tf = T + 0; t32 = T + 1; an = T + 2; cs = T + 4; sn = T + 5; e0 = T + 6; e1 = T + 7; gfl = T + 8; an1 = T + 9; an2 = T + 10
    sgn = T + 11
    A(f'''
    s_lshr_b32 {s(t0)}, {s(sWv)}, 1
    s_and_b32 {s(t1)}, {s(sWv)}, 1
    s_lshl_b32 {s(t2)}, {s(t0)}, 5
    s_add_u32 {s(t2)}, {s(t2)}, {s(sK)}
    s_lshl_b32 {s(t3)}, {s(t1)}, 10
    s_add_u32 {s(t2)}, {s(t2)}, {s(t3)}
    s_add_u32 {s(t3)}, {s(t3)}, 16
    s_lshl_b32 {s(t1)}, {s(t1)}, 5
    s_cmp_eq_u32 {s(t0)}, 1
    s_cselect_b32 {s(t1)}, {s(t3)}, {s(t1)}
    s_cselect_b32 {s(sEA)}, 0, {f32(1/16)}
    s_cselect_b32 {s(sEC)}, {f32(1/16)}, 0
    s_cmp_eq_u32 {s(sK)}, 0
    s_cselect_b32 {s(t2)}, {s(t1)}, {s(t2)}
    s_cselect_b32 {s(sEA)}, {s(sEA)}, {f32(1/16)}
    s_cselect_b32 {s(sEC)}, {s(sEC)}, 0
    s_cselect_b32 {s(sEB)}, 0, {f32(-1/16)}
    s_cselect_b32 {s(sEnB)}, 0, {f32(1/16)}
    v_lshlrev_b32 {v(tf)}, 6, {v(vI)}
    v_add_u32 {v(tf)}, {s(t2)}, {v(tf)}
    v_cvt_f32_u32 {v(tf)}, {v(tf)}
    v_cvt_f32_u32 {v(gfl)}, {v(vG)}
    v_mul_f32 {v(tf)}, {f32(1/2048)}, {v(tf)}
    v_mul_f32 {v(t32)}, {f32(32.0)}, {v(tf)}
    v_cmp_eq_u32 {s(sG0,2)}, 0, {v(vG)}
    s_mov_b32 {s(t0)}, 0x80008000
    ''')
    def e_pair(ang, dc, ds_):
        A(f'''
        v_cos_f32 {v(cs)}, {v(ang)}
        v_sin_f32 {v(sn)}, {v(ang)}
        v_mul_f32 {v(e0)}, {s(sEA)}, {v(cs)}
        v_mul_f32 {v(e1)}, {s(sEC)}, {v(cs)}
        v_fmac_f32 {v(e1)}, {s(sEB)}, {v(sn)}
        v_cvt_pk_f16_f32 {v(dc)}, {v(e0)}, {v(e1)}
        v_mul_f32 {v(e0)}, {s(sEA)}, {v(sn)}
        v_mul_f32 {v(e1)}, {s(sEC)}, {v(sn)}
        v_fmac_f32 {v(e1)}, {s(sEnB)}, {v(cs)}
        v_cvt_pk_f16_f32 {v(ds_)}, {v(e0)}, {v(e1)}
        ''')
    for q in range(4):
        if q == 0:
            A(f'''
            v_mul_f32 {v(an)}, {v(tf)}, {v(gfl)}
            v_mul_f32 {v(an1)}, 0.5, {v(t32)}
            v_cndmask_b32 {v(an1)}, {v(t32)}, {v(an1)}, {s(sG0,2)}
            v_add_f32 {v(an1)}, {v(an1)}, {v(an)}
            v_cndmask_b32 {v(an2)}, {v(an)}, {v(t32)}, {s(sG0,2)}
            v_mov_b32 {v(sgn)}, {s(t0)}
            v_cndmask_b32 {v(sgn)}, {v(sgn)}, 0, {s(sG0,2)}
            ''')
            e_pair(an, Ec, Es); e_pair(an1, Ec + 1, Es + 1); e_pair(an2, Ec + 2, Es + 2)
            A(f'''
            v_xor_b32 {v(Es+2)}, {v(sgn)}, {v(Es+2)}
            v_mov_b32 {v(Ec+3)}, {v(Ec+1)}
            v_xor_b32 {v(Es+3)}, {s(t0)}, {v(Es+1)}
            ''')
        else:
            A(f'''
            v_fmac_f32 {v(an)}, 4.0, {v(tf)}
            v_add_f32 {v(an1)}, {v(an)}, {v(t32)}
            ''')
            e_pair(an, Ec + 4 * q, Es + 4 * q); e_pair(an1, Ec + 4 * q + 1, Es + 4 * q + 1)
            A(f'''
            v_mov_b64 {v(Ec+4*q+2,2)}, {v(Ec+4*q,2)}
            v_xor_b32 {v(Es+4*q+2)}, {s(t0)}, {v(Es+4*q)}
            v_xor_b32 {v(Es+4*q+3)}, {s(t0)}, {v(Es+4*q+1)}
            ''')
    A(f'''
    s_and_b32 exec_lo, {s(sRho)}, 0x00010000
    s_mov_b32 exec_hi, exec_lo
    ''')
    for r in range(16):
        A(f'v_mov_b32 {v(Ec+r)}, 0')
        A(f'v_mov_b32 {v(Es+r)}, 0xac00')
    A('s_mov_b64 exec, -1')
    hA = T + 12; hB = T + 13; hC = T + 14; hO = T + 15; ef = T + 16; ls = T + 18; mu = T + 22; sg = T + 23; hnB = T + 24
    A(f'''
    v_lshrrev_b32 {v(mu)}, 2, {v(vI)}
    v_lshlrev_b32 {v(mu)}, 3, {v(mu)}
    v_and_b32 {v(e0)}, 3, {v(vI)}
    v_add_u32 {v(mu)}, {v(mu)}, {v(e0)}
    v_lshlrev_b32 {v(ef)}, 5, {v(mu)}
    v_add_u32 {v(ef)}, {s(sL)}, {v(ef)}
    v_add_u32 {v(ef+1)}, 128, {v(ef)}
    v_mov_b32 {v(hA)}, {f32(16.0)}
    v_mov_b32 {v(hB)}, {f32(-16.0)}
    v_mov_b32 {v(hC)}, 0
    v_mov_b32 {v(hO)}, 0
    s_cmp_eq_u32 {s(sL)}, 0
    s_cselect_b32 exec_lo, 0xff00ff00, 0
    s_mov_b32 exec_hi, exec_lo
    v_subrev_u32 {v(ef)}, {512-16}, {v(ef)}
    v_subrev_u32 {v(ef+1)}, {512-16}, {v(ef+1)}
    v_mov_b32 {v(hA)}, 0
    v_mov_b32 {v(hB)}, 0
    v_mov_b32 {v(hC)}, {f32(16.0)}
    s_cselect_b32 exec_lo, 0x00ff00ff, 0
    s_mov_b32 exec_hi, exec_lo
    v_mov_b32 {v(hB)}, 0
    v_mov_b32 {v(hO)}, {f32(-16.0)}
    s_cselect_b32 exec_lo, 0x00010001, 0
    s_mov_b32 exec_hi, exec_lo
    v_mov_b32 {v(ef)}, 512
    s_mov_b64 exec, -1
    v_cvt_f32_u32 {v(ef)}, {v(ef)}
    v_cvt_f32_u32 {v(ef+1)}, {v(ef+1)}
    v_sub_f32 {v(hnB)}, 0, {v(hB)}
    v_mul_f32 {v(ef)}, {f32(1/1024)}, {v(ef)}
    v_mul_f32 {v(ef+1)}, {f32(1/1024)}, {v(ef+1)}
    v_add_f32 {v(ls)}, {v(gfl)}, {v(gfl)}
    v_add_f32 {v(ls+1)}, 1.0, {v(ls)}
    v_add_f32 {v(ls+2)}, {f32(8.0)}, {v(ls)}
    v_add_f32 {v(ls+3)}, {f32(9.0)}, {v(ls)}
    ''')
    for mb in range(2):
        for d in range(4):
            A(f'''
            v_mul_f32 {v(an)}, {v(ef+mb)}, {v(ls+d)}
            v_cos_f32 {v(cs)}, {v(an)}
            v_sin_f32 {v(sn)}, {v(an)}
            v_fma_f32 {v(e0)}, {v(hA)}, {v(cs)}, {v(hO)}
            v_mul_f32 {v(e1)}, {v(hC)}, {v(cs)}
            v_fmac_f32 {v(e1)}, {v(hB)}, {v(sn)}
            v_cvt_pk_f16_f32 {v(Hc+4*mb+d)}, {v(e0)}, {v(e1)}
            v_mul_f32 {v(e0)}, {v(hA)}, {v(sn)}
            v_mul_f32 {v(e1)}, {v(hC)}, {v(sn)}
            v_fmac_f32 {v(e1)}, {v(hnB)}, {v(cs)}
            v_cvt_pk_f16_f32 {v(Hs+4*mb+d)}, {v(e0)}, {v(e1)}
            ''')
    A(f'''
    v_and_b32 {v(sg)}, 1, {v(vI)}
    v_cvt_f32_u32 {v(sg)}, {v(sg)}
    v_fma_f32 {v(sg)}, {v(sg)}, -2.0, 1.0
    v_add_f32 {v(e0)}, {v(hnB)}, {v(hO)}
    v_fma_f32 {v(e0)}, -{v(hO)}, {v(sg)}, {v(e0)}
    v_fma_f32 {v(e1)}, {v(hnB)}, {v(sg)}, {v(hC)}
    v_fma_f32 {v(cs)}, {v(hC)}, {v(sg)}, {v(hnB)}
    v_mul_f32 {v(sn)}, {v(hnB)}, {v(sg)}
    s_mov_b64 exec, 0xffff
    v_cvt_pk_f16_f32 {v(Hc)}, {v(e0)}, {v(e1)}
    v_cvt_pk_f16_f32 {v(Hc+4)}, {v(e0)}, {v(e1)}
    v_cvt_pk_f16_f32 {v(Hs)}, {v(cs)}, {v(sn)}
    v_cvt_pk_f16_f32 {v(Hs+4)}, {v(cs)}, {v(sn)}
    s_mov_b64 exec, -1
    ''')
    if OPT['debug'] >= 2:
        dump(10, Ga, 16); dump(11, Gb, 16); dump(12, GR[0], 12); dump(13, Ec, 16); dump(14, Es, 16); dump(15, Hc, 16)
    A('s_branch EH_DONE')
    return V.hi

def descriptor(name, nv):
    nv = (nv + 7) // 8 * 8
    return f'''.section .rodata,"a"
.p2align 6
.amdhsa_kernel {name}
  .amdhsa_next_free_vgpr {nv}
  .amdhsa_next_free_sgpr 96
  .amdhsa_accum_offset {nv}
  .amdhsa_group_segment_fixed_size 0
  .amdhsa_kernarg_size 104
  .amdhsa_user_sgpr_count 2
  .amdhsa_user_sgpr_kernarg_segment_ptr 1
  .amdhsa_system_sgpr_workgroup_id_x 1
.end_amdhsa_kernel
'''

hdr = open('cdna_kernels/' + NAME + '.s.ref').read().split('; Override launch')[0]
nv2 = gen_main()
npad = A.pad()
out = hdr
out += f'; @launch grid=(256,1,1) block=(256,1,1) lds={LDS_MAIN}\n'
out += '.amdgcn_target "amdgcn-amd-amdhsa--gfx950"\n.text\n'
out += A.text()
out += descriptor(MAIN, nv2)
open(sys.argv[1], 'w').write(out)
print('vgprs', nv2, 'pad states', npad, 'lines', out.count('\n'))
```
